```python
import torch

def _softmax(x, axis=-1):
    return torch.softmax(x, dim=axis)
def _gelu(x):
    return torch.nn.functional.gelu(x, approximate="tanh")
def _silu(x):
    return torch.nn.functional.silu(x)
def _sigmoid(x):
    return torch.sigmoid(x)
def _layernorm(x, axis=-1, eps=1e-5):
    m = x.mean(dim=axis, keepdim=True)
    v = x.var(dim=axis, keepdim=True, unbiased=False)
    return (x - m) / torch.sqrt(v + eps)
def _scatter_add(tgt, idx, src, axis=0):
    return tgt.clone().index_add_(axis, idx, src)
def _segment_sum(src, seg, n):
    out = torch.zeros((n,) + src.shape[1:], dtype=src.dtype)
    return out.index_add_(0, seg, src)
def _pad(x, pw):
    flat = tuple(v for pair in reversed(pw) for v in pair)
    return torch.nn.functional.pad(x, flat)

kernel_name = 'sequential_preLN__linear_attn_block__swiglu_ffn__prompt'

def setup_inputs():

    _w = (lambda a: (lambda t: t.to(torch.bfloat16) if t.is_floating_point() else t)(torch.as_tensor(a)))
    def _A_setup():
        B, S, D = 1, 2048, 576
        return {
            "x": _w((lambda *s: torch.randn(*s, dtype=torch.bfloat16) * 0.05)(B, S, D)),
            "wqkv": _w((lambda *s: torch.randn(*s, dtype=torch.bfloat16) * 0.05)(D, 3 * D)),
            "wo": _w((lambda *s: torch.randn(*s, dtype=torch.bfloat16) * 0.05)(D, D)),
        }
    _A_in = _A_setup()

    def _B_setup():
        B, S, D, F = 1, 2048, 576, 4608
        return {
            "x": _w((lambda *s: torch.randn(*s, dtype=torch.bfloat16) * 0.05)(B, S, D)),
            "w_gate": _w((lambda *s: torch.randn(*s, dtype=torch.bfloat16) * 0.05)(D, F)),
            "w_up": _w((lambda *s: torch.randn(*s, dtype=torch.bfloat16) * 0.05)(D, F)),
            "w_down": _w((lambda *s: torch.randn(*s, dtype=torch.bfloat16) * 0.05)(F, D)),
        }
    _B_in = _B_setup()

    return {
        "A_x": _A_in["x"],
        "A_wqkv": _A_in["wqkv"],
        "A_wo": _A_in["wo"],
        "B_x": _B_in["x"],
        "B_w_gate": _B_in["w_gate"],
        "B_w_up": _B_in["w_up"],
        "B_w_down": _B_in["w_down"],
    }

def reference(A_x, A_wqkv, A_wo, B_x, B_w_gate, B_w_up, B_w_down):
    def _A_ref(x, wqkv, wo):
        B, S, D = x.shape
        H = 32; Dh = D // H
        qkv = (lambda x, *d: x.permute(*d))((x @ wqkv).reshape(B, S, 3, H, Dh), 2, 0, 3, 1, 4)
        q, k, v = qkv[0], qkv[1], qkv[2]
        phi = lambda t: torch.where(t > 0, t + 1, torch.exp(t)) + 1e-6
        pq, pk = phi(q), phi(k)
        kv = torch.einsum("bhsd,bhse->bhde", pk, v)
        z = torch.einsum("bhsd->bhd", pk)
        num = torch.einsum("bhqd,bhde->bhqe", pq, kv)
        den = torch.einsum("bhqd,bhd->bhq", pq, z)[..., None] + 1e-6
        o = num / den
        return (lambda x, *d: x.permute(*d))(o, 0, 2, 1, 3).reshape(B, S, D) @ wo

    def _B_ref(x, w_gate, w_up, w_down):
        g = _silu(x @ w_gate)
        u = x @ w_up
        return (g * u) @ w_down

    x = A_x
    h = x + _A_ref(_layernorm(x, axis=-1), A_wqkv, A_wo)
    h2 = h + _B_ref(_layernorm(h, axis=-1), B_w_gate, B_w_up, B_w_down)
    return h2
```

```python
import re

TRANS = ("v_exp_f32", "v_rcp_f32", "v_rsq_f32", "v_log_f32", "v_sqrt_f32", "v_sin_f32", "v_cos_f32")

def parse_regs(tok):
    tok = tok.strip()
    neg = tok.lstrip('-')
    if neg.startswith('abs(') or neg.startswith('|'):
        neg = neg.replace('abs(', '').replace(')', '').replace('|', '')
    m = re.fullmatch(r'([vas])\[(\d+):(\d+)\]', neg)
    if m:
        return [(m.group(1), i) for i in range(int(m.group(2)), int(m.group(3)) + 1)]
    m = re.fullmatch(r'([vas])(\d+)', neg)
    if m:
        return [(m.group(1), int(m.group(2)))]
    if neg == 'vcc': return [('s', 106), ('s', 107)]
    if neg == 'vcc_lo': return [('s', 106)]
    if neg == 'vcc_hi': return [('s', 107)]
    if neg == 'm0': return [('s', 124)]
    if neg == 'exec': return [('s', 126), ('s', 127)]
    if neg == 'exec_lo': return [('s', 126)]
    if neg == 'exec_hi': return [('s', 127)]
    return []

class Ins:
    __slots__ = ("text", "op", "kind", "dst", "src", "srcC", "srcAB", "passes", "wide_store", "lds_dma", "states", "trans", "dpp", "perml", "rdlane")
    def __init__(self, text):
        self.text = text
        t = text.split(';')[0].strip()
        parts = t.split(None, 1)
        self.op = parts[0]
        rest = parts[1] if len(parts) > 1 else ""
        ops = [o.strip() for o in re.split(r',(?![^\[]*\])', rest)] if rest else []
        toks = []
        mods = []
        for i, o in enumerate(ops):
            sp = o.split()
            if sp:
                toks.append(sp[0]); mods += sp[1:]
        self.dst = []; self.src = []; self.srcC = []; self.srcAB = []
        self.passes = 0; self.wide_store = []; self.lds_dma = False; self.states = 1
        self.trans = False; self.dpp = False; self.perml = False; self.rdlane = False
        op = self.op
        R = parse_regs
        if op == 's_nop':
            self.kind = 'salu'; self.states = int(toks[0], 0) + 1
        elif op.startswith('v_mfma'):
            self.kind = 'mfma'
            self.dst = R(toks[0]); self.srcAB = R(toks[1]) + R(toks[2]); self.srcC = R(toks[3])
            self.src = self.srcAB + self.srcC
            self.passes = 8 if '32x32' in op else 4
        elif op.startswith('v_'):
            self.kind = 'valu'
            if op.startswith('v_permlane') and 'swap' in op:
                self.dst = R(toks[0]) + R(toks[1]); self.src = list(self.dst); self.perml = True
            else:
                nd = 1
                if op.startswith(('v_add_co', 'v_sub_co', 'v_addc_co', 'v_subb_co', 'v_mad_u64', 'v_subrev_co')): nd = 2
                for x in toks[:nd]: self.dst += R(x)
                for x in toks[nd:]: self.src += R(x)
                if op.startswith(('v_fmac', 'v_dot2c', 'v_pk_fmac')): self.src += R(toks[0])
                if op.startswith('v_cndmask') and len(toks) == 3: self.src += R('vcc')
            if op.startswith(TRANS): self.trans = True
            if 'dpp' in op or any(m.startswith(('row_', 'quad_perm', 'wave_')) for m in mods): self.dpp = True
            if op.startswith(('v_readfirstlane', 'v_readlane')): self.rdlane = True
        elif op.startswith('ds_'):
            self.kind = 'ds'
            if op.startswith(('ds_read', 'ds_bpermute', 'ds_permute', 'ds_swizzle')) or '_rtn' in op:
                self.dst = R(toks[0])
                for x in toks[1:]: self.src += R(x)
            else:
                for x in toks: self.src += R(x)
        elif op.startswith(('buffer_', 'global_', 'flat_')):
            self.kind = 'vmem'
            if op in ('buffer_wbl2', 'buffer_inv'):
                pass
            elif 'lds' in mods or '_lds_' in op:
                self.lds_dma = True
                for x in toks: self.src += R(x)
                self.src += R('m0')
            elif 'load' in op:
                self.dst = R(toks[0])
                for x in toks[1:]: self.src += R(x)
            elif 'atomic' in op:
                if 'sc0' in mods:
                    if op.startswith('buffer'):
                        self.dst = R(toks[0])
                        for x in toks: self.src += R(x)
                    else:
                        self.dst = R(toks[0])
                        for x in toks[1:]: self.src += R(x)
                else:
                    for x in toks: self.src += R(x)
            else:
                for x in toks: self.src += R(x)
                if 'x4' in op or 'x3' in op:
                    self.wide_store = R(toks[0]) if op.startswith('buffer') else R(toks[1])
        elif op.startswith('s_'):
            self.kind = 'salu'
            if op.startswith(('s_cmp', 's_cbranch', 's_branch', 's_waitcnt', 's_barrier', 's_endpgm', 's_setprio', 's_sleep')):
                for x in toks: self.src += R(x)
            elif op.startswith(('s_load', 's_memtime', 's_memrealtime', 's_atomic')):
                self.kind = 'smem'
                self.dst = R(toks[0])
                for x in toks[1:]: self.src += R(x)
            else:
                if toks: self.dst = R(toks[0])
                for x in toks[1:]: self.src += R(x)
                if 'saveexec' in op: self.dst += R('exec')
        else:
            self.kind = 'other'

class Asm:
    def __init__(self):
        self.out = []
        self.hist = []
        self.vmq = []
        self.lgq = []
        self.vmdone = 0
        self.lgdone = 0
        self.nins = 0
    def raw(self, s):
        self.out.append(s)
    def comment(self, s):
        self.out.append("    ; " + s)
    def label(self, name):
        self.out.append(name + ":")
    def _need(self, c):
        need = 0
        dist = 0
        sc = set(c.src); dc = set(c.dst)
        for p in reversed(self.hist):
            if dist >= 20: break
            dp = set(p.dst)
            req = 0
            if p.kind == 'valu':
                vw = {r for r in dp if r[0] in 'va'}
                sw = {r for r in dp if r[0] == 's'}
                if c.kind == 'mfma' and vw & sc: req = max(req, 2)
                if c.kind == 'vmem' and sw & sc: req = max(req, 5)
                if c.kind == 'valu' and sw & sc: req = max(req, 4 if (c.rdlane) else 2)
                if c.kind == 'valu' and c.rdlane and vw & sc: req = max(req, 1)
                if c.kind == 'valu' and p.trans and not c.trans and vw & sc: req = max(req, 1)
                if c.kind == 'valu' and (c.perml or c.dpp) and vw & sc: req = max(req, 2)
                if c.kind == 'salu' and sw & sc: req = max(req, 1)
            if p.kind == 'mfma':
                big = 12 if p.passes == 8 else 8
                if c.kind == 'mfma':
                    if dp & set(c.srcAB): req = max(req, big)
                    if dp & set(c.srcC):
                        if not (c.srcC == p.dst and c.passes == p.passes): req = max(req, p.passes + 2)
                    if dp & dc and not (c.dst == p.dst): req = max(req, big)
                elif c.kind in ('valu', 'vmem', 'ds'):
                    if dp & (sc | dc): req = max(req, big)
                if c.kind == 'valu' and set(p.srcC) & dc: req = max(req, 7 if p.passes == 8 else 3)
            if p.kind == 'salu' and c.lds_dma and ('s', 124) in dp: req = max(req, 1)
            if p.wide_store and set(p.wide_store) & dc:
                req = max(req, 2 if c.kind in ('valu', 'mfma') else 1)
            need = max(need, req - dist)
            dist += p.states
        return need
    def i(self, text, tag=None):
        for line in text.strip().split('\n'):
            line = line.strip()
            if not line: continue
            c = Ins(line)
            n = self._need(c)
            while n > 0:
                k = min(n, 16)
                nop = Ins(f"s_nop {k-1}")
                self.out.append(f"    s_nop {k-1}")
                self.hist.append(nop); n -= k
            self.out.append("    " + line)
            self.hist.append(c)
            if len(self.hist) > 40: self.hist = self.hist[-30:]
            self.nins += 1
            if c.kind == 'vmem' and c.op not in ('buffer_wbl2', 'buffer_inv'):
                self.vmq.append(tag)
            elif c.kind == 'ds':
                self.lgq.append(tag)
            elif c.kind == 'smem':
                self.lgq.append('SMEM')
            if c.op == 's_waitcnt':
                m = re.search(r'vmcnt\((\d+)\)', line)
                if m: self.vmdone = max(self.vmdone, len(self.vmq) - int(m.group(1)))
                m = re.search(r'lgkmcnt\((\d+)\)', line)
                if m: self.lgdone = max(self.lgdone, len(self.lgq) - int(m.group(1)))
    def flush_hazards(self, n=18):
        self.i("s_nop 15"); self.i("s_nop 3")
    def wait_vm(self, tag, force=False):
        idx = [k for k, t in enumerate(self.vmq) if t == tag]
        assert idx, tag
        if idx[-1] < self.vmdone and not force: return
        n = len(self.vmq) - 1 - idx[-1]
        if n > 63:
            if idx[-1] < self.vmdone: return
            n = 63
        self.i(f"s_waitcnt vmcnt({n})")
    def wait_lg(self, tag, force=False):
        idx = [k for k, t in enumerate(self.lgq) if t == tag]
        assert idx, tag
        if idx[-1] < self.lgdone and not force: return
        if 'SMEM' in self.lgq[self.lgdone:]:
            self.i("s_waitcnt lgkmcnt(0)"); return
        n = len(self.lgq) - 1 - idx[-1]
        if n > 15:
            if idx[-1] < self.lgdone: return
            n = 15
        self.i(f"s_waitcnt lgkmcnt({n})")
    def text(self):
        return "\n".join(self.out) + "\n"

def kernel_header(name):
    return f""".globl {name}
.p2align 8
.type {name},@function
{name}:
"""
def kernel_desc(name, vgpr, agpr=0, sgpr=102):
    acc = (vgpr + 3) // 4 * 4
    nfv = acc + agpr if agpr else vgpr
    return f""".amdhsa_kernel {name}
  .amdhsa_next_free_vgpr {nfv}
  .amdhsa_next_free_sgpr {sgpr}
  .amdhsa_accum_offset {acc}
  .amdhsa_group_segment_fixed_size 0
  .amdhsa_kernarg_size 80
  .amdhsa_user_sgpr_count 2
  .amdhsa_user_sgpr_kernarg_segment_ptr 1
  .amdhsa_system_sgpr_workgroup_id_x 1
  .amdhsa_float_denorm_mode_32 3
.end_amdhsa_kernel
"""
```

```python
import sys
def assemble(parts, path):
    launches = [p[0] for p in parts]
    seen = set(); body = []; descs = []
    for l, t, d in parts:
        if t in seen: continue
        seen.add(t); body.append(t); descs.append(d)
    hdr = open('sequential_preLN__linear_attn_block__swiglu_ffn__prompt.s.ref').read().split('\n')
    head = [l for l in hdr if l.startswith(';') and '@launch' not in l]
    s = "\n".join(head) + "\n" + "\n".join(launches) + "\n"
    s += '.amdgcn_target "amdgcn-amd-amdhsa--gfx950"\n.text\n' + "\n".join(body) + "Lcode_end:\n"
    s += '.section .rodata,"a"\n'
    for d in descs: s += ".p2align 6\n" + d
    open(path, 'w').write(s)
```

```python
from asmlib import *
from layout import *

def phi_ops(I, regs, tmp, s_log2e):
    for r, t in zip(regs, tmp): I(f"v_mul_f32 v{t}, {s_log2e}, v{r}")
    for r, t in zip(regs, tmp): I(f"v_exp_f32 v{t}, v{t}")
    for r, t in zip(regs, tmp):
        I(f"v_cmp_lt_f32 vcc, 0, v{r}")
        I(f"v_add_f32 v{r}, 1.0, v{r}")
        I(f"v_cndmask_b32 v{r}, v{t}, v{r}, vcc")
        I(f"v_add_f32 v{r}, 0x358637bd, v{r}")

def gen_k1(name="k1_kernel", prof=False):
    A = Asm(); I = A.i
    LDS_BYTES = 147456
    XF = 0
    AC = 144
    WB = 176
    vX = [200, 201, 202, 203]
    vT = [204, 205]
    vL16 = 206
    lane = 207
    T0 = 208
    A.raw(kernel_header(name))
    def stamp(i):
        if prof:
            I(f"s_memtime s[{60+4*i}:{61+4*i}]"); I(f"s_memrealtime s[{62+4*i}:{63+4*i}]"); I("s_waitcnt lgkmcnt(0)")
    I("s_cmp_ge_u32 s2, 256")
    I(f"s_cbranch_scc1 L{name}_end")
    stamp(0)
    I("s_load_dwordx4 s[4:7], s[0:1], 0")
    I("s_load_dwordx4 s[20:23], s[0:1], 64")
    I(f"v_lshrrev_b32 v{T0}, 6, v0")
    I(f"v_readfirstlane_b32 s30, v{T0}")
    I(f"v_and_b32 v{lane}, 63, v0")
    I("s_and_b32 s31, s2, 7"); I("s_lshr_b32 s32, s2, 3")
    I("s_lshl_b32 s33, s31, 1"); I("s_and_b32 s34, s32, 1"); I("s_add_u32 s33, s33, s34")
    I("s_lshr_b32 s32, s32, 1")
    I("s_and_b32 s41, s30, 3")
    I("s_lshr_b32 s39, s30, 2")
    I(f"v_lshlrev_b32 v{vL16}, 4, v{lane}")
    I("s_waitcnt lgkmcnt(0)")
    I("s_mov_b32 s8, s4"); I("s_mov_b32 s9, s5"); I(f"s_mov_b32 s10, {S*D*2}"); I("s_mov_b32 s11, 0x20000")
    I("s_mov_b32 s12, s6"); I("s_mov_b32 s13, s7"); I(f"s_mov_b32 s14, {D*3*D*2}"); I("s_mov_b32 s15, 0x20000")
    I("s_mov_b32 s16, s22"); I("s_mov_b32 s17, s23"); I(f"s_mov_b32 s18, {WS_BYTES}"); I("s_mov_b32 s19, 0x20000")
    I("s_lshl_b32 s40, s32, 7"); I("s_lshl_b32 s42, s30, 4"); I("s_add_u32 s40, s40, s42"); I("s_mul_i32 s40, s40, 1152")
    I(f"s_mul_i32 s43, s30, {16*1152}")
    I("s_mov_b32 s36, 0xE38F")
    for q in range(18):
        g, rw, p, t = T0 + 4*(q & 1), T0 + 1 + 4*(q & 1), T0 + 2 + 4*(q & 1), T0 + 3 + 4*(q & 1)
        I(f"v_add_u32 v{g}, {64*q}, v{lane}")
        I(f"v_mul_lo_u32 v{rw}, v{g}, s36")
        I(f"v_lshrrev_b32 v{rw}, 22, v{rw}")
        I(f"v_mul_u32_u24 v{t}, 72, v{rw}")
        I(f"v_sub_u32 v{p}, v{g}, v{t}")
        I(f"v_bfe_u32 v{t}, v{rw}, 1, 3")
        I(f"v_xor_b32 v{p}, v{p}, v{t}")
        I(f"v_mul_u32_u24 v{t}, 1152, v{rw}")
        I(f"v_lshl_add_u32 v{g}, v{p}, 4, v{t}")
        I(f"s_add_u32 m0, s43, {1024*q}")
        I(f"buffer_load_dwordx4 v{g}, s[8:11], s40 offen lds", tag="X")
    s_, hf, f, t = T0, T0+1, T0+2, T0+3
    I(f"v_and_b32 v{s_}, 31, v{lane}")
    I(f"v_lshrrev_b32 v{hf}, 5, v{lane}")
    I(f"v_bfe_u32 v{f}, v{lane}, 1, 3")
    I("s_lshl_b32 s42, s41, 5")
    I(f"v_add_u32 v{s_}, s42, v{s_}")
    I(f"v_mul_u32_u24 v{s_}, 1152, v{s_}")
    for m in range(4):
        I(f"v_add_u32 v{t}, {2*m}, v{hf}")
        I(f"v_xor_b32 v{t}, v{t}, v{f}")
        I(f"v_lshl_add_u32 v{vX[m]}, v{t}, 4, v{s_}")
    vW = T0 + 8
    gi, sp, r_, t = T0+4, T0+5, T0+6, T0+7
    I(f"v_lshrrev_b32 v{gi}, 4, v{lane}"); I(f"v_and_b32 v{t}, 3, v{lane}"); I(f"v_lshl_add_u32 v{gi}, v{gi}, 2, v{t}")
    I(f"v_min_u32 v{gi}, 14, v{gi}")
    I(f"v_mul_u32_u24 v{sp}, 52, v{gi}"); I(f"v_lshrrev_b32 v{sp}, 8, v{sp}")
    I(f"v_mul_u32_u24 v{t}, 5, v{sp}"); I(f"v_sub_u32 v{gi}, v{gi}, v{t}")
    I(f"v_bfe_u32 v{r_}, v{lane}, 2, 2")
    I(f"v_mul_u32_u24 v{r_}, 3456, v{r_}")
    I(f"v_mul_u32_u24 v{sp}, 1152, v{sp}")
    I(f"v_add_u32 v{r_}, v{r_}, v{sp}")
    I(f"v_lshl_add_u32 v{vW}, v{gi}, 4, v{r_}")
    I("s_mul_i32 s44, s33, 72"); I("s_and_b32 s44, s44, 0xfffffff0")
    I(f"s_mul_i32 s45, s30, {4*3456}"); I("s_add_u32 s44, s44, s45")
    I("s_lshl_b32 s45, s30, 10")
    i_, w0, w1, t, base = T0+4, T0+5, T0+6, T0+7, T0+9
    I(f"v_bfe_u32 v{i_}, v{lane}, 4, 1"); I(f"v_and_b32 v{t}, 3, v{lane}"); I(f"v_lshl_add_u32 v{i_}, v{i_}, 2, v{t}")
    I("s_and_b32 s46, s33, 1")
    I("s_cmp_eq_u32 s39, 0")
    I(f"s_cbranch_scc0 L{name}_u1")
    I(f"v_add_u32 v{w0}, s46, v{i_}")
    I(f"v_add_u32 v{w1}, 10, v{w0}")
    I(f"s_branch L{name}_uj")
    A.label(f"L{name}_u1")
    I(f"v_add_u32 v{w0}, 19, v{i_}")
    I(f"v_cmp_eq_u32 vcc, 0, v{i_}")
    I(f"v_cndmask_b32 v{w0}, v{w0}, 18, vcc") if False else None
    I(f"v_mov_b32 v{t}, 18")
    I(f"v_cndmask_b32 v{w0}, v{w0}, v{t}, vcc")
    I(f"v_add_u32 v{w0}, s46, v{w0}")
    I(f"v_add_u32 v{w1}, 27, v{i_}")
    I(f"v_cmp_gt_u32 vcc, 2, v{i_}")
    I(f"v_mov_b32 v{t}, 8")
    I(f"v_cndmask_b32 v{w1}, v{t}, v{w1}, vcc")
    I(f"v_add_u32 v{w1}, s46, v{w1}")
    A.label(f"L{name}_uj")
    A.flush_hazards()
    I(f"v_lshrrev_b32 v{base}, 5, v{lane}"); I(f"v_lshlrev_b32 v{base}, 11, v{base}")
    I(f"v_bfe_u32 v{t}, v{lane}, 2, 2"); I(f"v_lshl_add_u32 v{base}, v{t}, 6, v{base}")
    for k, w in enumerate((w0, w1)):
        I(f"v_lshrrev_b32 v{t}, 3, v{w}"); I(f"v_lshl_add_u32 v{vT[k]}, v{t}, 8, v{base}")
        I(f"v_and_b32 v{t}, 7, v{w}"); I(f"v_lshl_add_u32 v{vT[k]}, v{t}, 3, v{vT[k]}")
    I("s_waitcnt vmcnt(0)")
    I("s_barrier")
    stamp(1)
    for tt in range(36):
        I(f"ds_read_b128 v[{XF+4*tt}:{XF+4*tt+3}], v{vX[tt & 3]} offset:{128*(tt >> 2)}", tag=("XF", tt))
    I("s_waitcnt lgkmcnt(0)")
    I("s_barrier")
    for x in range(18):
        I(f"s_add_u32 m0, s45, {8192*x}")
        I(f"buffer_load_dwordx4 v{vW}, s[12:15], s44 offen lds", tag=("W", x))
        I(f"s_add_u32 s44, s44, {32*3456}")
    a0, a1, b0, b1 = T0, T0+1, T0+2, T0+3
    for r in (a0, a1, b0, b1): I(f"v_mov_b32 v{r}, 0")
    I("s_mov_b32 s47, 0x3f803f80")
    for k in range(144):
        I(f"v_dot2_f32_bf16 v{a0 + (k & 1)}, v{XF+k}, s47, v{a0 + (k & 1)}")
        I(f"v_dot2_f32_bf16 v{b0 + (k & 1)}, v{XF+k}, v{XF+k}, v{b0 + (k & 1)}")
    I("s_nop 4")
    I(f"v_add_f32 v{a0}, v{a0}, v{a1}"); I(f"v_add_f32 v{b0}, v{b0}, v{b1}")
    I(f"v_mov_b32 v{a1}, v{a0}"); I(f"v_mov_b32 v{b1}, v{b0}")
    I(f"v_permlane32_swap_b32 v{a0}, v{a1}"); I(f"v_permlane32_swap_b32 v{b0}, v{b1}")
    I("s_nop 1")
    I(f"v_add_f32 v{a0}, v{a0}, v{a1}"); I(f"v_add_f32 v{b0}, v{b0}, v{b1}")
    I("s_mov_b32 s49, 0x3AE38E39")
    I(f"v_mul_f32 v{a0}, s49, v{a0}"); I(f"v_mul_f32 v{b0}, s49, v{b0}")
    I(f"v_fma_f32 v{b0}, -v{a0}, v{a0}, v{b0}")
    I(f"v_max_f32 v{b0}, 0, v{b0}")
    I(f"v_add_f32 v{b0}, 0x3727c5ac, v{b0}")
    I(f"v_rsq_f32 v{a1}, v{b0}")
    I(f"v_mul_f32 v{b1}, v{a0}, v{a1}")
    I(f"v_sub_f32 v{b1}, 0, v{b1}")
    for k in range(144):
        lo, hi = T0 + 4 + 2*(k & 3), T0 + 5 + 2*(k & 3)
        I(f"v_lshlrev_b32 v{lo}, 16, v{XF+k}")
        I(f"v_and_b32 v{hi}, 0xffff0000, v{XF+k}")
        I(f"v_fma_f32 v{lo}, v{lo}, v{a1}, v{b1}")
        I(f"v_fma_f32 v{hi}, v{hi}, v{a1}, v{b1}")
        I(f"v_cvt_pk_bf16_f32 v{XF+k}, v{lo}, v{hi}")
    for k in range(32): I(f"v_mov_b32 v{AC+k}, 0")
    stamp(2)
    I("s_cmp_eq_u32 s39, 0")
    I(f"s_cbranch_scc0 L{name}_cg1")
    saved = (list(A.vmq), A.vmdone, list(A.lgq), A.lgdone)
    PD = 4; NB = 6
    for cg in range(2):
        if cg == 1:
            A.label(f"L{name}_cg1")
            A.vmq, A.vmdone, A.lgq, A.lgdone = list(saved[0]), saved[1], list(saved[2]), saved[3]
            A.hist = []
        for ch in range(3):
            A.wait_vm(("W", 6 * ch + 5))
            I("s_barrier")
            def rd(fi):
                tl = fi >> 1; k = fi & 1
                b = WB + 4 * (fi % NB)
                for x in range(2):
                    I(f"ds_read_b64_tr_b16 v[{b+2*x}:{b+2*x+1}], v{vT[k]} offset:{tl*4096 + x*1024}", tag=("F", ch, fi))
            for fi in range(PD): rd(fi)
            for fi in range(24):
                tl = fi >> 1; k = fi & 1; tt = 12 * ch + tl
                b = WB + 4 * (fi % NB)
                A.wait_lg(("F", ch, fi))
                ac = f"v[{AC+16*k}:{AC+16*k+15}]"
                xf = f"v[{XF+4*tt}:{XF+4*tt+3}]"; wf = f"v[{b}:{b+3}]"
                if cg == 0 and k == 0: I(f"v_mfma_f32_32x32x16_bf16 {ac}, {wf}, {xf}, {ac}")
                else: I(f"v_mfma_f32_32x32x16_bf16 {ac}, {xf}, {wf}, {ac}")
                if fi + PD < 24: rd(fi + PD)
            if ch < 2:
                for k in range(2): I(f"v_add_u32 v{vT[k]}, 49152, v{vT[k]}")
        stamp(3)
        I("s_barrier")
        I("s_mov_b32 s48, 0x3fb8aa3b")
        tmp = list(range(0, 16))
        I("s_lshl_b32 s50, s32, 2"); I("s_add_u32 s50, s50, s41"); I("s_lshl_b32 s50, s50, 2"); I("s_lshr_b32 s51, s33, 2"); I("s_add_u32 s50, s50, s51")
        I("s_mul_i32 s50, s50, 9216"); I(f"s_add_u32 s50, s50, {PQF}")
        I("s_and_b32 s51, s33, 3")
        I("s_lshl_b32 s52, s41, 11")
        I(f"v_add_u32 v{T0}, s52, v{vL16}")
        def pack_to_lds(ac, tile):
            for r in range(8): I(f"v_cvt_pk_bf16_f32 v{16+r}, v{ac+2*r}, v{ac+2*r+1}")
            I(f"ds_write_b128 v{T0}, v[16:19] offset:{tile*8192}")
            I(f"ds_write_b128 v{T0}, v[20:23] offset:{tile*8192+1024}")
        if cg == 0:
            q = AC; t1 = AC + 16
            phi_ops(I, list(range(q, q + 16)), tmp, "s48")
            for r in range(8): I(f"v_cvt_pk_bf16_f32 v{24+r}, v{q+2*r}, v{q+2*r+1}")
            I("s_lshl_b32 s53, s51, 11"); I("s_add_u32 s53, s53, s50")
            I(f"buffer_store_dwordx4 v[24:27], v{vL16}, s[16:19], s53 offen")
            I(f"buffer_store_dwordx4 v[28:31], v{vL16}, s[16:19], s53 offen offset:1024")
            phi_ops(I, list(range(t1, t1 + 16)), tmp, "s48")
            pack_to_lds(t1, 0)
        else:
            t2 = AC; t3 = AC + 16
            n_ = T0 + 1
            I(f"v_and_b32 v{n_}, 31, v{lane}")
            for r in range(16): I(f"v_mov_b32 v{32+r}, v{t2+r}")
            phi_ops(I, list(range(32, 48)), tmp, "s48")
            I(f"v_cmp_gt_u32 vcc, 4, v{n_}")
            for r in range(16): I(f"v_cndmask_b32 v{t2+r}, v{t2+r}, v{32+r}, vcc")
            pack_to_lds(t2, 1)
            for r in range(16): I(f"v_mov_b32 v{32+r}, v{t3+r}")
            phi_ops(I, list(range(32, 48)), tmp, "s48")
            I(f"v_cmp_eq_u32 vcc, 12, v{n_}")
            I(f"v_mov_b32 v{T0+2}, 1.0")
            for r in range(16): I(f"v_cndmask_b32 v{t3+r}, v{t3+r}, v{T0+2}, vcc")
            pack_to_lds(t3, 2)
            ad = T0 + 3
            I(f"v_subrev_u32 v{ad}, 8, v{n_}")
            I(f"v_lshlrev_b32 v{ad}, 1, v{ad}")
            I(f"v_lshrrev_b32 v{T0+4}, 5, v{lane}")
            I(f"v_lshl_add_u32 v{ad}, v{T0+4}, 6, v{ad}")
            I("s_lshr_b32 s53, s51, 1"); I("s_lshl_b32 s53, s53, 9"); I("s_and_b32 s54, s51, 1"); I("s_lshl_b32 s54, s54, 3")
            I("s_add_u32 s53, s53, s54"); I("s_add_u32 s53, s53, s50"); I("s_add_u32 s53, s53, 8192")
            for r in range(8): I(f"v_cvt_pk_bf16_f32 v{48+r}, v{32+2*r}, v{33+2*r}")
            I("s_mov_b32 exec_lo, 0xf00"); I("s_mov_b32 exec_hi, 0xf00")
            for r in range(16):
                off = (8 * (r >> 2) + (r & 3)) * 16
                if r & 1: I(f"buffer_store_short_d16_hi v{48 + (r >> 1)}, v{ad}, s[16:19], s53 offen offset:{off}")
                else: I(f"buffer_store_short v{48 + (r >> 1)}, v{ad}, s[16:19], s53 offen offset:{off}")
            I("s_mov_b64 exec, -1")
        if cg == 0: I(f"s_branch L{name}_join")
    A.label(f"L{name}_join")
    A.flush_hazards()
    I("s_waitcnt lgkmcnt(0)")
    I("s_barrier")
    I("s_cmp_ge_u32 s30, 4")
    I(f"s_cbranch_scc1 L{name}_nokv")
    I("s_lshr_b32 s52, s30, 1")
    I("s_and_b32 s53, s30, 1")
    I("s_lshl_b32 s54, s52, 13"); I(f"v_add_u32 v{T0}, s54, v{vL16}")
    I("s_add_u32 s54, s53, 1"); I("s_lshl_b32 s54, s54, 13"); I(f"v_add_u32 v{T0+1}, s54, v{vL16}")
    for k in range(8):
        I(f"ds_read_b128 v[{8*k}:{8*k+3}], v{T0} offset:{1024*k}", tag=("KA", k))
        I(f"ds_read_b128 v[{8*k+4}:{8*k+7}], v{T0+1} offset:{1024*k}", tag=("KA", k))
    for k in range(8):
        A.wait_lg(("KA", k))
        c = "0" if k == 0 else f"v[{AC}:{AC+15}]"
        I(f"v_mfma_f32_32x32x16_bf16 v[{AC}:{AC+15}], v[{8*k}:{8*k+3}], v[{8*k+4}:{8*k+7}], {c}")
    n_, hf, vc, o0, o1, t, big = 64, 65, 66, 67, 68, 69, 70
    I(f"v_and_b32 v{n_}, 31, v{lane}"); I(f"v_lshrrev_b32 v{hf}, 5, v{lane}")
    I(f"v_mov_b32 v{big}, 0x40000000")
    I("s_cmp_eq_u32 s53, 0"); I("s_cselect_b32 s54, -4, 28")
    I(f"v_add_u32 v{vc}, s54, v{n_}")
    I(f"v_lshlrev_b32 v{o0}, 2, v{vc}")
    I(f"v_cmp_gt_u32 vcc, 18, v{vc}")
    I(f"v_cndmask_b32 v{o0}, v{big}, v{o0}, vcc")
    I(f"v_subrev_u32 v{t}, 18, v{vc}")
    I(f"v_lshlrev_b32 v{o1}, 2, v{t}")
    I(f"v_cmp_gt_u32 vcc, 18, v{t}")
    I(f"v_cndmask_b32 v{o1}, v{big}, v{o1}, vcc")
    I(f"v_cmp_eq_u32 vcc, 40, v{vc}")
    I(f"v_mov_b32 v{t}, 72")
    I(f"v_cndmask_b32 v{o0}, v{o0}, v{t}, vcc")
    I(f"v_cndmask_b32 v{o1}, v{o1}, v{t}, vcc")
    I("s_lshl_b32 s54, s52, 5")
    I(f"v_lshl_add_u32 v{hf}, v{hf}, 2, s54")
    I("s_lshl_b32 s55, s33, 4"); I("s_add_u32 s55, s55, s32"); I("s_mul_i32 s55, s55, 2880"); I(f"s_add_u32 s55, s55, {KVP}")
    for r in range(16):
        kc, ad = 72 + 2 * (r & 3), 73 + 2 * (r & 3)
        I(f"v_add_u32 v{kc}, {8*(r >> 2) + (r & 3)}, v{hf}")
        I(f"v_cmp_gt_u32 vcc, 18, v{kc}")
        I(f"v_cndmask_b32 v{ad}, v{o1}, v{o0}, vcc")
        I(f"v_cmp_gt_u32 vcc, 36, v{kc}")
        I(f"v_cndmask_b32 v{ad}, v{big}, v{ad}, vcc")
        I(f"v_mad_u32_u24 v{ad}, v{kc}, 80, v{ad}") if False else None
        I(f"v_mul_u32_u24 v{kc}, 80, v{kc}")
        I(f"v_add_u32 v{ad}, v{ad}, v{kc}")
        I(f"buffer_store_dword v{AC+r}, v{ad}, s[16:19], s55 offen sc1")
    A.label(f"L{name}_nokv")
    I("s_waitcnt vmcnt(0)")
    I("s_barrier")
    I("s_cmp_lg_u32 s30, 0")
    I(f"s_cbranch_scc1 L{name}_noat")
    I("s_lshl_b32 s50, s33, 2")
    I(f"v_mov_b32 v{T0+4}, s50"); I(f"v_mov_b32 v{T0+5}, 1"); I(f"v_mov_b32 v{T0+6}, 0x8000")
    I("s_mov_b64 exec, 1")
    I(f"global_atomic_add v{T0+5}, v{T0+4}, v{T0+5}, s[20:21] sc0")
    I("s_waitcnt vmcnt(0)")
    I(f"ds_write_b32 v{T0+6}, v{T0+5}")
    I("s_waitcnt lgkmcnt(0)")
    I("s_mov_b64 exec, -1")
    A.label(f"L{name}_noat")
    I("s_barrier")
    I(f"v_mov_b32 v{T0+6}, 0x8000")
    I(f"ds_read_b32 v{T0+5}, v{T0+6}")
    I("s_waitcnt lgkmcnt(0)")
    I(f"v_readfirstlane_b32 s50, v{T0+5}")
    I("s_cmp_lg_u32 s50, 15")
    I(f"s_cbranch_scc1 L{name}_fin")
    I("s_cmp_ge_u32 s30, 3")
    I(f"s_cbranch_scc1 L{name}_nored")
    I("s_lshl_b32 s50, s30, 10")
    I(f"v_add_u32 v{T0}, s50, v{vL16}")
    I(f"s_mul_i32 s55, s33, {16*2880}"); I(f"s_add_u32 s55, s55, {KVP}")
    I(f"v_mov_b32 v{T0+1}, 0x40000000")
    I(f"v_cmp_gt_u32 vcc, 2880, v{T0}")
    I(f"v_cndmask_b32 v{T0+2}, v{T0+1}, v{T0}, vcc")
    for k in range(16):
        I(f"buffer_load_dwordx4 v[{4*k}:{4*k+3}], v{T0+2}, s[16:19], s55 offen sc1", tag=("P", k))
        I("s_add_u32 s55, s55, 2880")
    for k in range(1, 16):
        A.wait_vm(("P", k))
        for r in range(4): I(f"v_add_f32 v{r}, v{r}, v{4*k+r}")
    I(f"ds_write_b128 v{T0}, v[0:3] offset:{0x9000}")
    A.label(f"L{name}_nored")
    I("s_waitcnt lgkmcnt(0)")
    I("s_barrier")
    I("s_cmp_ge_u32 s30, 4")
    I(f"s_cbranch_scc1 L{name}_fin")
    I("s_lshr_b32 s52, s30, 1"); I("s_and_b32 s53, s30, 1"); I("s_add_u32 s54, s52, s53")
    m_, hf, r_, sl, t, u_, zc = 64, 65, 66, 67, 68, 69, 70
    I(f"v_and_b32 v{m_}, 31, v{lane}"); I(f"v_lshrrev_b32 v{hf}, 5, v{lane}")
    I(f"v_lshrrev_b32 v{r_}, 3, v{m_}"); I(f"v_and_b32 v{t}, 3, v{m_}"); I(f"v_lshl_add_u32 v{r_}, v{r_}, 2, v{t}")
    I(f"v_bfe_u32 v{t}, v{m_}, 2, 1")
    I(f"v_lshl_add_u32 v{sl}, v{t}, 3, v{r_}")
    I(f"v_add_u32 v{u_}, 16, v{t}")
    I(f"v_cmp_eq_u32 vcc, 8, v{r_}"); I(f"v_cndmask_b32 v{sl}, v{sl}, v{u_}, vcc")
    I(f"v_mov_b32 v{u_}, 18")
    I(f"v_cmp_eq_u32 vcc, 9, v{r_}"); I(f"v_cndmask_b32 v{sl}, v{sl}, v{u_}, vcc")
    I(f"v_cmp_gt_u32 s[56:57], 10, v{r_}")
    I(f"v_mov_b32 v{zc}, 2880")
    I("s_mul_i32 s58, s52, 18")
    I("s_and_b32 s51, s33, 3")
    for j in range(8):
        col, ad = 72 + 2*j, 73 + 2*j
        I("s_lshl_b32 s59, s54, 4"); I(f"s_add_u32 s59, s59, {8*(j >> 2) + (j & 3)}")
        I(f"v_lshl_add_u32 v{col}, v{hf}, 2, s59")
        I(f"v_lshl_add_u32 v{t}, v{hf}, 1, {j >> 2}")
        I(f"v_cmp_eq_u32 vcc, s51, v{t}")
        I(f"v_mov_b32 v{u_}, {32 + (j & 3)}"); I(f"v_mov_b32 v{t}, 100")
        I(f"v_cndmask_b32 v{u_}, v{t}, v{u_}, vcc")
        I("s_cmp_eq_u32 s54, 2"); I("s_cselect_b64 vcc, -1, 0")
        I(f"v_cndmask_b32 v{col}, v{col}, v{u_}, vcc")
        I(f"v_mul_u32_u24 v{ad}, 20, v{col}"); I(f"v_add_lshl_u32 v{ad}, v{ad}, v{sl}, 2")
        I(f"v_subrev_u32 v{t}, s58, v{col}")
        I(f"v_cmp_gt_u32 vcc, 18, v{t}")
        I("s_and_b64 vcc, vcc, s[56:57]")
        I(f"v_cndmask_b32 v{ad}, v{zc}, v{ad}, vcc")
        I(f"ds_read_b32 v{j}, v{ad} offset:{0x9000}")
    I("s_waitcnt lgkmcnt(0)")
    for r in range(4): I(f"v_cvt_pk_bf16_f32 v{8+r}, v{2*r}, v{2*r+1}")
    I("s_lshl_b32 s59, s33, 2"); I("s_add_u32 s59, s59, s30"); I("s_lshl_b32 s59, s59, 10"); I(f"s_add_u32 s59, s59, {KVZ}")
    I(f"buffer_store_dwordx4 v[8:11], v{vL16}, s[16:19], s59 offen")
    A.label(f"L{name}_fin")
    if prof:
        I("s_waitcnt vmcnt(0)")
        I(f"s_memtime s[76:77]"); I(f"s_memrealtime s[78:79]"); I("s_waitcnt lgkmcnt(0)")
        I("s_lshl_b32 s80, s2, 3"); I("s_add_u32 s80, s80, s30"); I("s_lshl_b32 s80, s80, 7"); I(f"s_add_u32 s80, s80, {200*MB}")
        for k in range(20): I(f"v_mov_b32 v{k}, s{60+k}")
        I("v_mov_b32 v20, 0")
        for k in range(5): I(f"buffer_store_dwordx4 v[{4*k}:{4*k+3}], v20, s[16:19], s80 offen offset:{16*k}")
    A.label(f"L{name}_end")
    I("s_endpgm")
    launch = f"; @launch kernel={name} grid=(256,1,1) block=(512,1,1) lds={LDS_BYTES}"
    return launch, A.text(), kernel_desc(name, 240)
```

```python
from asmlib import *
from layout import *

def gen_k2(name="k2_kernel", prof=False):
    A = Asm(); I = A.i
    LDS_BYTES = 147456
    PQ = 0
    KZ = 36
    DD = 100
    OF = 132
    AC = 168
    WB = 36
    vM = [[216, 217, 218], [219, 220, 221]]
    vLf = [222, 223, 224]
    vL16 = 225; lane = 226
    XR = 228
    T0 = 234
    A.raw(kernel_header(name))
    def stamp(i):
        if prof:
            I(f"s_memtime s[{60+4*i}:{61+4*i}]"); I(f"s_memrealtime s[{62+4*i}:{63+4*i}]"); I("s_waitcnt lgkmcnt(0)")
    I("s_cmp_ge_u32 s2, 336")
    I(f"s_cbranch_scc1 L{name}_end")
    stamp(0)
    I("s_load_dwordx2 s[4:5], s[0:1], 0")
    I("s_load_dwordx2 s[6:7], s[0:1], 16")
    I("s_load_dwordx4 s[24:27], s[0:1], 32")
    I("s_load_dwordx2 s[22:23], s[0:1], 72")
    I(f"v_lshrrev_b32 v{T0}, 6, v0")
    I(f"v_readfirstlane_b32 s30, v{T0}")
    I(f"v_and_b32 v{lane}, 63, v0")
    I(f"v_lshlrev_b32 v{vL16}, 4, v{lane}")
    I("s_waitcnt lgkmcnt(0)")
    I("s_mov_b32 s16, s22"); I("s_mov_b32 s17, s23"); I(f"s_mov_b32 s18, {WS_BYTES}"); I("s_mov_b32 s19, 0x20000")
    I("s_cmp_ge_u32 s2, 192")
    I(f"s_cbranch_scc1 L{name}_cs")
    I("s_mov_b32 s8, s4"); I("s_mov_b32 s9, s5"); I(f"s_mov_b32 s10, {S*D*2}"); I("s_mov_b32 s11, 0x20000")
    I("s_mov_b32 s12, s6"); I("s_mov_b32 s13, s7"); I(f"s_mov_b32 s14, {D*D*2}"); I("s_mov_b32 s15, 0x20000")
    I("s_mul_hi_u32 s32, s2, 0x2AAAAAAB")
    I("s_mul_i32 s33, s32, 6"); I("s_sub_u32 s33, s2, s33")
    I("s_and_b32 s41, s30, 1")
    I("s_lshr_b32 s39, s30, 1")
    I("s_lshl_b32 s35, s32, 1"); I("s_add_u32 s35, s35, s41")
    I("s_lshl_b32 s40, s35, 2"); I("s_add_u32 s40, s40, s39"); I("s_mul_i32 s40, s40, 9216"); I(f"s_add_u32 s40, s40, {PQF}")
    for k in range(9):
        if k in (4, 8): I("s_add_u32 s40, s40, 4096")
        I(f"buffer_load_dwordx4 v[{PQ+4*k}:{PQ+4*k+3}], v{vL16}, s[16:19], s40 offen offset:{1024*(k % 4)}", tag=("PQ", k))
    I("s_lshl_b32 s40, s39, 14"); I(f"s_add_u32 s40, s40, {KVZ}")
    for k in range(16):
        if k and k % 4 == 0: I("s_add_u32 s40, s40, 4096")
        I(f"buffer_load_dwordx4 v[{KZ+4*k}:{KZ+4*k+3}], v{vL16}, s[16:19], s40 offen offset:{1024*(k % 4)}", tag=("KZ", k))
    r_, p_, t = T0, T0+1, T0+2
    vW = T0 + 3
    I(f"v_lshrrev_b32 v{r_}, 4, v{lane}")
    I(f"v_bfe_u32 v{p_}, v{lane}, 2, 2")
    I(f"v_xor_b32 v{p_}, v{p_}, v{r_}")
    I(f"v_and_b32 v{t}, 3, v{lane}")
    I(f"v_lshl_add_u32 v{p_}, v{p_}, 2, v{t}")
    I(f"v_mul_u32_u24 v{r_}, 1152, v{r_}")
    I(f"v_lshl_add_u32 v{vW}, v{p_}, 4, v{r_}")
    I("s_mul_i32 s42, s33, 192"); I("s_and_b32 s43, s42, 0xffffff80"); I("s_sub_u32 s42, s42, s43")
    I(f"s_mul_i32 s44, s30, {4*1152}"); I("s_add_u32 s44, s44, s43")
    I("s_lshl_b32 s45, s30, 10")
    for x in range(18):
        I(f"s_add_u32 m0, s45, {8192*x}")
        I(f"buffer_load_dwordx4 v{vW}, s[12:15], s44 offen lds", tag="W")
        I(f"s_add_u32 s44, s44, {32*1152}")
    I(f"v_and_b32 v{T0}, 31, v{lane}"); I(f"v_mul_u32_u24 v{T0}, 1152, v{T0}")
    I(f"v_lshrrev_b32 v{T0+1}, 5, v{lane}"); I(f"v_lshl_add_u32 v{T0}, v{T0+1}, 3, v{T0}")
    I(f"s_mul_i32 s46, s35, {32*1152}"); I("s_mul_i32 s47, s33, 192"); I("s_add_u32 s46, s46, s47"); I("s_mul_i32 s47, s39, 48"); I("s_add_u32 s46, s46, s47")
    for k in range(3):
        I(f"buffer_load_dwordx2 v[{XR+2*k}:{XR+2*k+1}], v{T0}, s[8:11], s46 offen offset:{16*k}", tag="XR")
    hf, grp, r_, c4, base, t = T0, T0+1, T0+2, T0+4, T0+5, T0+6
    I(f"v_lshrrev_b32 v{hf}, 5, v{lane}"); I(f"v_bfe_u32 v{grp}, v{lane}, 4, 1"); I(f"v_bfe_u32 v{r_}, v{lane}, 2, 2"); I(f"v_and_b32 v{c4}, 3, v{lane}")
    I(f"v_lshlrev_b32 v{base}, 5, v{grp}"); I(f"v_lshl_add_u32 v{base}, v{c4}, 3, v{base}")
    I(f"s_mul_i32 s46, s39, {144*256}"); I(f"v_add_u32 v{base}, s46, v{base}")
    I("s_lshr_b32 s42, s42, 6")
    for par in range(2):
        for c in range(3):
            I(f"v_add_u32 v{t}, {2*par}, v{r_}"); I(f"v_and_b32 v{t}, 3, v{t}")
            I(f"s_add_u32 s47, s42, {c}")
            I(f"v_xor_b32 v{t}, s47, v{t}")
            I(f"v_lshl_add_u32 v{vM[par][c]}, v{t}, 6, v{base}")
            I(f"v_lshl_add_u32 v{t}, v{hf}, 3, v{r_}")
            I(f"v_lshl_add_u32 v{vM[par][c]}, v{t}, 8, v{vM[par][c]}")
    for c in range(3):
        I(f"v_lshl_add_u32 v{t}, v{r_}, 1, v{hf}"); I(f"v_and_b32 v{t}, 3, v{t}")
        I(f"s_add_u32 s47, s42, {c}")
        I(f"v_xor_b32 v{t}, s47, v{t}")
        I(f"v_lshl_add_u32 v{vLf[c]}, v{t}, 6, v{base}")
        I(f"v_mul_u32_u24 v{t}, 18, v{r_}"); I(f"v_add3_u32 v{t}, v{t}, v{hf}, 16")
        I(f"v_lshl_add_u32 v{vLf[c]}, v{t}, 8, v{vLf[c]}")
    for k in range(48): I(f"v_mov_b32 v{AC+k}, 0")
    stamp(1)
    LO = T0 + 8
    for hd in range(8):
        p = hd >> 1; hh = hd & 1
        d = DD + 16 * (hd & 1)
        b0 = 2 * p + hh; b1 = (2 * p + 1) if hh == 0 else 8
        A.wait_vm(("KZ", 2 * hd + 1))
        I(f"v_mfma_f32_32x32x16_bf16 v[{d}:{d+15}], v[{KZ+8*hd}:{KZ+8*hd+3}], v[{PQ+4*b0}:{PQ+4*b0+3}], 0")
        I(f"v_mfma_f32_32x32x16_bf16 v[{d}:{d+15}], v[{KZ+8*hd+4}:{KZ+8*hd+7}], v[{PQ+4*b1}:{PQ+4*b1+3}], v[{d}:{d+15}]")
        if hd >= 1:
            dp = DD + 16 * ((hd - 1) & 1); hp = hd - 1
            I(f"v_add_f32 v{dp+9}, 0x358637bd, v{dp+9}")
            I(f"v_rcp_f32 v{dp+9}, v{dp+9}")
            for r in range(8): I(f"v_mul_f32 v{dp+r}, v{dp+r}, v{dp+9}")
            I(f"v_mul_f32 v{LO+hp}, v{dp+8}, v{dp+9}")
            for r in range(4): I(f"v_cvt_pk_bf16_f32 v{OF+4*hp+r}, v{dp+2*r}, v{dp+2*r+1}")
    dp = DD + 16; hp = 7
    I(f"v_add_f32 v{dp+9}, 0x358637bd, v{dp+9}")
    I(f"v_rcp_f32 v{dp+9}, v{dp+9}")
    for r in range(8): I(f"v_mul_f32 v{dp+r}, v{dp+r}, v{dp+9}")
    I(f"v_mul_f32 v{LO+hp}, v{dp+8}, v{dp+9}")
    for r in range(4): I(f"v_cvt_pk_bf16_f32 v{OF+4*hp+r}, v{dp+2*r}, v{dp+2*r+1}")
    for r in range(4): I(f"v_cvt_pk_bf16_f32 v{OF+32+r}, v{LO+2*r}, v{LO+2*r+1}")
    A.wait_vm("W")
    I("s_barrier")
    stamp(2)
    NB = 8; PD = 5
    def rd(fi):
        ks = fi // 3; c = fi % 3
        b = WB + 4 * (fi % NB)
        for x in range(2):
            if ks < 8: I(f"ds_read_b64_tr_b16 v[{b+2*x}:{b+2*x+1}], v{vM[ks & 1][c]} offset:{ks*18*256 + x*1024}", tag=("F", fi))
            else: I(f"ds_read_b64_tr_b16 v[{b+2*x}:{b+2*x+1}], v{vLf[c]} offset:{x*72*256}", tag=("F", fi))
    for fi in range(PD): rd(fi)
    for fi in range(27):
        ks = fi // 3; c = fi % 3
        b = WB + 4 * (fi % NB)
        A.wait_lg(("F", fi))
        I(f"v_mfma_f32_32x32x16_bf16 v[{AC+16*c}:{AC+16*c+15}], v[{b}:{b+3}], v[{OF+4*ks}:{OF+4*ks+3}], v[{AC+16*c}:{AC+16*c+15}]")
        if fi + PD < 27: rd(fi + PD)
    I("s_barrier")
    I("s_lshl_b32 s46, s41, 2"); I("s_add_u32 s46, s46, s39"); I("s_mul_i32 s46, s46, 12288")
    I(f"v_add_u32 v{T0}, s46, v{vL16}")
    for a in range(12): I(f"ds_write_b128 v{T0}, v[{AC+4*a}:{AC+4*a+3}] offset:{1024*a}")
    I("s_waitcnt lgkmcnt(0)")
    I("s_barrier")
    I("s_mul_i32 s46, s41, 49152"); I("s_mul_i32 s47, s39, 3072"); I("s_add_u32 s46, s46, s47")
    I(f"v_add_u32 v{T0}, s46, v{vL16}")
    for g in range(4):
        for k in range(3):
            I(f"ds_read_b128 v[{48*0 + 12*g + 4*k}:{12*g + 4*k + 3}], v{T0} offset:{12288*g + 1024*k}", tag=("R", g))
    I("s_waitcnt lgkmcnt(0)")
    for g in range(1, 4):
        for r in range(12): I(f"v_add_f32 v{r}, v{r}, v{12*g+r}")
    A.wait_vm("XR")
    for k in range(3):
        for dw in range(2):
            xr = XR + 2 * k + dw
            I(f"v_lshlrev_b32 v{T0+1}, 16, v{xr}"); I(f"v_and_b32 v{T0+2}, 0xffff0000, v{xr}")
            I(f"v_add_f32 v{4*k+2*dw}, v{4*k+2*dw}, v{T0+1}"); I(f"v_add_f32 v{4*k+2*dw+1}, v{4*k+2*dw+1}, v{T0+2}")
            I(f"v_cvt_pk_bf16_f32 v{16+2*k+dw}, v{4*k+2*dw}, v{4*k+2*dw+1}")
    I(f"v_mov_b32 v24, 0"); I(f"v_mov_b32 v25, 0"); I("s_mov_b32 s47, 0x3f803f80")
    for k in range(6):
        I(f"v_dot2_f32_bf16 v24, v{16+k}, s47, v24"); I(f"v_dot2_f32_bf16 v25, v{16+k}, v{16+k}, v25")
    I("s_nop 4")
    s4, l16 = T0 + 1, T0 + 2
    I(f"v_bfe_u32 v{s4}, v{lane}, 4, 1")
    I(f"v_lshrrev_b32 v{l16}, 5, v{lane}"); I(f"v_and_b32 v{T0+3}, 15, v{lane}"); I(f"v_lshl_add_u32 v{l16}, v{l16}, 4, v{T0+3}")
    I(f"v_mul_u32_u24 v{T0+3}, 18432, v{s4}")
    I(f"v_lshl_add_u32 v{T0+4}, v{l16}, 4, v{T0+3}")
    I(f"v_lshl_add_u32 v{T0+5}, v{l16}, 3, v{T0+3}")
    I(f"s_mul_i32 s48, s35, {2*18432}")
    for k in range(3):
        I(f"s_mul_i32 s49, s39, 3"); I(f"s_add_u32 s49, s49, {k}")
        I("s_lshr_b32 s50, s49, 1"); I("s_mul_i32 s51, s33, 6"); I("s_add_u32 s50, s50, s51")
        I("s_and_b32 s49, s49, 1")
        I("s_lshr_b32 s51, s50, 1"); I("s_lshl_b32 s51, s51, 10"); I("s_lshl_b32 s52, s49, 9"); I("s_add_u32 s51, s51, s52")
        I("s_and_b32 s52, s50, 1"); I("s_lshl_b32 s52, s52, 3"); I("s_add_u32 s51, s51, s52"); I("s_add_u32 s51, s51, s48"); I(f"s_add_u32 s51, s51, {HF}")
        I(f"buffer_store_dwordx2 v[{16+2*k}:{17+2*k}], v{T0+4}, s[16:19], s51 offen")
        I("s_lshl_b32 s51, s50, 9"); I("s_lshl_b32 s52, s49, 8"); I("s_add_u32 s51, s51, s52"); I("s_add_u32 s51, s51, s48"); I(f"s_add_u32 s51, s51, {H4}")
        I(f"buffer_store_dwordx2 v[{16+2*k}:{17+2*k}], v{T0+5}, s[16:19], s51 offen")
    I("s_barrier")
    I("s_lshl_b32 s46, s41, 2"); I("s_add_u32 s46, s46, s39"); I("s_lshl_b32 s46, s46, 9"); I("s_add_u32 s46, s46, 0x18000")
    I(f"v_lshl_add_u32 v{T0}, v{lane}, 3, s46")
    I(f"ds_write_b64 v{T0}, v[24:25]")
    I("s_waitcnt lgkmcnt(0)")
    I("s_barrier")
    I("s_cmp_lg_u32 s39, 0")
    I(f"s_cbranch_scc1 L{name}_fin")
    I(f"v_and_b32 v{T0+1}, 31, v{lane}")
    I("s_lshl_b32 s46, s41, 11"); I("s_add_u32 s46, s46, 0x18000")
    I(f"v_lshl_add_u32 v{T0}, v{T0+1}, 3, s46")
    for k in range(8): I(f"ds_read_b64 v[{2*k}:{2*k+1}], v{T0} offset:{256*k}")
    I("s_waitcnt lgkmcnt(0)")
    for k in range(1, 8):
        I(f"v_add_f32 v0, v0, v{2*k}"); I(f"v_add_f32 v1, v1, v{2*k+1}")
    I(f"v_mul_u32_u24 v{T0+1}, 48, v{T0+1}")
    I(f"s_mul_i32 s46, s35, {32*48}"); I("s_lshl_b32 s47, s33, 3"); I("s_add_u32 s46, s46, s47"); I(f"s_add_u32 s46, s46, {ST}")
    I("s_mov_b32 exec_hi, 0")
    I(f"buffer_store_dwordx2 v[0:1], v{T0+1}, s[16:19], s46 offen")
    I("s_mov_b64 exec, -1")
    I(f"s_branch L{name}_fin")
    A.label(f"L{name}_cs")
    A.hist = []
    I("s_sub_u32 s32, s2, 192")
    I("s_cmp_ge_u32 s32, 72")
    I("s_cselect_b32 s8, s26, s24"); I("s_cselect_b32 s9, s27, s25"); I("s_cselect_b32 s33, 72, 0")
    I(f"s_mov_b32 s10, {D*F*2}"); I("s_mov_b32 s11, 0x20000")
    I("s_sub_u32 s34, s32, s33")
    I(f"v_lshrrev_b32 v{T0}, 3, v{lane}"); I(f"v_mul_u32_u24 v{T0}, 9216, v{T0}")
    I(f"v_and_b32 v{T0+1}, 7, v{lane}"); I(f"v_lshl_add_u32 v{T0}, v{T0+1}, 4, v{T0}")
    I(f"s_mul_i32 s40, s30, {8*9216}"); I("s_lshl_b32 s41, s34, 7"); I("s_add_u32 s40, s40, s41")
    for it in range(9):
        I(f"buffer_load_dwordx4 v[{4*it}:{4*it+3}], v{T0}, s[8:11], s40 offen", tag=("C", it))
        I(f"s_add_u32 s40, s40, {64*9216}")
    for k in range(8): I(f"v_mov_b32 v{40+k}, 0")
    for it in range(9):
        A.wait_vm(("C", it))
        for dw in range(4):
            I(f"v_lshlrev_b32 v{50}, 16, v{4*it+dw}"); I(f"v_and_b32 v{51}, 0xffff0000, v{4*it+dw}")
            I(f"v_add_f32 v{40+2*dw}, v{40+2*dw}, v50"); I(f"v_add_f32 v{41+2*dw}, v{41+2*dw}, v51")
    I("s_lshl_b32 s40, s30, 11")
    I(f"v_lshl_add_u32 v{T0}, v{lane}, 5, s40")
    I(f"ds_write_b128 v{T0}, v[40:43]"); I(f"ds_write_b128 v{T0}, v[44:47] offset:16")
    I("s_waitcnt lgkmcnt(0)")
    I("s_barrier")
    I("s_cmp_lg_u32 s30, 0")
    I(f"s_cbranch_scc1 L{name}_fin")
    I(f"v_lshlrev_b32 v{T0}, 2, v{lane}")
    for k in range(64): I(f"ds_read_b32 v{k}, v{T0} offset:{256*k}")
    I("s_waitcnt lgkmcnt(0)")
    for st in (32, 16, 8, 4, 2, 1):
        for k in range(st): I(f"v_add_f32 v{k}, v{k}, v{k+st}")
    I("s_lshl_b32 s40, s32, 8"); I(f"s_add_u32 s40, s40, {CS}")
    I(f"buffer_store_dword v0, v{T0}, s[16:19], s40 offen")
    A.label(f"L{name}_fin")
    if prof:
        I("s_waitcnt vmcnt(0)")
        stamp(3)
        I("s_lshl_b32 s80, s2, 3"); I("s_add_u32 s80, s80, s30"); I("s_lshl_b32 s80, s80, 6"); I(f"s_add_u32 s80, s80, {200*MB}")
        for k in range(16): I(f"v_mov_b32 v{k}, s{60+k}")
        I("v_mov_b32 v16, 0")
        for k in range(4): I(f"buffer_store_dwordx4 v[{4*k}:{4*k+3}], v16, s[16:19], s80 offen offset:{16*k}")
    A.label(f"L{name}_end")
    I("s_endpgm")
    launch = f"; @launch kernel={name} grid=(336,1,1) block=(512,1,1) lds={LDS_BYTES}"
    return launch, A.text(), kernel_desc(name, 252)
```

```python
from asmlib import *
from layout import *

def gen_k3c(name="k3_kernel", prof=False, exp=""):
    A = Asm(); I = A.i
    SLOT = 24576; UOFF = 12288; NSLOT = 6
    LCS = SLOT * NSLOT
    LDS_BYTES = LCS + 1152
    PD = 3; NB = 6
    HB = 160
    WB = 208
    vA = [[232, 233, 234, 235], [236, 237, 238, 239]]
    vD = [240, 241, 242]
    vL16 = 243
    vR = 244
    T0 = 252
    A.raw(kernel_header(name))
    def stamp(i):
        if prof:
            I(f"s_memtime s[{60+4*i}:{61+4*i}]"); I(f"s_memrealtime s[{62+4*i}:{63+4*i}]"); I("s_waitcnt lgkmcnt(0)")
    I("s_cmp_ge_u32 s2, 256")
    I(f"s_cbranch_scc1 L{name}_end")
    stamp(0)
    I("s_load_dwordx4 s[4:7], s[0:1], 32")
    I("s_load_dwordx2 s[24:25], s[0:1], 72")
    lane = 100
    I(f"v_lshrrev_b32 v{101}, 6, v0")
    I(f"v_readfirstlane_b32 s30, v{101}")
    I(f"v_and_b32 v{lane}, 63, v0")
    I("s_and_b32 s31, s2, 7"); I("s_lshr_b32 s32, s2, 3"); I("s_and_b32 s33, s32, 7"); I("s_lshr_b32 s32, s32, 3")
    I("s_lshl_b32 s34, s31, 2"); I("s_add_u32 s34, s34, s32")
    I("s_and_b32 s41, s30, 3")
    I("s_lshl_b32 s35, s33, 4"); I("s_lshl_b32 s36, s41, 2"); I("s_add_u32 s35, s35, s36")
    I(f"v_lshlrev_b32 v{vL16}, 4, v{lane}")
    I("s_mov_b32 s36, 0xAAAB")
    for x in range(3):
        q, rw, p, t = 102, 103, 104, 105
        I(f"v_add_u32 v{q}, {64*x}, v{lane}")
        I(f"v_mul_lo_u32 v{rw}, v{q}, s36")
        I(f"v_lshrrev_b32 v{rw}, 20, v{rw}")
        I(f"v_mul_u32_u24 v{t}, 24, v{rw}")
        I(f"v_sub_u32 v{p}, v{q}, v{t}")
        I(f"v_and_b32 v{t}, 6, v{rw}")
        I(f"v_xor_b32 v{p}, v{p}, v{t}")
        I(f"v_mul_u32_u24 v{t}, 9216, v{rw}")
        I(f"v_lshl_add_u32 v{vD[x]}, v{p}, 4, v{t}")
    rowv, f, c4, t = 102, 103, 104, 105
    I(f"v_lshrrev_b32 v{rowv}, 2, v{lane}")
    I(f"v_bfe_u32 v{f}, v{lane}, 3, 2")
    I(f"v_and_b32 v{c4}, 3, v{lane}")
    I(f"v_mul_u32_u24 v{rowv}, 384, v{rowv}")
    I(f"v_lshl_add_u32 v{rowv}, v{c4}, 3, v{rowv}")
    I("s_and_b32 s37, s34, 3")
    for m in range(4):
        I(f"s_add_u32 s38, s37, {m}")
        I(f"v_xor_b32 v{t}, s38, v{f}")
        I(f"v_lshl_add_u32 v{vA[0][m]}, v{t}, 5, v{rowv}")
    I("s_waitcnt lgkmcnt(0)")
    I("s_cmp_lt_u32 s30, 4")
    I("s_cselect_b32 s8, s4, s6"); I("s_cselect_b32 s9, s5, s7")
    I(f"s_mov_b32 s10, {D*F*2}"); I("s_mov_b32 s11, 0x20000")
    I("s_mov_b32 s16, s24"); I("s_mov_b32 s17, s25"); I(f"s_mov_b32 s18, {WS_BYTES}"); I("s_mov_b32 s19, 0x20000")
    I("s_mul_i32 s40, s34, 288"); I("s_and_b32 s40, s40, 0xffffff80")
    I(f"s_mul_i32 s42, s41, {8*9216}"); I("s_add_u32 s40, s40, s42")
    I("s_mul_i32 s43, s41, 3072")
    I("s_cmp_lt_u32 s30, 4"); I(f"s_cselect_b32 s44, 0, {UOFF}"); I("s_add_u32 s43, s43, s44")
    def dma_piece(u, x):
        I(f"s_add_u32 m0, s43, {1024*x + (u % NSLOT)*SLOT}")
        I(f"buffer_load_dwordx4 v{vD[x]}, s[8:11], s40 offen lds", tag=("W", u))
        if x == 2:
            I(f"s_add_u32 s40, s40, {32*9216}")
    def hload(t, i):
        b = HB + 16 * (t % 3) + 4 * i
        I(f"buffer_load_dwordx4 v[{b}:{b+3}], v{vL16}, s[16:19], s{52+i} offen", tag=("H", t, i))
        I(f"s_add_u32 s{52+i}, s{52+i}, 1024")
    for i in range(4):
        I(f"s_add_u32 s{52+i}, s35, {i}")
        I(f"s_mul_i32 s{52+i}, s{52+i}, {18*1024}")
        I(f"s_add_u32 s{52+i}, s{52+i}, {HF}")
    for t in range(-5, 0):
        for x in range(3): dma_piece(t + 5, x)
        if t + 3 >= 0:
            for i in range(4): hload(t + 3, i)
        if t == -5:
            I(f"v_and_b32 v102, 15, v{lane}")
            I("s_lshl_b32 s47, s35, 4")
            I(f"v_add_u32 v102, s47, v102")
            I(f"v_mul_u32_u24 v102, 48, v102")
            I(f"s_mov_b32 s47, {ST}")
            for i in range(4):
                for x in range(3):
                    I(f"buffer_load_dwordx4 v[{12*i+4*x}:{12*i+4*x+3}], v102, s[16:19], s47 offen offset:{16*x + 768*i}", tag="ST")
            I("s_cmp_lg_u32 s41, 0")
            I(f"s_cbranch_scc1 L{name}_nocs")
            I("s_mul_i32 s47, s34, 576")
            I("s_lshr_b32 s46, s30, 2")
            I(f"s_mul_i32 s48, s46, {4608*4}")
            I("s_add_u32 s47, s47, s48")
            I(f"s_add_u32 s47, s47, {CS}")
            I("s_mul_i32 s46, s46, 576")
            I(f"s_add_u32 m0, s46, {LCS}")
            I("s_mov_b32 exec_hi, 0xf")
            A.raw(f"    buffer_load_dwordx4 v{vL16}, s[16:19], s47 offen lds")
            I("s_mov_b64 exec, -1")
            A.label(f"L{name}_nocs")
    A.wait_vm("ST")
    I(f"s_mov_b32 s49, 0x3AE38E39")
    for i in range(4):
        s0 = 12 * i; m_, e_ = 102, 103
        I(f"v_add_f32 v{m_}, v{s0}, v{s0+2}"); I(f"v_add_f32 v{e_}, v{s0+1}, v{s0+3}")
        for x in range(2, 6):
            I(f"v_add_f32 v{m_}, v{m_}, v{s0+2*x}"); I(f"v_add_f32 v{e_}, v{e_}, v{s0+2*x+1}")
        I(f"v_mul_f32 v{m_}, s49, v{m_}"); I(f"v_mul_f32 v{e_}, s49, v{e_}")
        I(f"v_fma_f32 v{e_}, -v{m_}, v{m_}, v{e_}")
        I(f"v_max_f32 v{e_}, 0, v{e_}")
        I(f"v_add_f32 v{e_}, 0x3727c5ac, v{e_}")
        I(f"v_rsq_f32 v{vR+2*i}, v{e_}")
        I(f"v_mul_f32 v{vR+2*i+1}, v{m_}, v{vR+2*i}")
        I(f"v_sub_f32 v{vR+2*i+1}, 0, v{vR+2*i+1}")
    for k in range(160): I(f"v_mov_b32 v{k}, 0")
    A.wait_vm(("W", 0))
    I("s_barrier")
    I(f"s_mov_b32 s50, 1")
    I("s_cmp_ge_u32 s30, 4")
    I(f"s_cbranch_scc1 L{name}_half1")
    BODY = 6
    saved = (list(A.vmq), A.vmdone, list(A.lgq), A.lgdone)
    for ch in range(2):
        if ch == 1:
            A.label(f"L{name}_half1")
            A.vmq, A.vmdone, A.lgq, A.lgdone = list(saved[0]), saved[1], list(saved[2]), saved[3]
            A.hist = []
        c0 = 0 if ch == 0 else 5
        nc = 5 if ch == 0 else 4
        NF = 2 * nc
        def acc(i, c, mat):
            k = (i * NF + (c - c0) * 2 + mat) * 4
            return f"v[{k}:{k+3}]"
        def rd(fi):
            f_ = fi % (NF * BODY)
            tt = f_ // NF; c = c0 + (f_ % NF) // 2; mat = f_ & 1
            b = WB + 4 * (fi % NB)
            for x in range(2):
                I(f"ds_read_b64_tr_b16 v[{b+2*x}:{b+2*x+1}], v{vA[tt & 1][c & 3]} offset:{128*(c >> 2) + x*6144 + mat*UOFF}", tag=("F", fi))
        for fi in range(PD): rd(fi)
        stamp(1)
        if prof:
            for fi in range(PD): A.lgq += [("F", fi)] * 2
        I("s_mov_b32 s51, 0")
        A.flush_hazards()
        A.label(f"L{name}_loop{ch}")
        mid = NF // 2 - 1
        for tt in range(BODY):
            if tt == 3:
                I(f"s_cmp_eq_u32 s51, {18 // BODY - 1}")
                for i in range(4): I(f"s_cselect_b32 s{52+i}, 0x80000000, s{52+i}")
            for fr in range(NF):
                fi = tt * NF + fr; c = c0 + fr // 2; mat = fr & 1
                b = WB + 4 * (fi % NB)
                A.wait_lg(("F", fi), force=True)
                for i in range(4):
                    hb = HB + 16 * (tt % 3) + 4 * i
                    if fr == 0: A.wait_vm(("H", tt, i), force=True)
                    I(f"v_mfma_f32_16x16x32_bf16 {acc(i,c,mat)}, v[{b}:{b+3}], v[{hb}:{hb+3}], {acc(i,c,mat)}")
                    if i == 0: rd(fi + PD)
                if fr == mid:
                    A.wait_vm(("W", tt + 1), force=True)
                    I("s_barrier")
                    dl = SLOT if tt < NSLOT - 1 else -(NSLOT - 1) * SLOT
                    for m in range(4): I(f"v_add_u32 v{vA[(tt+1) & 1][m]}, {dl}, v{vA[tt & 1][m]}")
                if mid < fr <= mid + 3:
                    dma_piece(tt + 5, fr - mid - 1)
                if fr == NF - 1:
                    for i in range(4): hload(tt + 3, i)
        I("s_add_u32 s51, s51, 1")
        I(f"s_cmp_lt_u32 s51, {18 // BODY}")
        I(f"s_cbranch_scc1 L{name}_loop{ch}")
        I("s_waitcnt vmcnt(0) lgkmcnt(0)")
        stamp(2)
        I("s_mov_b32 s49, 0xbfb8aa3b")
        I("s_mul_i32 s56, s34, 9")
        vcs = T0
        I(f"v_lshrrev_b32 v{vcs}, 8, v{vL16}")
        I(f"v_lshlrev_b32 v{vcs}, 4, v{vcs}")
        I(f"v_add_u32 v{vcs}, {LCS}, v{vcs}")
        CSR = HB
        E = HB + 16
        for i in range(4):
            I(f"s_add_u32 s{52+i}, s35, {i}")
            I(f"s_mul_i32 s{52+i}, s{52+i}, 147456")
            I(f"s_add_u32 s{52+i}, s{52+i}, {ACT}")
        n = 0
        def csload(c):
            cb = CSR + 8 * (c & 1)
            I(f"ds_read_b128 v[{cb}:{cb+3}], v{vcs} offset:{64*c}", tag=("CS", c))
            I(f"ds_read_b128 v[{cb+4}:{cb+7}], v{vcs} offset:{576 + 64*c}", tag=("CS", c))
        csload(c0)
        for c in range(c0, c0 + nc):
            if c + 1 < c0 + nc: csload(c + 1)
            A.wait_lg(("CS", c))
            cb = CSR + 8 * (c & 1)
            I(f"s_add_u32 s58, s56, {c}")
            I("s_lshr_b32 s59, s58, 1"); I("s_lshl_b32 s59, s59, 10")
            I("s_and_b32 s58, s58, 1"); I("s_lshl_b32 s58, s58, 3")
            I("s_add_u32 s59, s59, s58")
            for i in range(4):
                e = E + 14 * (n % 4); n += 1
                k = (i * NF + (c - c0) * 2) * 4
                g = k; u = k + 4
                ra, rb = vR + 2 * i, vR + 2 * i + 1
                for r in range(8): I(f"v_mul_f32 v{e+r}, v{rb}, v{cb+r}")
                for r in range(8): I(f"v_fma_f32 v{k+r}, v{k+r}, v{ra}, v{e+r}")
                for r in range(4): I(f"v_mul_f32 v{e+r}, s49, v{g+r}")
                for r in range(4): I(f"v_exp_f32 v{e+r}, v{e+r}")
                for r in range(4): I(f"v_mul_f32 v{e+4+r}, v{g+r}, v{u+r}")
                for r in range(4): I(f"v_add_f32 v{e+r}, 1.0, v{e+r}")
                for r in range(4): I(f"v_rcp_f32 v{e+r}, v{e+r}")
                I(f"s_add_u32 s57, s59, s{52+i}")
                for r in range(4): I(f"v_mul_f32 v{e+4+r}, v{e+4+r}, v{e+r}")
                for r in range(2): I(f"v_cvt_pk_bf16_f32 v{e+8+r}, v{e+4+2*r}, v{e+5+2*r}")
                I(f"buffer_store_dwordx2 v[{e+8}:{e+9}], v{vL16}, s[16:19], s57 offen")
        if prof:
            I("s_waitcnt vmcnt(0)")
            stamp(3)
            I("s_lshl_b32 s80, s2, 3"); I("s_add_u32 s80, s80, s30"); I("s_lshl_b32 s80, s80, 6"); I(f"s_add_u32 s80, s80, {200*MB}")
            for k in range(16): I(f"v_mov_b32 v{k}, s{60+k}")
            I("v_mov_b32 v16, 0")
            for k in range(4): I(f"buffer_store_dwordx4 v[{4*k}:{4*k+3}], v16, s[16:19], s80 offen offset:{16*k}")
        if ch == 0: I("s_endpgm")
    A.label(f"L{name}_end")
    I("s_endpgm")
    launch = f"; @launch kernel={name} grid=(256,1,1) block=(512,1,1) lds={LDS_BYTES}"
    return launch, A.text(), kernel_desc(name, 256)
```

```python
from asmlib import *
from layout import *

def gen_k4(name="k4_kernel", prof=False, exp=""):
    A = Asm(); I = A.i
    SLOT = 24576; UOFF = 12288; NSLOT = 6
    LDS_BYTES = SLOT * NSLOT
    PD = 4; NB = 6
    HD = 6
    AB = 72
    WB = 120
    vA = [[144, 145, 146, 147], [148, 149, 150, 151]]
    vD = [152, 153, 154]
    vL16 = 207
    T0 = 208
    A.raw(kernel_header(name))
    def stamp(i):
        if prof:
            I(f"s_memtime s[{60+4*i}:{61+4*i}]"); I(f"s_memrealtime s[{62+4*i}:{63+4*i}]"); I("s_waitcnt lgkmcnt(0)")
    I("s_cmp_ge_u32 s2, 256")
    I(f"s_cbranch_scc1 L{name}_end")
    stamp(0)
    I("s_load_dwordx2 s[4:5], s[0:1], 48")
    I("s_load_dwordx4 s[20:23], s[0:1], 56")
    I("s_load_dwordx2 s[24:25], s[0:1], 72")
    lane = T0
    I(f"v_lshrrev_b32 v{T0+1}, 6, v0")
    I(f"v_readfirstlane_b32 s30, v{T0+1}")
    I(f"v_and_b32 v{lane}, 63, v0")
    I("s_and_b32 s31, s2, 7"); I("s_lshr_b32 s32, s2, 3")
    I("s_lshr_b32 s33, s31, 1")
    I("s_and_b32 s34, s31, 1"); I("s_lshl_b32 s34, s34, 1"); I("s_and_b32 s36, s32, 1"); I("s_add_u32 s34, s34, s36")
    I("s_lshr_b32 s32, s32, 1")
    I("s_and_b32 s41, s30, 3")
    I("s_lshr_b32 s39, s30, 2")
    I("s_lshl_b32 s35, s32, 3"); I("s_lshl_b32 s36, s41, 1"); I("s_add_u32 s35, s35, s36")
    I(f"v_lshlrev_b32 v{vL16}, 4, v{lane}")
    I("s_mov_b32 s36, 0xAAAB")
    for x in range(3):
        q, rw, p, t = T0+2, T0+3, T0+4, T0+5
        I(f"v_add_u32 v{q}, {64*x}, v{lane}")
        I(f"v_mul_lo_u32 v{rw}, v{q}, s36")
        I(f"v_lshrrev_b32 v{rw}, 20, v{rw}")
        I(f"v_mul_u32_u24 v{t}, 24, v{rw}")
        I(f"v_sub_u32 v{p}, v{q}, v{t}")
        I(f"v_and_b32 v{t}, 6, v{rw}")
        I(f"v_xor_b32 v{p}, v{p}, v{t}")
        I(f"v_mul_u32_u24 v{t}, 1152, v{rw}")
        I(f"v_lshl_add_u32 v{vD[x]}, v{p}, 4, v{t}")
    rowv, f, c4, t = T0+2, T0+3, T0+4, T0+5
    I(f"v_lshrrev_b32 v{rowv}, 2, v{lane}")
    I(f"v_bfe_u32 v{f}, v{lane}, 3, 2")
    I(f"v_and_b32 v{c4}, 3, v{lane}")
    I(f"v_mul_u32_u24 v{rowv}, 384, v{rowv}")
    I(f"v_lshl_add_u32 v{rowv}, v{c4}, 3, v{rowv}")
    I(f"s_mul_i32 s38, s39, {UOFF}")
    I(f"v_add_u32 v{rowv}, s38, v{rowv}")
    for m in range(4):
        I(f"s_add_u32 s38, s34, {m}")
        I(f"v_xor_b32 v{t}, s38, v{f}")
        I(f"v_lshl_add_u32 v{vA[0][m]}, v{t}, 5, v{rowv}")
    I("s_waitcnt lgkmcnt(0)")
    I("s_mov_b32 s8, s4"); I("s_mov_b32 s9, s5"); I(f"s_mov_b32 s10, {D*F*2}"); I("s_mov_b32 s11, 0x20000")
    I("s_mov_b32 s16, s24"); I("s_mov_b32 s17, s25"); I(f"s_mov_b32 s18, {WS_BYTES}"); I("s_mov_b32 s19, 0x20000")
    I("s_mov_b32 s12, s20"); I("s_mov_b32 s13, s21"); I(f"s_mov_b32 s14, {S*D*2}"); I("s_mov_b32 s15, 0x20000")
    I("s_mul_i32 s40, s33, 1152"); I("s_mul_i32 s42, s39, 576"); I("s_add_u32 s40, s40, s42")
    I("s_add_u32 s10, s40, 576"); I("s_mul_i32 s10, s10, 1152")
    I("s_lshl_b32 s42, s41, 3"); I("s_add_u32 s40, s40, s42")
    I("s_mul_i32 s40, s40, 1152")
    I("s_lshl_b32 s42, s34, 8"); I("s_add_u32 s40, s40, s42")
    I("s_mul_i32 s43, s41, 3072")
    I(f"s_mul_i32 s44, s39, {UOFF}"); I("s_add_u32 s43, s43, s44")
    def dma_piece(u, x):
        I(f"s_add_u32 m0, s43, {1024*x + (u % NSLOT)*SLOT}")
        I(f"buffer_load_dwordx4 v{vD[x]}, s[8:11], s40 offen lds", tag=("W", u))
        if x == 2: I(f"s_add_u32 s40, s40, {32*1152}")
    def aload(t, i):
        b = AB + 8 * (t % HD) + 4 * i
        I(f"buffer_load_dwordx4 v[{b}:{b+3}], v{vL16}, s[16:19], s{52+i} offen", tag=("H", t, i))
        I(f"s_add_u32 s{52+i}, s{52+i}, 1024")
    I("s_mul_i32 s46, s33, 36"); I("s_mul_i32 s47, s39, 18"); I("s_add_u32 s46, s46, s47")
    for i in range(2):
        I(f"s_add_u32 s{52+i}, s35, {i}")
        I(f"s_mul_i32 s{52+i}, s{52+i}, 144")
        I(f"s_add_u32 s{52+i}, s{52+i}, s46")
        I(f"s_lshl_b32 s{52+i}, s{52+i}, 10")
        I(f"s_add_u32 s{52+i}, s{52+i}, {ACT}")
    for t in range(-6, 0):
        if t + 5 >= 0:
            for x in range(3): dma_piece(t + 5, x)
        for i in range(2): aload(t + 6, i)
    for k in range(72): I(f"v_mov_b32 v{k}, 0")
    A.wait_vm(("W", 0))
    I("s_barrier")
    BODY = 6
    def acc(i, c):
        k = (i * 9 + c) * 4
        return f"v[{k}:{k+3}]"
    def rd(fi):
        f_ = fi % (9 * BODY)
        tt = f_ // 9; c = f_ % 9
        b = WB + 4 * (fi % NB)
        for x in range(2):
            I(f"ds_read_b64_tr_b16 v[{b+2*x}:{b+2*x+1}], v{vA[tt & 1][c & 3]} offset:{128*(c >> 2) + x*6144}", tag=("F", fi))
    for fi in range(PD): rd(fi)
    stamp(1)
    if prof:
        for fi in range(PD): A.lgq += [("F", fi)] * 2
    I("s_mov_b32 s51, 0")
    A.flush_hazards()
    A.label(f"L{name}_loop")
    I(f"s_cmp_eq_u32 s51, {18 // BODY - 1}")
    I("s_cselect_b32 s52, 0x80000000, s52"); I("s_cselect_b32 s53, 0x80000000, s53")
    for tt in range(BODY):
        for c in range(9):
            fi = tt * 9 + c
            b = WB + 4 * (fi % NB)
            A.wait_lg(("F", fi), force=True)
            for i in range(2):
                hb = AB + 8 * (tt % HD) + 4 * i
                if c == 0: A.wait_vm(("H", tt, i), force=True)
                I(f"v_mfma_f32_16x16x32_bf16 {acc(i,c)}, v[{b}:{b+3}], v[{hb}:{hb+3}], {acc(i,c)}")
                if i == 0: rd(fi + PD)
            if c == 3:
                A.wait_vm(("W", tt + 1), force=True)
                I("s_barrier")
                dl = SLOT if tt < NSLOT - 1 else -(NSLOT - 1) * SLOT
                for m in range(4): I(f"v_add_u32 v{vA[(tt+1) & 1][m]}, {dl}, v{vA[tt & 1][m]}")
            if 4 <= c <= 6: dma_piece(tt + 5, c - 4)
            if c == 8:
                for i in range(2): aload(tt + 6, i)
    I("s_add_u32 s51, s51, 1")
    I(f"s_cmp_lt_u32 s51, {18 // BODY}")
    I(f"s_cbranch_scc1 L{name}_loop")
    I("s_waitcnt vmcnt(0) lgkmcnt(0)")
    stamp(2)
    I("s_barrier")
    I(f"s_mul_i32 s46, s30, 9216")
    I(f"v_add_u32 v{T0+1}, s46, v{vL16}")
    I("s_xor_b32 s47, s30, 4"); I(f"s_mul_i32 s47, s47, 9216")
    I(f"v_add_u32 v{T0+2}, s47, v{vL16}")
    I("s_cmp_eq_u32 s39, 0")
    I(f"s_cbranch_scc1 L{name}_kh0")
    for c in range(9): I(f"ds_write_b128 v{T0+1}, v[{4*c}:{4*c+3}] offset:{1024*c}")
    A.flush_hazards()
    for k in range(36): I(f"v_mov_b32 v{k}, v{36+k}")
    I(f"s_branch L{name}_khj")
    A.label(f"L{name}_kh0")
    for c in range(9): I(f"ds_write_b128 v{T0+1}, v[{36+4*c}:{36+4*c+3}] offset:{1024*c}")
    A.label(f"L{name}_khj")
    I("s_waitcnt lgkmcnt(0)")
    I("s_barrier")
    for c in range(9): I(f"ds_read_b128 v[{36+4*c}:{36+4*c+3}], v{T0+2} offset:{1024*c}", tag=("X", c))
    for c in range(9):
        A.wait_lg(("X", c))
        for r in range(4): I(f"v_add_f32 v{4*c+r}, v{4*c+r}, v{36+4*c+r}")
    I("s_lshl_b32 s46, s32, 2"); I("s_add_u32 s46, s46, s34")
    I("s_lshl_b32 s47, s46, 3"); I("s_add_u32 s47, s47, s30"); I("s_mul_i32 s47, s47, 9216")
    I(f"s_add_u32 s47, s47, {SLAB}")
    I(f"s_mul_i32 s48, s33, {64*8*9216}"); I("s_add_u32 s48, s48, s47")
    for c in range(9):
        if c < 4: I(f"buffer_store_dwordx4 v[{4*c}:{4*c+3}], v{vL16}, s[16:19], s48 offen offset:{1024*c} sc1")
        else:
            if c in (4, 8): I("s_add_u32 s48, s48, 4096")
            I(f"buffer_store_dwordx4 v[{4*c}:{4*c+3}], v{vL16}, s[16:19], s48 offen offset:{1024*(c % 4)} sc1")
    I("s_add_u32 s49, s35, s39"); I("s_mul_i32 s49, s49, 36"); I("s_mul_i32 s50, s34, 9"); I("s_add_u32 s49, s49, s50")
    I("s_lshl_b32 s49, s49, 9"); I(f"s_add_u32 s49, s49, {H4}")
    I(f"v_lshrrev_b32 v{T0+3}, 1, v{vL16}")
    HR = 36 + 36
    I("s_waitcnt vmcnt(0)")
    for c in range(9):
        if c == 8: I("s_add_u32 s49, s49, 4096")
        I(f"buffer_load_dwordx2 v[{HR+2*c}:{HR+2*c+1}], v{T0+3}, s[16:19], s49 offen offset:{512*(c % 8)}", tag="HR")
    I("s_barrier")
    I("s_cmp_lg_u32 s30, 0")
    I(f"s_cbranch_scc1 L{name}_noat")
    I("s_lshl_b32 s50, s46, 2")
    I(f"v_mov_b32 v{T0+4}, s50"); I(f"v_mov_b32 v{T0+5}, 1"); I(f"v_mov_b32 v{T0+6}, 0x14000")
    I("s_mov_b64 exec, 1")
    I(f"global_atomic_add v{T0+5}, v{T0+4}, v{T0+5}, s[22:23] sc0")
    I("s_waitcnt vmcnt(0)")
    I(f"ds_write_b32 v{T0+6}, v{T0+5}")
    I("s_waitcnt lgkmcnt(0)")
    I("s_mov_b64 exec, -1")
    A.label(f"L{name}_noat")
    I("s_barrier")
    I(f"v_mov_b32 v{T0+6}, 0x14000")
    I(f"ds_read_b32 v{T0+5}, v{T0+6}")
    I("s_waitcnt lgkmcnt(0)")
    I(f"v_readfirstlane_b32 s50, v{T0+5}")
    I("s_cmp_lg_u32 s50, 3")
    I(f"s_cbranch_scc1 L{name}_fin")
    LB = 92
    for d in range(1, 4):
        I(f"s_add_u32 s50, s33, {d}"); I("s_and_b32 s50, s50, 3"); I(f"s_mul_i32 s50, s50, {64*8*9216}"); I("s_add_u32 s50, s50, s47")
        for c in range(9):
            if c in (4, 8): I("s_add_u32 s50, s50, 4096")
            b = LB + 36 * (d - 1) + 4 * c
            I(f"buffer_load_dwordx4 v[{b}:{b+3}], v{vL16}, s[16:19], s50 offen offset:{1024*(c % 4)} sc1", tag=("SL", d, c))
    I(f"v_lshrrev_b32 v{200}, 4, v{vL16}")
    I(f"v_and_b32 v{201}, 15, v{200}"); I(f"v_lshrrev_b32 v{200}, 4, v{200}")
    I(f"v_mul_u32_u24 v{201}, 1152, v{201}"); I(f"v_lshl_add_u32 v{201}, v{200}, 3, v{201}")
    I("s_add_u32 s49, s35, s39"); I(f"s_mul_i32 s49, s49, {16*1152}"); I("s_mul_i32 s50, s34, 288"); I("s_add_u32 s49, s49, s50")
    for c in range(9):
        for d in range(1, 4):
            A.wait_vm(("SL", d, c))
            b = LB + 36 * (d - 1) + 4 * c
            for r in range(4): I(f"v_add_f32 v{4*c+r}, v{4*c+r}, v{b+r}")
        h0, h1 = HR + 2 * c, HR + 2 * c + 1
        I(f"v_lshlrev_b32 v202, 16, v{h0}"); I(f"v_and_b32 v203, 0xffff0000, v{h0}")
        I(f"v_lshlrev_b32 v204, 16, v{h1}"); I(f"v_and_b32 v205, 0xffff0000, v{h1}")
        for r in range(4): I(f"v_add_f32 v{4*c+r}, v{4*c+r}, v{202+r}")
        I(f"v_cvt_pk_bf16_f32 v{4*c}, v{4*c}, v{4*c+1}"); I(f"v_cvt_pk_bf16_f32 v{4*c+1}, v{4*c+2}, v{4*c+3}")
        I(f"buffer_store_dwordx2 v[{4*c}:{4*c+1}], v201, s[12:15], s49 offen offset:{32*c}")
    A.label(f"L{name}_fin")
    if prof:
        I("s_waitcnt vmcnt(0)")
        stamp(3)
        I("s_lshl_b32 s80, s2, 3"); I("s_add_u32 s80, s80, s30"); I("s_lshl_b32 s80, s80, 6"); I(f"s_add_u32 s80, s80, {200*MB}")
        for k in range(16): I(f"v_mov_b32 v{k}, s{60+k}")
        I("v_mov_b32 v16, 0")
        for k in range(4): I(f"buffer_store_dwordx4 v[{4*k}:{4*k+3}], v16, s[16:19], s80 offen offset:{16*k}")
    A.label(f"L{name}_end")
    I("s_endpgm")
    launch = f"; @launch kernel={name} grid=(256,1,1) block=(512,1,1) lds={LDS_BYTES}"
    return launch, A.text(), kernel_desc(name, 216)
```

```python
S, D, H, DH, F = 2048, 576, 32, 18, 4608
MB = 1 << 20
PQF  = 0 * MB
KVP  = 3 * MB
KVZ  = 4 * MB
HF   = 5 * MB
H4   = 8 * MB
ST   = 11 * MB
ACT  = 12 * MB
SLAB = 32 * MB
WS_BYTES = 268435456
CS   = 11 * MB + 512 * 1024
FLG  = 11 * MB + 768 * 1024
FL2  = 11 * MB + 832 * 1024
```

```python
from k1 import gen_k1
from k2 import gen_k2
from k3c import gen_k3c
from k4 import gen_k4
from build import assemble
import sys
out = sys.argv[1] if len(sys.argv) > 1 else 'sequential_preLN__linear_attn_block__swiglu_ffn__prompt.s'
assemble([gen_k1(), gen_k2(), gen_k3c(), gen_k4()], out)
```

```python
from k1c import gen_k1c as gen_k1
from k2b import gen_k2b as gen_k2
from k3f import gen_k3f as gen_k3c
from k4c import gen_k4c as gen_k4
def parts(prof=False):
    return [gen_k1(prof=prof), gen_k2(prof=prof), gen_k3c(prof=prof), gen_k4(prof=prof)]
PROFS = [(256, 5, 8), (192, 8, 8), (256, 4, 8), (256, 8, 8)]
```

```python
from asmlib import *
from layout import *

def phi2(I, regs, tmp, s_log2e):
    for r, t in zip(regs, tmp): I(f"v_min_f32 v{t}, 0, v{r}")
    for r, t in zip(regs, tmp): I(f"v_mul_f32 v{t}, {s_log2e}, v{t}")
    for r, t in zip(regs, tmp): I(f"v_exp_f32 v{t}, v{t}")
    for r, t in zip(regs, tmp): I(f"v_max_f32 v{r}, 0, v{r}")
    for r, t in zip(regs, tmp): I(f"v_add_f32 v{t}, 0x358637bd, v{t}")
    for r, t in zip(regs, tmp): I(f"v_add_f32 v{r}, v{r}, v{t}")

def gen_k1c(name="k1_kernel", prof=False, exp=""):
    A = Asm(); I = A.i
    PROF = 200 * MB
    SLOT = 32768; NSLOT = 5; WOFF = 16384
    MISC = 0x6000 + 0x4000
    STP = MISC
    CSP = MISC + 4096
    FIN = MISC + 8192
    CSF = MISC + 10240
    LDS_BYTES = SLOT * NSLOT
    AC = 0
    XB = 32
    WB = 48
    SA = 80
    vX = [88, 89, 90, 91]
    vT = [92, 93]
    vXD, vWD = 94, 95
    vL16, lane = 96, 97
    T0 = 100
    A.raw(kernel_header(name))
    def stamp(i):
        if prof:
            I(f"s_memtime s[{60+4*i}:{61+4*i}]"); I(f"s_memrealtime s[{62+4*i}:{63+4*i}]"); I("s_waitcnt lgkmcnt(0)")
    I("s_cmp_ge_u32 s2, 256")
    I(f"s_cbranch_scc1 L{name}_end")
    stamp(0)
    I("s_load_dwordx4 s[4:7], s[0:1], 0")
    I("s_load_dwordx4 s[20:23], s[0:1], 64")
    I("s_load_dwordx2 s[84:85], s[0:1], 16")
    I("s_load_dwordx4 s[88:91], s[0:1], 32")
    I("s_load_dwordx2 s[92:93], s[0:1], 48")
    I(f"v_lshrrev_b32 v{T0}, 6, v0")
    I(f"v_readfirstlane_b32 s30, v{T0}")
    I(f"v_and_b32 v{lane}, 63, v0")
    I("s_and_b32 s31, s2, 7"); I("s_lshr_b32 s32, s2, 3")
    I("s_and_b32 s33, s31, 1"); I("s_lshl_b32 s33, s33, 3"); I("s_lshr_b32 s34, s32, 2"); I("s_add_u32 s33, s33, s34")
    I("s_lshr_b32 s34, s31, 1"); I("s_lshl_b32 s34, s34, 2"); I("s_and_b32 s32, s32, 3"); I("s_add_u32 s32, s32, s34")
    I("s_and_b32 s41, s30, 3")
    I("s_lshr_b32 s39, s30, 2")
    I(f"v_lshlrev_b32 v{vL16}, 4, v{lane}")
    I(f"v_lshrrev_b32 v{T0}, 4, v{lane}")
    I("s_and_b32 s42, s30, 1"); I("s_lshl_b32 s42, s42, 2")
    I(f"v_add_u32 v{T0}, s42, v{T0}")
    I(f"v_and_b32 v{T0+1}, 7, v{lane}")
    I(f"v_xor_b32 v{T0}, v{T0}, v{T0+1}")
    I(f"v_lshrrev_b32 v{T0+1}, 3, v{lane}")
    I(f"v_mul_u32_u24 v{T0+1}, 1152, v{T0+1}")
    I(f"v_lshl_add_u32 v{vXD}, v{T0}, 4, v{T0+1}")
    gi, sp, r_, t = T0, T0+1, T0+2, T0+3
    I(f"v_lshrrev_b32 v{gi}, 4, v{lane}"); I(f"v_and_b32 v{t}, 3, v{lane}"); I(f"v_lshl_add_u32 v{gi}, v{gi}, 2, v{t}")
    I(f"v_min_u32 v{gi}, 14, v{gi}")
    I(f"v_mul_u32_u24 v{sp}, 52, v{gi}"); I(f"v_lshrrev_b32 v{sp}, 8, v{sp}")
    I(f"v_mul_u32_u24 v{t}, 5, v{sp}"); I(f"v_sub_u32 v{gi}, v{gi}, v{t}")
    I(f"v_bfe_u32 v{r_}, v{lane}, 2, 2")
    I(f"v_mul_u32_u24 v{r_}, 3456, v{r_}")
    I(f"v_mul_u32_u24 v{sp}, 1152, v{sp}")
    I(f"v_add_u32 v{r_}, v{r_}, v{sp}")
    I(f"v_lshl_add_u32 v{vWD}, v{gi}, 4, v{r_}")
    I("s_waitcnt lgkmcnt(0)")
    I("s_mov_b32 s8, s4"); I("s_mov_b32 s9, s5"); I(f"s_mov_b32 s10, {S*D*2}"); I("s_mov_b32 s11, 0x20000")
    I("s_mov_b32 s12, s6"); I("s_mov_b32 s13, s7"); I(f"s_mov_b32 s14, {D*3*D*2}"); I("s_mov_b32 s15, 0x20000")
    I("s_mov_b32 s16, s22"); I("s_mov_b32 s17, s23"); I(f"s_mov_b32 s18, {WS_BYTES}"); I("s_mov_b32 s19, 0x20000")
    I("s_cmp_ge_u32 s2, 72"); I(f"s_cbranch_scc1 L{name}_nz")
    I("s_cmp_lg_u32 s30, 7"); I(f"s_cbranch_scc1 L{name}_nz")
    I("s_lshl_b32 s42, s2, 7"); I(f"s_add_u32 s42, s42, {FLG}")
    I("s_cmp_ge_u32 s2, 64"); I(f"s_cselect_b32 s43, {FL2 - FLG - 64*128}, 0"); I("s_add_u32 s42, s42, s43")
    I(f"v_mov_b32 v{T0+4}, 0"); I(f"v_lshlrev_b32 v{T0+5}, 2, v{lane}")
    I("s_mov_b32 exec_hi, 0")
    A.raw(f"    buffer_store_dword v{T0+4}, v{T0+5}, s[16:19], s42 offen")
    I("s_mov_b64 exec, -1")
    A.label(f"L{name}_nz")
    I("s_lshl_b32 s40, s32, 7"); I("s_lshl_b32 s42, s30, 3"); I("s_add_u32 s40, s40, s42"); I("s_mul_i32 s40, s40, 1152")
    I(f"s_add_u32 s43, s40, {64*1152}")
    I("s_mul_i32 s44, s33, 72"); I("s_and_b32 s44, s44, 0xfffffff0")
    I(f"s_mul_i32 s45, s30, {4*3456}"); I("s_add_u32 s44, s44, s45")
    I("s_lshl_b32 s45, s30, 10")
    def dma_chunk(c):
        sb = (c % NSLOT) * SLOT
        I(f"s_add_u32 m0, s45, {sb}")
        I(f"buffer_load_dwordx4 v{vXD}, s[8:11], s40 offen lds", tag=("C", c))
        I(f"s_add_u32 m0, s45, {sb + WOFF}")
        I(f"buffer_load_dwordx4 v{vWD if 'wlin' not in exp else vL16}, s[12:15], s44 offen lds", tag=("C", c))
        I(f"s_add_u32 m0, s45, {sb + 8192}")
        I(f"buffer_load_dwordx4 v{vXD}, s[8:11], s43 offen lds", tag=("C", c))
        I(f"s_add_u32 s44, s44, {32*3456}")
        I(f"s_add_u32 m0, s45, {sb + WOFF + 8192}")
        I(f"buffer_load_dwordx4 v{vWD if 'wlin' not in exp else vL16}, s[12:15], s44 offen lds", tag=("C", c))
        I(f"s_add_u32 s44, s44, {32*3456}")
        I("s_add_u32 s40, s40, 128"); I("s_add_u32 s43, s43, 128")
    dma_chunk(0)
    s_, hf, f, t = T0, T0+1, T0+2, T0+3
    I(f"v_and_b32 v{s_}, 31, v{lane}"); I(f"v_lshrrev_b32 v{hf}, 5, v{lane}"); I(f"v_bfe_u32 v{f}, v{lane}, 1, 3")
    I("s_lshl_b32 s42, s41, 5"); I(f"v_add_u32 v{s_}, s42, v{s_}"); I(f"v_lshlrev_b32 v{s_}, 7, v{s_}")
    for m in range(4):
        I(f"v_add_u32 v{t}, {2*m}, v{hf}"); I(f"v_xor_b32 v{t}, v{t}, v{f}"); I(f"v_lshl_add_u32 v{vX[m]}, v{t}, 4, v{s_}")
    i_, w0, w1, t, base = T0+4, T0+5, T0+6, T0+7, T0+9
    I(f"v_bfe_u32 v{i_}, v{lane}, 4, 1"); I(f"v_and_b32 v{t}, 3, v{lane}"); I(f"v_lshl_add_u32 v{i_}, v{i_}, 2, v{t}")
    I("s_and_b32 s46, s33, 1")
    I("s_cmp_eq_u32 s39, 0")
    I(f"s_cbranch_scc0 L{name}_u1")
    I(f"v_add_u32 v{w0}, s46, v{i_}"); I(f"v_add_u32 v{w1}, 10, v{w0}")
    I(f"s_branch L{name}_uj")
    A.label(f"L{name}_u1")
    I(f"v_add_u32 v{w0}, 19, v{i_}")
    I(f"v_cmp_eq_u32 vcc, 0, v{i_}"); I(f"v_mov_b32 v{t}, 18"); I(f"v_cndmask_b32 v{w0}, v{w0}, v{t}, vcc")
    I(f"v_add_u32 v{w0}, s46, v{w0}")
    I(f"v_add_u32 v{w1}, 27, v{i_}")
    I(f"v_cmp_gt_u32 vcc, 2, v{i_}"); I(f"v_mov_b32 v{t}, 8"); I(f"v_cndmask_b32 v{w1}, v{t}, v{w1}, vcc")
    I(f"v_add_u32 v{w1}, s46, v{w1}")
    A.label(f"L{name}_uj")
    A.flush_hazards()
    I(f"v_lshrrev_b32 v{base}, 5, v{lane}"); I(f"v_lshlrev_b32 v{base}, 11, v{base}")
    I(f"v_bfe_u32 v{t}, v{lane}, 2, 2"); I(f"v_lshl_add_u32 v{base}, v{t}, 6, v{base}")
    I(f"v_add_u32 v{base}, {WOFF}, v{base}")
    for k, w in enumerate((w0, w1)):
        I(f"v_lshrrev_b32 v{t}, 3, v{w}"); I(f"v_lshl_add_u32 v{vT[k]}, v{t}, 8, v{base}")
        I(f"v_and_b32 v{t}, 7, v{w}"); I(f"v_lshl_add_u32 v{vT[k]}, v{t}, 3, v{vT[k]}")
    vX2 = [T0+10+m for m in range(4)]; vT2 = [T0+14, T0+15]
    vX3 = [T0+26+m for m in range(4)]; vT3 = [T0+30, T0+31]
    for m in range(4): I(f"v_add_u32 v{vX2[m]}, 65536, v{vX[m]}")
    for k in range(2): I(f"v_add_u32 v{vT2[k]}, 65536, v{vT[k]}")
    for m in range(4): I(f"v_add_u32 v{vX3[m]}, 131072, v{vX[m]}")
    for k in range(2): I(f"v_add_u32 v{vT3[k]}, 131072, v{vT[k]}")
    for k in range(32): I(f"v_mov_b32 v{AC+k}, 0")
    for k in range(6): I(f"v_mov_b32 v{SA+k}, 0")
    I("s_mov_b32 s47, 0x3f803f80")
    dma_chunk(1)
    A.wait_vm(("C", 0))
    I("s_barrier")
    stamp(1)
    I("s_cmp_eq_u32 s39, 0")
    I(f"s_cbranch_scc0 L{name}_cg1")
    saved = (list(A.vmq), A.vmdone, list(A.lgq), A.lgdone)
    lab = [0]
    for cg in range(2):
        if cg == 1:
            A.label(f"L{name}_cg1")
            A.vmq, A.vmdone, A.lgq, A.lgdone = list(saved[0]), saved[1], list(saved[2]), saved[3]
            A.hist = []
        def rd(tt, part):
            c = tt >> 2; tl = tt & 3; sl = c % NSLOT
            off = (sl & 1) * SLOT
            xa = (vX, vX2, vX3)[sl >> 1][tl]; ta = (vT, vT2, vT3)[sl >> 1]
            xb = XB + 4 * (tt % 4)
            if part == 0: I(f"ds_read_b128 v[{xb}:{xb+3}], v{xa} offset:{off}", tag=("F", tt, 0))
            k = part
            b = WB + 8 * (tt % 4) + 4 * k
            for x in range(2):
                I(f"ds_read_b64_tr_b16 v[{b+2*x}:{b+2*x+1}], v{ta[k]} offset:{off + tl*4096 + x*1024}", tag=("F", tt, k))
        PDK = 3
        for tt in range(PDK): rd(tt, 0); rd(tt, 1)
        for tt in range(36):
            c = tt >> 2; tl = tt & 3
            xb = XB + 4 * (tt % 4)
            xf = f"v[{xb}:{xb+3}]"
            dots = []
            if (tl >> 1) == cg:
                for d in range(4):
                    dots.append(f"v_dot2_f32_bf16 v{SA + (d & 1)}, v{xb+d}, s47, v{SA + (d & 1)}")
                    dots.append(f"v_dot2_f32_bf16 v{SA + 2 + (d & 1)}, v{xb+d}, v{xb+d}, v{SA + 2 + (d & 1)}")
            for k in range(2):
                A.wait_lg(("F", tt, k))
                b = WB + 8 * (tt % 4) + 4 * k
                ac = f"v[{AC+16*k}:{AC+16*k+15}]"; wf = f"v[{b}:{b+3}]"
                if cg == 0 and k == 0: I(f"v_mfma_f32_32x32x16_bf16 {ac}, {wf}, {xf}, {ac}")
                else: I(f"v_mfma_f32_32x32x16_bf16 {ac}, {xf}, {wf}, {ac}")
                for o in dots[4*k:4*k+4]: I(o)
                if k == 0:
                    pass
                if k == 1:
                    lab[0] += 1
                    I(f"s_cmp_lg_u32 s41, {tl}")
                    I(f"s_cbranch_scc1 L{name}_ncs{lab[0]}")
                    for k2 in range(2):
                        b2 = WB + 8 * (tt % 4) + 4 * k2
                        for d in range(4): I(f"v_dot2_f32_bf16 v{SA+4+k2}, v{b2+d}, s47, v{SA+4+k2}")
                    A.label(f"L{name}_ncs{lab[0]}")
                if tt + PDK < 36 and not (tl == 1 and k == 0 and False): rd(tt + PDK, k)
            if tl == 0 and c < 8:
                A.wait_vm(("C", c + 1))
                I("s_barrier")
                for cc in {0: [2, 3], 1: [4, 5]}.get(c, [c + 4] if c + 4 < 9 else []): dma_chunk(cc)
                if c == 4:
                    I("s_lshl_b32 s46, s2, 3"); I("s_add_u32 s46, s46, s30")
                    I(f"v_lshlrev_b32 v{T0+20}, 7, v{lane}")
                    I("s_mov_b32 s27, 0x20000"); I("s_mov_b32 exec_hi, 0")
                    I("s_mov_b32 exec_lo, 7")
                    I("s_mul_i32 s48, s46, 384")
                    I("s_mov_b32 s24, s84"); I("s_mov_b32 s25, s85"); I("s_mov_b32 s26, 0x%x" % (D*D*2))
                    I(f"buffer_load_dword v179, v{T0+20}, s[24:27], s48 offen", tag="PF")
                    I("s_mov_b64 exec, -1")
                if c == 7:
                    I("s_mul_i32 s48, s46, 2688")
                    I("s_mov_b32 s26, 0x%x" % (D*F*2))
                    I("s_mov_b32 exec_hi, 0"); I("s_mov_b32 exec_lo, 0x1fffff")
                    for k, sp_ in enumerate((88, 90)):
                        I(f"s_mov_b32 s24, s{sp_}"); I(f"s_mov_b32 s25, s{sp_+1}")
                        I(f"buffer_load_dword v{176+k}, v{T0+20}, s[24:27], s48 offen", tag="PF")
                    I("s_mov_b64 exec, -1")
        stamp(2)
        I("s_nop 4")
        I(f"v_add_f32 v{SA}, v{SA}, v{SA+1}"); I(f"v_add_f32 v{SA+1}, v{SA+2}, v{SA+3}")
        s_, hf = T0, T0+1
        I(f"v_and_b32 v{s_}, 31, v{lane}"); I(f"v_lshrrev_b32 v{hf}, 5, v{lane}")
        I("s_lshl_b32 s42, s41, 9")
        I(f"v_lshl_add_u32 v{T0+2}, v{s_}, 4, s42")
        I(f"v_lshl_add_u32 v{T0+3}, v{hf}, 3, v{T0+2}")
        I(f"v_add_u32 v{T0+3}, {STP + cg*2048}, v{T0+3}")
        I(f"ds_write_b64 v{T0+3}, v[{SA}:{SA+1}]")
        I("s_lshl_b32 s42, s41, 8")
        I(f"v_lshl_add_u32 v{T0+4}, v{lane}, 2, s42"); I(f"v_add_u32 v{T0+4}, {CSP + cg*2048}, v{T0+4}")
        I(f"ds_write_b32 v{T0+4}, v{SA+4}"); I(f"ds_write_b32 v{T0+4}, v{SA+5} offset:1024")
        I("s_waitcnt lgkmcnt(0)")
        I("s_barrier")
        I(f"v_add_u32 v{T0+2}, {STP}, v{T0+2}")
        I(f"ds_read_b128 v[32:35], v{T0+2}"); I(f"ds_read_b128 v[36:39], v{T0+2} offset:2048")
        I(f"v_lshlrev_b32 v{T0+4}, 2, v{s_}"); I(f"v_add_u32 v{T0+4}, {CSP + cg*2048}, v{T0+4}")
        for k in range(2):
            for j in range(8): I(f"ds_read_b32 v{40+8*k+j}, v{T0+4} offset:{1024*k + 128*j}")
        I("s_waitcnt lgkmcnt(0)")
        I("v_add_f32 v32, v32, v34"); I("v_add_f32 v33, v33, v35"); I("v_add_f32 v36, v36, v38"); I("v_add_f32 v37, v37, v39")
        I("v_add_f32 v32, v32, v36"); I("v_add_f32 v33, v33, v37")
        I("s_mov_b32 s49, 0x3AE38E39")
        I("v_mul_f32 v32, s49, v32"); I("v_mul_f32 v33, s49, v33")
        I("v_fma_f32 v33, -v32, v32, v33"); I("v_max_f32 v33, 0, v33"); I("v_add_f32 v33, 0x3727c5ac, v33")
        I("v_rsq_f32 v34, v33"); I("v_mul_f32 v35, v32, v34"); I("v_sub_f32 v35, 0, v35")
        for k in range(2):
            for st in (4, 2, 1):
                for j in range(st): I(f"v_add_f32 v{40+8*k+j}, v{40+8*k+j}, v{40+8*k+j+st}")
        I("s_lshl_b32 s42, s30, 8"); I(f"s_add_u32 s42, s42, {FIN}")
        I(f"v_lshl_add_u32 v{T0+2}, v{s_}, 3, s42")
        I(f"ds_write_b64 v{T0+2}, v[34:35]")
        if cg == 0:
            I("s_lshl_b32 s43, s30, 7"); I(f"s_add_u32 s43, s43, {CSF}")
            I(f"v_lshl_add_u32 v{T0+3}, v{s_}, 2, s43")
            I(f"ds_write_b32 v{T0+3}, v40")
        I("s_waitcnt lgkmcnt(0)")
        I(f"v_lshl_add_u32 v{T0+2}, v{hf}, 5, s42")
        RS = 112
        for a in range(4):
            I(f"ds_read_b128 v[{RS+8*a}:{RS+8*a+3}], v{T0+2} offset:{64*a}")
            I(f"ds_read_b128 v[{RS+8*a+4}:{RS+8*a+7}], v{T0+2} offset:{64*a+16}")
        if cg == 0:
            I(f"v_lshl_add_u32 v{T0+3}, v{hf}, 4, s43")
            for a in range(4): I(f"ds_read_b128 v[{144+4*a}:{147+4*a}], v{T0+3} offset:{32*a}")
        I("s_waitcnt lgkmcnt(0)")
        def scale_T(ac, cs):
            for r in range(16): I(f"v_mul_f32 v{56+r}, v{RS+2*r+1}, v{cs}")
            for r in range(16): I(f"v_fma_f32 v{ac+r}, v{ac+r}, v{RS+2*r}, v{56+r}")
        if cg == 0:
            for r in range(16): I(f"v_mul_f32 v{56+r}, v35, v{144+r}")
            for r in range(16): I(f"v_fma_f32 v{AC+r}, v{AC+r}, v34, v{56+r}")
            scale_T(AC + 16, 48)
        else:
            scale_T(AC, 40); scale_T(AC + 16, 48)
        I("s_mov_b32 s48, 0x3fb8aa3b")
        tmp = list(range(56, 72))
        I("s_lshl_b32 s50, s32, 2"); I("s_add_u32 s50, s50, s41"); I("s_lshl_b32 s50, s50, 2"); I("s_lshr_b32 s51, s33, 2"); I("s_add_u32 s50, s50, s51")
        I("s_mul_i32 s50, s50, 9216"); I(f"s_add_u32 s50, s50, {PQF}")
        I("s_and_b32 s51, s33, 3")
        I("s_lshl_b32 s52, s41, 11")
        I(f"v_add_u32 v{T0}, s52, v{vL16}")
        def pack_to_lds(ac, tile):
            for r in range(8): I(f"v_cvt_pk_bf16_f32 v{72+r}, v{ac+2*r}, v{ac+2*r+1}")
            I(f"ds_write_b128 v{T0}, v[72:75] offset:{tile*8192}")
            I(f"ds_write_b128 v{T0}, v[76:79] offset:{tile*8192+1024}")
        if cg == 0:
            q = AC; t1 = AC + 16
            phi2(I, list(range(t1, t1 + 16)), tmp, "s48")
            pack_to_lds(t1, 0)
            phi2(I, list(range(q, q + 16)), tmp, "s48")
            for r in range(8): I(f"v_cvt_pk_bf16_f32 v{32+r}, v{q+2*r}, v{q+2*r+1}")
            I("s_lshl_b32 s53, s51, 11"); I("s_add_u32 s53, s53, s50")
            I(f"buffer_store_dwordx4 v[32:35], v{vL16}, s[16:19], s53 offen")
            I(f"buffer_store_dwordx4 v[36:39], v{vL16}, s[16:19], s53 offen offset:1024")
        else:
            t2 = AC; t3 = AC + 16
            I("s_mov_b32 exec_lo, 0xf"); I("s_mov_b32 exec_hi, 0xf")
            phi2(I, list(range(t2, t2 + 16)), tmp, "s48")
            I("s_mov_b32 exec_lo, 0xf00"); I("s_mov_b32 exec_hi, 0xf00")
            phi2(I, list(range(t3, t3 + 16)), tmp, "s48")
            I("s_mov_b32 exec_lo, 0x1000"); I("s_mov_b32 exec_hi, 0x1000")
            for r in range(16): I(f"v_mov_b32 v{t3+r}, 1.0")
            I("s_mov_b64 exec, -1")
            pack_to_lds(t2, 1)
            pack_to_lds(t3, 2)
            ad = T0 + 3
            I(f"v_and_b32 v{ad}, 31, v{lane}")
            I(f"v_subrev_u32 v{ad}, 8, v{ad}"); I(f"v_lshlrev_b32 v{ad}, 1, v{ad}")
            I(f"v_lshrrev_b32 v{T0+4}, 5, v{lane}"); I(f"v_lshl_add_u32 v{ad}, v{T0+4}, 6, v{ad}")
            I("s_lshr_b32 s53, s51, 1"); I("s_lshl_b32 s53, s53, 9"); I("s_and_b32 s54, s51, 1"); I("s_lshl_b32 s54, s54, 3")
            I("s_add_u32 s53, s53, s54"); I("s_add_u32 s53, s53, s50"); I("s_add_u32 s53, s53, 8192")
            I("s_mov_b32 exec_lo, 0xf00"); I("s_mov_b32 exec_hi, 0xf00")
            for r in range(16):
                off = (8 * (r >> 2) + (r & 3)) * 16
                if r & 1: I(f"buffer_store_short_d16_hi v{72 + (r >> 1)}, v{ad}, s[16:19], s53 offen offset:{off}")
                else: I(f"buffer_store_short v{72 + (r >> 1)}, v{ad}, s[16:19], s53 offen offset:{off}")
            I("s_mov_b64 exec, -1")
        if cg == 0: I(f"s_branch L{name}_join")
    A.label(f"L{name}_join")
    A.flush_hazards()
    I("s_waitcnt lgkmcnt(0)")
    I("s_barrier")
    stamp(3)
    I("s_cmp_ge_u32 s30, 4")
    I(f"s_cbranch_scc1 L{name}_nokv")
    KA = 112
    I("s_lshr_b32 s52, s30, 1"); I("s_and_b32 s53, s30, 1")
    I("s_lshl_b32 s54, s52, 13"); I(f"v_add_u32 v{T0}, s54, v{vL16}")
    I("s_add_u32 s54, s53, 1"); I("s_lshl_b32 s54, s54, 13"); I(f"v_add_u32 v{T0+1}, s54, v{vL16}")
    for k in range(8):
        I(f"ds_read_b128 v[{KA+8*k}:{KA+8*k+3}], v{T0} offset:{1024*k}", tag=("KA", k))
        I(f"ds_read_b128 v[{KA+8*k+4}:{KA+8*k+7}], v{T0+1} offset:{1024*k}", tag=("KA", k))
    n_, hf, vc, o0, o1, t, big, om = 32, 33, 34, 35, 36, 37, 38, 39
    I(f"v_and_b32 v{n_}, 31, v{lane}"); I(f"v_lshrrev_b32 v{hf}, 5, v{lane}")
    I(f"v_mov_b32 v{big}, 0x40000000")
    I("s_cmp_eq_u32 s53, 0"); I("s_cselect_b32 s54, -4, 28")
    I(f"v_add_u32 v{vc}, s54, v{n_}")
    I(f"v_lshlrev_b32 v{o0}, 2, v{vc}")
    I(f"v_cmp_gt_u32 vcc, 18, v{vc}"); I(f"v_cndmask_b32 v{o0}, v{big}, v{o0}, vcc")
    I(f"v_subrev_u32 v{t}, 18, v{vc}"); I(f"v_lshlrev_b32 v{o1}, 2, v{t}")
    I(f"v_cmp_gt_u32 vcc, 18, v{t}"); I(f"v_cndmask_b32 v{o1}, v{big}, v{o1}, vcc")
    I(f"v_cmp_eq_u32 vcc, 40, v{vc}"); I(f"v_mov_b32 v{t}, 72")
    I(f"v_cndmask_b32 v{o0}, v{o0}, v{t}, vcc"); I(f"v_cndmask_b32 v{o1}, v{o1}, v{t}, vcc")
    I(f"v_mul_u32_u24 v{t}, 320, v{hf}")
    I(f"v_add_u32 v{o0}, v{o0}, v{t}"); I(f"v_add_u32 v{o1}, v{o1}, v{t}")
    I(f"v_cmp_eq_u32 vcc, 0, v{hf}"); I(f"v_cndmask_b32 v{om}, v{o1}, v{o0}, vcc")
    I("s_lshl_b32 s55, s33, 4"); I("s_add_u32 s55, s55, s32"); I("s_mul_i32 s55, s55, 2880"); I(f"s_add_u32 s55, s55, {KVP}")
    for k in range(8):
        A.wait_lg(("KA", k))
        c = "0" if k == 0 else f"v[{AC}:{AC+15}]"
        I(f"v_mfma_f32_32x32x16_bf16 v[{AC}:{AC+15}], v[{KA+8*k}:{KA+8*k+3}], v[{KA+8*k+4}:{KA+8*k+7}], {c}")
    I("s_cmp_eq_u32 s52, 0")
    I(f"s_cbranch_scc0 L{name}_kvT2")
    for r in range(16):
        a = r >> 2; b = r & 3
        ad = o0 if a < 2 else (o1 if (a == 3 or b >= 2) else om)
        I(f"buffer_store_dword v{AC+r}, v{ad}, s[16:19], s55 offen offset:{(8*a+b)*80}")
    I(f"s_branch L{name}_nokv")
    A.label(f"L{name}_kvT2")
    A.flush_hazards()
    I("s_mov_b32 exec_hi, 0")
    for r in range(4):
        I(f"buffer_store_dword v{AC+r}, v{o1}, s[16:19], s55 offen offset:{(32+r)*80}")
    I("s_mov_b64 exec, -1")
    A.label(f"L{name}_nokv")
    A.label(f"L{name}_fin")
    if prof:
        I("s_waitcnt vmcnt(0)")
        I(f"s_memtime s[76:77]"); I(f"s_memrealtime s[78:79]"); I("s_waitcnt lgkmcnt(0)")
        I("s_lshl_b32 s80, s2, 3"); I("s_add_u32 s80, s80, s30"); I("s_lshl_b32 s80, s80, 7"); I(f"s_add_u32 s80, s80, {PROF}")
        for k in range(20): I(f"v_mov_b32 v{k}, s{60+k}")
        I("v_mov_b32 v20, 0")
        for k in range(5): I(f"buffer_store_dwordx4 v[{4*k}:{4*k+3}], v20, s[16:19], s80 offen offset:{16*k}")
    A.label(f"L{name}_end")
    I("s_endpgm")
    launch = f"; @launch kernel={name} grid=(256,1,1) block=(512,1,1) lds={LDS_BYTES}"
    return launch, A.text(), kernel_desc(name, 184)
```

```python
from asmlib import *
from layout import *

def gen_k2b(name="k2_kernel", prof=False):
    A = Asm(); I = A.i
    PROF = (200 + 1) * MB
    LDS_BYTES = 147456
    PQ = 0
    KZ = 36
    DD = 100
    OF = 132
    AC = 168
    WB = 36
    vM = [[216, 217, 218], [219, 220, 221]]
    vLf = [222, 223, 224]
    vL16 = 225; lane = 226
    XR = 228
    T0 = 234
    A.raw(kernel_header(name))
    def stamp(i):
        if prof:
            I(f"s_memtime s[{60+4*i}:{61+4*i}]"); I(f"s_memrealtime s[{62+4*i}:{63+4*i}]"); I("s_waitcnt lgkmcnt(0)")
    I("s_cmp_ge_u32 s2, 256")
    I(f"s_cbranch_scc1 L{name}_end")
    stamp(0)
    I("s_load_dwordx2 s[4:5], s[0:1], 0")
    I("s_load_dwordx2 s[6:7], s[0:1], 16")
    I("s_load_dwordx4 s[24:27], s[0:1], 32")
    I("s_load_dwordx2 s[22:23], s[0:1], 72")
    I(f"v_lshrrev_b32 v{T0}, 6, v0")
    I(f"v_readfirstlane_b32 s30, v{T0}")
    I(f"v_and_b32 v{lane}, 63, v0")
    I(f"v_lshlrev_b32 v{vL16}, 4, v{lane}")
    I("s_waitcnt lgkmcnt(0)")
    I("s_mov_b32 s16, s22"); I("s_mov_b32 s17, s23"); I(f"s_mov_b32 s18, {WS_BYTES}"); I("s_mov_b32 s19, 0x20000")
    I("s_cmp_lt_u32 s2, 64")
    I(f"s_cbranch_scc1 L{name}_cs")
    I("s_sub_u32 s3, s2, 64")
    I("s_mov_b32 s8, s4"); I("s_mov_b32 s9, s5"); I(f"s_mov_b32 s10, {S*D*2}"); I("s_mov_b32 s11, 0x20000")
    I("s_mov_b32 s12, s6"); I("s_mov_b32 s13, s7"); I(f"s_mov_b32 s14, {D*D*2}"); I("s_mov_b32 s15, 0x20000")
    I("s_mul_hi_u32 s32, s3, 0x2AAAAAAB")
    I("s_mul_i32 s33, s32, 6"); I("s_sub_u32 s33, s3, s33")
    I("s_and_b32 s41, s30, 1")
    I("s_lshr_b32 s39, s30, 1")
    I("s_lshl_b32 s35, s32, 1"); I("s_add_u32 s35, s35, s41")
    I("s_lshl_b32 s40, s35, 2"); I("s_add_u32 s40, s40, s39"); I("s_mul_i32 s40, s40, 9216"); I(f"s_add_u32 s40, s40, {PQF}")
    for k in range(9):
        if k in (4, 8): I("s_add_u32 s40, s40, 4096")
        I(f"buffer_load_dwordx4 v[{PQ+4*k}:{PQ+4*k+3}], v{vL16}, s[16:19], s40 offen offset:{1024*(k % 4)}", tag=("PQ", k))
    r_, p_, t = T0, T0+1, T0+2
    vW = T0 + 3
    I(f"v_lshrrev_b32 v{r_}, 4, v{lane}")
    I(f"v_bfe_u32 v{p_}, v{lane}, 2, 2")
    I(f"v_xor_b32 v{p_}, v{p_}, v{r_}")
    I(f"v_and_b32 v{t}, 3, v{lane}")
    I(f"v_lshl_add_u32 v{p_}, v{p_}, 2, v{t}")
    I(f"v_mul_u32_u24 v{r_}, 1152, v{r_}")
    I(f"v_lshl_add_u32 v{vW}, v{p_}, 4, v{r_}")
    I("s_mul_i32 s42, s33, 192"); I("s_and_b32 s43, s42, 0xffffff80"); I("s_sub_u32 s42, s42, s43")
    I(f"s_mul_i32 s44, s30, {4*1152}"); I("s_add_u32 s44, s44, s43")
    I("s_lshl_b32 s45, s30, 10")
    for x in range(18):
        I(f"s_add_u32 m0, s45, {8192*x}")
        I(f"buffer_load_dwordx4 v{vW}, s[12:15], s44 offen lds", tag="W")
        I(f"s_add_u32 s44, s44, {32*1152}")
    I(f"v_and_b32 v{T0}, 31, v{lane}"); I(f"v_mul_u32_u24 v{T0}, 1152, v{T0}")
    I(f"v_lshrrev_b32 v{T0+1}, 5, v{lane}"); I(f"v_lshl_add_u32 v{T0}, v{T0+1}, 3, v{T0}")
    I(f"s_mul_i32 s46, s35, {32*1152}"); I("s_mul_i32 s47, s33, 192"); I("s_add_u32 s46, s46, s47"); I("s_mul_i32 s47, s39, 48"); I("s_add_u32 s46, s46, s47")
    for k in range(3):
        I(f"buffer_load_dwordx2 v[{XR+2*k}:{XR+2*k+1}], v{T0}, s[8:11], s46 offen offset:{16*k}", tag="XR")
    hf, grp, r_, c4, base, t = T0, T0+1, T0+2, T0+4, T0+5, T0+6
    I(f"v_lshrrev_b32 v{hf}, 5, v{lane}"); I(f"v_bfe_u32 v{grp}, v{lane}, 4, 1"); I(f"v_bfe_u32 v{r_}, v{lane}, 2, 2"); I(f"v_and_b32 v{c4}, 3, v{lane}")
    I(f"v_lshlrev_b32 v{base}, 5, v{grp}"); I(f"v_lshl_add_u32 v{base}, v{c4}, 3, v{base}")
    I(f"s_mul_i32 s46, s39, {144*256}"); I(f"v_add_u32 v{base}, s46, v{base}")
    I("s_lshr_b32 s42, s42, 6")
    for par in range(2):
        for c in range(3):
            I(f"v_add_u32 v{t}, {2*par}, v{r_}"); I(f"v_and_b32 v{t}, 3, v{t}")
            I(f"s_add_u32 s47, s42, {c}")
            I(f"v_xor_b32 v{t}, s47, v{t}")
            I(f"v_lshl_add_u32 v{vM[par][c]}, v{t}, 6, v{base}")
            I(f"v_lshl_add_u32 v{t}, v{hf}, 3, v{r_}")
            I(f"v_lshl_add_u32 v{vM[par][c]}, v{t}, 8, v{vM[par][c]}")
    for c in range(3):
        I(f"v_lshl_add_u32 v{t}, v{r_}, 1, v{hf}"); I(f"v_and_b32 v{t}, 3, v{t}")
        I(f"s_add_u32 s47, s42, {c}")
        I(f"v_xor_b32 v{t}, s47, v{t}")
        I(f"v_lshl_add_u32 v{vLf[c]}, v{t}, 6, v{base}")
        I(f"v_mul_u32_u24 v{t}, 18, v{r_}"); I(f"v_add3_u32 v{t}, v{t}, v{hf}, 16")
        I(f"v_lshl_add_u32 v{vLf[c]}, v{t}, 8, v{vLf[c]}")
    for k in range(48): I(f"v_mov_b32 v{AC+k}, 0")
    I("s_cmp_lg_u32 s30, 0")
    I(f"s_cbranch_scc1 L{name}_nopoll")
    I("s_and_b32 s46, s2, 7"); I("s_lshl_b32 s46, s46, 7"); I(f"s_add_u32 s46, s46, {FL2}")
    I(f"v_lshlrev_b32 v{T0}, 2, v{lane}")
    I("s_mov_b64 exec, 0xffff")
    A.label(f"L{name}_poll")
    A.raw(f"    buffer_load_dword v{T0+1}, v{T0}, s[16:19], s46 offen sc1")
    A.raw("    s_waitcnt vmcnt(0)")
    I(f"v_cmp_ne_u32 vcc, 1, v{T0+1}")
    I("s_nop 4")
    I(f"s_cbranch_vccz L{name}_polld")
    I("s_sleep 2")
    I(f"s_branch L{name}_poll")
    A.label(f"L{name}_polld")
    I("s_mov_b64 exec, -1")
    A.label(f"L{name}_nopoll")
    I("s_barrier")
    I("s_lshl_b32 s40, s39, 14"); I(f"s_add_u32 s40, s40, {KVZ}")
    for k in range(16):
        if k and k % 4 == 0: I("s_add_u32 s40, s40, 4096")
        I(f"buffer_load_dwordx4 v[{KZ+4*k}:{KZ+4*k+3}], v{vL16}, s[16:19], s40 offen offset:{1024*(k % 4)} sc1", tag=("KZ", k))
    stamp(1)
    LO = T0 + 8
    for hd in range(8):
        p = hd >> 1; hh = hd & 1
        d = DD + 16 * (hd & 1)
        b0 = 2 * p + hh; b1 = (2 * p + 1) if hh == 0 else 8
        A.wait_vm(("KZ", 2 * hd + 1))
        I(f"v_mfma_f32_32x32x16_bf16 v[{d}:{d+15}], v[{KZ+8*hd}:{KZ+8*hd+3}], v[{PQ+4*b0}:{PQ+4*b0+3}], 0")
        I(f"v_mfma_f32_32x32x16_bf16 v[{d}:{d+15}], v[{KZ+8*hd+4}:{KZ+8*hd+7}], v[{PQ+4*b1}:{PQ+4*b1+3}], v[{d}:{d+15}]")
        if hd >= 1:
            dp = DD + 16 * ((hd - 1) & 1); hp = hd - 1
            I(f"v_add_f32 v{dp+9}, 0x358637bd, v{dp+9}")
            I(f"v_rcp_f32 v{dp+9}, v{dp+9}")
            for r in range(8): I(f"v_mul_f32 v{dp+r}, v{dp+r}, v{dp+9}")
            I(f"v_mul_f32 v{LO+hp}, v{dp+8}, v{dp+9}")
            for r in range(4): I(f"v_cvt_pk_bf16_f32 v{OF+4*hp+r}, v{dp+2*r}, v{dp+2*r+1}")
    dp = DD + 16; hp = 7
    I(f"v_add_f32 v{dp+9}, 0x358637bd, v{dp+9}")
    I(f"v_rcp_f32 v{dp+9}, v{dp+9}")
    for r in range(8): I(f"v_mul_f32 v{dp+r}, v{dp+r}, v{dp+9}")
    I(f"v_mul_f32 v{LO+hp}, v{dp+8}, v{dp+9}")
    for r in range(4): I(f"v_cvt_pk_bf16_f32 v{OF+4*hp+r}, v{dp+2*r}, v{dp+2*r+1}")
    for r in range(4): I(f"v_cvt_pk_bf16_f32 v{OF+32+r}, v{LO+2*r}, v{LO+2*r+1}")
    A.wait_vm("W")
    I("s_barrier")
    stamp(2)
    NB = 8; PD = 5
    def rd(fi):
        ks = fi // 3; c = fi % 3
        b = WB + 4 * (fi % NB)
        for x in range(2):
            if ks < 8: I(f"ds_read_b64_tr_b16 v[{b+2*x}:{b+2*x+1}], v{vM[ks & 1][c]} offset:{ks*18*256 + x*1024}", tag=("F", fi))
            else: I(f"ds_read_b64_tr_b16 v[{b+2*x}:{b+2*x+1}], v{vLf[c]} offset:{x*72*256}", tag=("F", fi))
    for fi in range(PD): rd(fi)
    for fi in range(27):
        ks = fi // 3; c = fi % 3
        b = WB + 4 * (fi % NB)
        A.wait_lg(("F", fi))
        I(f"v_mfma_f32_32x32x16_bf16 v[{AC+16*c}:{AC+16*c+15}], v[{b}:{b+3}], v[{OF+4*ks}:{OF+4*ks+3}], v[{AC+16*c}:{AC+16*c+15}]")
        if fi + PD < 27: rd(fi + PD)
    I("s_barrier")
    I("s_lshl_b32 s46, s41, 2"); I("s_add_u32 s46, s46, s39"); I("s_mul_i32 s46, s46, 12288")
    I(f"v_add_u32 v{T0}, s46, v{vL16}")
    for a in range(12): I(f"ds_write_b128 v{T0}, v[{AC+4*a}:{AC+4*a+3}] offset:{1024*a}")
    I("s_waitcnt lgkmcnt(0)")
    I("s_barrier")
    I("s_mul_i32 s46, s41, 49152"); I("s_mul_i32 s47, s39, 3072"); I("s_add_u32 s46, s46, s47")
    I(f"v_add_u32 v{T0}, s46, v{vL16}")
    for g in range(4):
        for k in range(3):
            I(f"ds_read_b128 v[{48*0 + 12*g + 4*k}:{12*g + 4*k + 3}], v{T0} offset:{12288*g + 1024*k}", tag=("R", g))
    I("s_waitcnt lgkmcnt(0)")
    for g in range(1, 4):
        for r in range(12): I(f"v_add_f32 v{r}, v{r}, v{12*g+r}")
    A.wait_vm("XR")
    for k in range(3):
        for dw in range(2):
            xr = XR + 2 * k + dw
            I(f"v_lshlrev_b32 v{T0+1}, 16, v{xr}"); I(f"v_and_b32 v{T0+2}, 0xffff0000, v{xr}")
            I(f"v_add_f32 v{4*k+2*dw}, v{4*k+2*dw}, v{T0+1}"); I(f"v_add_f32 v{4*k+2*dw+1}, v{4*k+2*dw+1}, v{T0+2}")
            I(f"v_cvt_pk_bf16_f32 v{16+2*k+dw}, v{4*k+2*dw}, v{4*k+2*dw+1}")
    I(f"v_mov_b32 v24, 0"); I(f"v_mov_b32 v25, 0"); I("s_mov_b32 s47, 0x3f803f80")
    for k in range(6):
        I(f"v_dot2_f32_bf16 v24, v{16+k}, s47, v24"); I(f"v_dot2_f32_bf16 v25, v{16+k}, v{16+k}, v25")
    I("s_nop 4")
    s4, l16 = T0 + 1, T0 + 2
    I(f"v_bfe_u32 v{s4}, v{lane}, 4, 1")
    I(f"v_lshrrev_b32 v{l16}, 5, v{lane}"); I(f"v_and_b32 v{T0+3}, 15, v{lane}"); I(f"v_lshl_add_u32 v{l16}, v{l16}, 4, v{T0+3}")
    I(f"v_mul_u32_u24 v{T0+3}, 18432, v{s4}")
    I(f"v_lshl_add_u32 v{T0+4}, v{l16}, 4, v{T0+3}")
    I(f"v_lshl_add_u32 v{T0+5}, v{l16}, 3, v{T0+3}")
    I(f"s_mul_i32 s48, s35, {2*18432}")
    for k in range(3):
        I(f"s_mul_i32 s49, s39, 3"); I(f"s_add_u32 s49, s49, {k}")
        I("s_lshr_b32 s50, s49, 1"); I("s_mul_i32 s51, s33, 6"); I("s_add_u32 s50, s50, s51")
        I("s_and_b32 s49, s49, 1")
        I("s_lshr_b32 s51, s50, 1"); I("s_lshl_b32 s51, s51, 10"); I("s_lshl_b32 s52, s49, 9"); I("s_add_u32 s51, s51, s52")
        I("s_and_b32 s52, s50, 1"); I("s_lshl_b32 s52, s52, 3"); I("s_add_u32 s51, s51, s52"); I("s_add_u32 s51, s51, s48"); I(f"s_add_u32 s51, s51, {HF}")
        I(f"buffer_store_dwordx2 v[{16+2*k}:{17+2*k}], v{T0+4}, s[16:19], s51 offen")
        I("s_lshl_b32 s51, s50, 9"); I("s_lshl_b32 s52, s49, 8"); I("s_add_u32 s51, s51, s52"); I("s_add_u32 s51, s51, s48"); I(f"s_add_u32 s51, s51, {H4}")
        I(f"buffer_store_dwordx2 v[{16+2*k}:{17+2*k}], v{T0+5}, s[16:19], s51 offen")
    I("s_barrier")
    I("s_lshl_b32 s46, s41, 2"); I("s_add_u32 s46, s46, s39"); I("s_lshl_b32 s46, s46, 9"); I("s_add_u32 s46, s46, 0x18000")
    I(f"v_lshl_add_u32 v{T0}, v{lane}, 3, s46")
    I(f"ds_write_b64 v{T0}, v[24:25]")
    I("s_waitcnt lgkmcnt(0)")
    I("s_barrier")
    I("s_cmp_lg_u32 s39, 0")
    I(f"s_cbranch_scc1 L{name}_fin")
    I(f"v_and_b32 v{T0+1}, 31, v{lane}")
    I("s_lshl_b32 s46, s41, 11"); I("s_add_u32 s46, s46, 0x18000")
    I(f"v_lshl_add_u32 v{T0}, v{T0+1}, 3, s46")
    for k in range(8): I(f"ds_read_b64 v[{2*k}:{2*k+1}], v{T0} offset:{256*k}")
    I("s_waitcnt lgkmcnt(0)")
    for k in range(1, 8):
        I(f"v_add_f32 v0, v0, v{2*k}"); I(f"v_add_f32 v1, v1, v{2*k+1}")
    I(f"v_lshrrev_b32 v{T0+2}, 4, v{T0+1}"); I(f"v_mul_u32_u24 v{T0+2}, 768, v{T0+2}")
    I(f"v_and_b32 v{T0+1}, 15, v{T0+1}"); I(f"v_lshl_add_u32 v{T0+1}, v{T0+1}, 3, v{T0+2}")
    I(f"s_mul_i32 s46, s35, {2*768}"); I("s_lshl_b32 s47, s33, 7"); I("s_add_u32 s46, s46, s47"); I(f"s_add_u32 s46, s46, {ST}")
    I("s_mov_b32 exec_hi, 0")
    I(f"buffer_store_dwordx2 v[0:1], v{T0+1}, s[16:19], s46 offen")
    I("s_mov_b64 exec, -1")
    I(f"s_branch L{name}_fin")
    A.label(f"L{name}_cs")
    A.hist = []
    I("s_cmp_ge_u32 s2, 16")
    I(f"s_cbranch_scc1 L{name}_cs2")
    I("s_mov_b32 s33, s2")
    I("s_lshl_b32 s50, s30, 10")
    I(f"v_add_u32 v{T0}, s50, v{vL16}")
    I(f"s_mul_i32 s55, s33, {16*2880}"); I(f"s_add_u32 s55, s55, {KVP}")
    I(f"v_mov_b32 v{T0+1}, 0x40000000")
    I(f"v_cmp_gt_u32 vcc, 2880, v{T0}")
    I(f"v_cndmask_b32 v{T0+2}, v{T0+1}, v{T0}, vcc")
    I("s_cmp_ge_u32 s30, 3")
    I(f"s_cbranch_scc1 L{name}_nored")
    for k in range(16):
        I(f"buffer_load_dwordx4 v[{4*k}:{4*k+3}], v{T0+2}, s[16:19], s55 offen", tag=("P", k))
        I("s_add_u32 s55, s55, 2880")
    A.label(f"L{name}_nored")
    I("s_lshr_b32 s52, s30, 1"); I("s_and_b32 s53, s30, 1"); I("s_add_u32 s54, s52, s53")
    m_, hf, r_, sl, t, u_, zc = 64, 65, 66, 67, 68, 69, 70
    I(f"v_and_b32 v{m_}, 31, v{lane}"); I(f"v_lshrrev_b32 v{hf}, 5, v{lane}")
    I(f"v_lshrrev_b32 v{r_}, 3, v{m_}"); I(f"v_and_b32 v{t}, 3, v{m_}"); I(f"v_lshl_add_u32 v{r_}, v{r_}, 2, v{t}")
    I(f"v_bfe_u32 v{t}, v{m_}, 2, 1")
    I(f"v_lshl_add_u32 v{sl}, v{t}, 3, v{r_}")
    I(f"v_add_u32 v{u_}, 16, v{t}")
    I(f"v_cmp_eq_u32 vcc, 8, v{r_}"); I(f"v_cndmask_b32 v{sl}, v{sl}, v{u_}, vcc")
    I(f"v_mov_b32 v{u_}, 18")
    I(f"v_cmp_eq_u32 vcc, 9, v{r_}"); I(f"v_cndmask_b32 v{sl}, v{sl}, v{u_}, vcc")
    I(f"v_cmp_gt_u32 s[56:57], 10, v{r_}")
    I(f"v_mov_b32 v{zc}, 2880")
    I("s_mul_i32 s58, s52, 18")
    I("s_and_b32 s51, s33, 3")
    for j in range(8):
        col, ad = 72 + 2*j, 73 + 2*j
        I("s_lshl_b32 s59, s54, 4"); I(f"s_add_u32 s59, s59, {8*(j >> 2) + (j & 3)}")
        I(f"v_lshl_add_u32 v{col}, v{hf}, 2, s59")
        I(f"v_lshl_add_u32 v{t}, v{hf}, 1, {j >> 2}")
        I(f"v_cmp_eq_u32 vcc, s51, v{t}")
        I(f"v_mov_b32 v{u_}, {32 + (j & 3)}"); I(f"v_mov_b32 v{t}, 100")
        I(f"v_cndmask_b32 v{u_}, v{t}, v{u_}, vcc")
        I("s_cmp_eq_u32 s54, 2"); I("s_cselect_b64 vcc, -1, 0")
        I(f"v_cndmask_b32 v{col}, v{col}, v{u_}, vcc")
        I(f"v_mul_u32_u24 v{ad}, 20, v{col}"); I(f"v_add_lshl_u32 v{ad}, v{ad}, v{sl}, 2")
        I(f"v_subrev_u32 v{t}, s58, v{col}")
        I(f"v_cmp_gt_u32 vcc, 18, v{t}")
        I("s_and_b64 vcc, vcc, s[56:57]")
        I(f"v_cndmask_b32 v{ad}, v{zc}, v{ad}, vcc")
    I("s_cmp_ge_u32 s30, 3")
    I(f"s_cbranch_scc1 L{name}_nored2")
    for k in range(1, 16):
        A.wait_vm(("P", k))
        for r in range(4): I(f"v_add_f32 v{r}, v{r}, v{4*k+r}")
    I(f"ds_write_b128 v{T0}, v[0:3] offset:{0x9000}")
    A.label(f"L{name}_nored2")
    I("s_waitcnt lgkmcnt(0)")
    I("s_barrier")
    I("s_cmp_ge_u32 s30, 4")
    I(f"s_cbranch_scc1 L{name}_nob")
    for j in range(8): I(f"ds_read_b32 v{j}, v{73+2*j} offset:{0x9000}")
    I("s_waitcnt lgkmcnt(0)")
    for r in range(4): I(f"v_cvt_pk_bf16_f32 v{8+r}, v{2*r}, v{2*r+1}")
    I("s_lshl_b32 s59, s33, 2"); I("s_add_u32 s59, s59, s30"); I("s_lshl_b32 s59, s59, 10"); I(f"s_add_u32 s59, s59, {KVZ}")
    I(f"buffer_store_dwordx4 v[8:11], v{vL16}, s[16:19], s59 offen sc1")
    I("s_waitcnt vmcnt(0)")
    A.label(f"L{name}_nob")
    I("s_barrier")
    I("s_cmp_lg_u32 s30, 0")
    I(f"s_cbranch_scc1 L{name}_cs2")
    I(f"v_lshlrev_b32 v{T0}, 7, v{lane}"); I(f"v_mov_b32 v{T0+1}, 1")
    I("s_lshl_b32 s59, s33, 2"); I(f"s_add_u32 s59, s59, {FL2}")
    I("s_mov_b64 exec, 0xff")
    I(f"buffer_store_dword v{T0+1}, v{T0}, s[16:19], s59 offen sc1")
    I("s_mov_b64 exec, -1")
    A.label(f"L{name}_cs2")
    A.hist = []
    I("s_mov_b32 s32, s2")
    I("s_cmp_ge_u32 s32, 32")
    I("s_cselect_b32 s8, s26, s24"); I("s_cselect_b32 s9, s27, s25")
    I(f"s_mov_b32 s10, {D*F*2}"); I("s_mov_b32 s11, 0x20000")
    I("s_and_b32 s34, s32, 31")
    I(f"v_mul_u32_u24 v{T0}, 57, v{lane}"); I(f"v_lshrrev_b32 v{T0}, 10, v{T0}")
    I(f"v_mul_u32_u24 v{T0+1}, 18, v{T0}"); I(f"v_sub_u32 v{T0+1}, v{lane}, v{T0+1}")
    I(f"v_mul_u32_u24 v{T0+2}, 9216, v{T0}"); I(f"v_lshl_add_u32 v{T0+2}, v{T0+1}, 4, v{T0+2}")
    I(f"v_mov_b32 v{T0+3}, 0x40000000")
    I(f"v_cmp_gt_u32 vcc, 54, v{lane}")
    I(f"v_cndmask_b32 v{T0+2}, v{T0+3}, v{T0+2}, vcc")
    I(f"s_mul_i32 s40, s30, {3*9216}"); I("s_mul_i32 s41, s34, 288"); I("s_add_u32 s40, s40, s41")
    for it in range(24):
        I(f"buffer_load_dwordx4 v[{4*it}:{4*it+3}], v{T0+2}, s[8:11], s40 offen", tag=("C", it))
        I(f"s_add_u32 s40, s40, {24*9216}")
    for k in range(8): I(f"v_mov_b32 v{100+k}, 0")
    for it in range(24):
        A.wait_vm(("C", it))
        for dw in range(4):
            a, b = 110 + 2 * (dw & 1), 111 + 2 * (dw & 1)
            I(f"v_lshlrev_b32 v{a}, 16, v{4*it+dw}"); I(f"v_and_b32 v{b}, 0xffff0000, v{4*it+dw}")
            I(f"v_add_f32 v{100+2*dw}, v{100+2*dw}, v{a}"); I(f"v_add_f32 v{101+2*dw}, v{101+2*dw}, v{b}")
    I("s_mul_i32 s40, s30, 2304")
    I(f"v_mul_u32_u24 v{T0}, 576, v{T0}"); I(f"v_lshl_add_u32 v{T0}, v{T0+1}, 5, v{T0}"); I(f"v_add_u32 v{T0}, s40, v{T0}")
    I(f"ds_write_b128 v{T0}, v[100:103]"); I(f"ds_write_b128 v{T0}, v[104:107] offset:16")
    I("s_waitcnt lgkmcnt(0)")
    I("s_barrier")
    I("s_cmp_ge_u32 s30, 3")
    I(f"s_cbranch_scc1 L{name}_fin")
    I("s_lshl_b32 s40, s30, 8")
    I(f"v_lshl_add_u32 v{T0}, v{lane}, 2, s40")
    n = 0
    for w in range(8):
        for r3 in range(3):
            I(f"ds_read_b32 v{n}, v{T0} offset:{(w*4 + r3)*576}"); n += 1
    I("s_waitcnt lgkmcnt(0)")
    for k in range(1, 24): I(f"v_add_f32 v0, v0, v{k}")
    I(f"v_mov_b32 v{T0+3}, 0x40000000")
    I(f"v_cmp_gt_u32 vcc, 576, v{T0}")
    I(f"v_cndmask_b32 v{T0}, v{T0+3}, v{T0}, vcc")
    I("s_mul_i32 s40, s32, 576"); I(f"s_add_u32 s40, s40, {CS}")
    I(f"buffer_store_dword v0, v{T0}, s[16:19], s40 offen")
    A.label(f"L{name}_fin")
    if prof:
        I("s_waitcnt vmcnt(0)")
        stamp(3)
        I("s_add_u32 s80, s2, 192"); I("s_and_b32 s80, s80, 255"); I("s_lshl_b32 s80, s80, 3"); I("s_add_u32 s80, s80, s30"); I("s_lshl_b32 s80, s80, 6"); I(f"s_add_u32 s80, s80, {PROF}")
        for k in range(16): I(f"v_mov_b32 v{k}, s{60+k}")
        I("v_mov_b32 v16, 0")
        for k in range(4): I(f"buffer_store_dwordx4 v[{4*k}:{4*k+3}], v16, s[16:19], s80 offen offset:{16*k}")
    A.label(f"L{name}_end")
    I("s_endpgm")
    launch = f"; @launch kernel={name} grid=(256,1,1) block=(512,1,1) lds={LDS_BYTES}"
    return launch, A.text(), kernel_desc(name, 252)
```

```python
from asmlib import *
from layout import *

def gen_k3d(name="k3_kernel", prof=False, exp=""):
    A = Asm(); I = A.i
    PROF = (200 + 2) * MB
    SLOT = 24576; UOFF = 12288; NSLOT = 6
    LCS = SLOT * NSLOT
    LDS_BYTES = LCS + 1152
    PD = 3; NB = 6
    HB = 160
    WB = 208
    vA = [[232, 233, 234, 235], [236, 237, 238, 239]]
    vD = [240, 241, 242]
    vL16 = 243
    vR = 244
    T0 = 252
    A.raw(kernel_header(name))
    def stamp(i):
        if prof:
            I(f"s_memtime s[{60+4*i}:{61+4*i}]"); I(f"s_memrealtime s[{62+4*i}:{63+4*i}]"); I("s_waitcnt lgkmcnt(0)")
    I("s_cmp_ge_u32 s2, 256")
    I(f"s_cbranch_scc1 L{name}_end")
    stamp(0)
    I("s_load_dwordx4 s[4:7], s[0:1], 32")
    I("s_load_dwordx2 s[24:25], s[0:1], 72")
    I("s_load_dwordx2 s[92:93], s[0:1], 48")
    lane = 100
    I(f"v_lshrrev_b32 v{101}, 6, v0")
    I(f"v_readfirstlane_b32 s30, v{101}")
    I(f"v_and_b32 v{lane}, 63, v0")
    I("s_and_b32 s31, s2, 7"); I("s_lshr_b32 s32, s2, 3"); I("s_and_b32 s33, s32, 7"); I("s_lshr_b32 s32, s32, 3")
    I("s_lshl_b32 s34, s31, 2"); I("s_add_u32 s34, s34, s32")
    I("s_and_b32 s41, s30, 3")
    I("s_lshl_b32 s35, s33, 4"); I("s_lshl_b32 s36, s41, 2"); I("s_add_u32 s35, s35, s36")
    I(f"v_lshlrev_b32 v{vL16}, 4, v{lane}")
    I("s_mov_b32 s36, 0xAAAB")
    for x in range(3):
        q, rw, p, t = 102, 103, 104, 105
        I(f"v_add_u32 v{q}, {64*x}, v{lane}")
        I(f"v_mul_lo_u32 v{rw}, v{q}, s36")
        I(f"v_lshrrev_b32 v{rw}, 20, v{rw}")
        I(f"v_mul_u32_u24 v{t}, 24, v{rw}")
        I(f"v_sub_u32 v{p}, v{q}, v{t}")
        I(f"v_and_b32 v{t}, 6, v{rw}")
        I(f"v_xor_b32 v{p}, v{p}, v{t}")
        I(f"v_mul_u32_u24 v{t}, 9216, v{rw}")
        I(f"v_lshl_add_u32 v{vD[x]}, v{p}, 4, v{t}")
    rowv, f, c4, t = 102, 103, 104, 105
    I(f"v_lshrrev_b32 v{rowv}, 2, v{lane}")
    I(f"v_bfe_u32 v{f}, v{lane}, 3, 2")
    I(f"v_and_b32 v{c4}, 3, v{lane}")
    I(f"v_mul_u32_u24 v{rowv}, 384, v{rowv}")
    I(f"v_lshl_add_u32 v{rowv}, v{c4}, 3, v{rowv}")
    I("s_and_b32 s37, s34, 3")
    for m in range(4):
        I(f"s_add_u32 s38, s37, {m}")
        I(f"v_xor_b32 v{t}, s38, v{f}")
        I(f"v_lshl_add_u32 v{vA[0][m]}, v{t}, 5, v{rowv}")
    I("s_waitcnt lgkmcnt(0)")
    I("s_cmp_lt_u32 s30, 4")
    I("s_cselect_b32 s8, s4, s6"); I("s_cselect_b32 s9, s5, s7")
    I(f"s_mov_b32 s10, {D*F*2}"); I("s_mov_b32 s11, 0x20000")
    I("s_mov_b32 s16, s24"); I("s_mov_b32 s17, s25"); I(f"s_mov_b32 s18, {WS_BYTES}"); I("s_mov_b32 s19, 0x20000")
    I("s_mul_i32 s40, s34, 288"); I("s_and_b32 s40, s40, 0xffffff80")
    I(f"s_mul_i32 s42, s41, {8*9216}"); I("s_add_u32 s40, s40, s42")
    I("s_mul_i32 s43, s41, 3072")
    I("s_cmp_lt_u32 s30, 4"); I(f"s_cselect_b32 s44, 0, {UOFF}"); I("s_add_u32 s43, s43, s44")
    def dma_piece(u, x):
        if 'nodma' in exp and u >= 2:
            A.vmq.append(("W", u)); A.vmdone = len(A.vmq) if A.vmdone >= len(A.vmq) - 1 else A.vmdone; return
        I(f"s_add_u32 m0, s43, {1024*x + (u % NSLOT)*SLOT}")
        I(f"buffer_load_dwordx4 v{vD[x]}, s[8:11], s40 offen lds", tag=("W", u))
        if x == 2:
            I(f"s_add_u32 s40, s40, {32*9216}")
    def hload(t, i):
        if 'nohl' in exp and t >= 3:
            A.vmq.append(("H", t, i)); return
        b = HB + 16 * (t % 3) + 4 * i
        I(f"buffer_load_dwordx4 v[{b}:{b+3}], v{vL16}, s[16:19], s{52+i} offen", tag=("H", t, i))
        I(f"s_add_u32 s{52+i}, s{52+i}, 1024")
    for i in range(4):
        I(f"s_add_u32 s{52+i}, s35, {i}")
        I(f"s_mul_i32 s{52+i}, s{52+i}, {18*1024}")
        I(f"s_add_u32 s{52+i}, s{52+i}, {HF}")
    def dma_unit(u):
        for x in range(3): dma_piece(u, x)
    def hloads(t):
        for i in range(4): hload(t, i)
    dma_unit(0); hloads(0)
    I("s_cmp_lg_u32 s41, 0")
    I(f"s_cbranch_scc1 L{name}_nocs")
    I("s_mul_i32 s47, s34, 576")
    I("s_lshr_b32 s46, s30, 2")
    I(f"s_mul_i32 s48, s46, {4608*4}")
    I("s_add_u32 s47, s47, s48")
    I(f"s_add_u32 s47, s47, {CS}")
    I("s_mul_i32 s46, s46, 576")
    I(f"s_add_u32 m0, s46, {LCS}")
    I("s_mov_b32 exec_hi, 0xf")
    A.raw(f"    buffer_load_dwordx4 v{vL16}, s[16:19], s47 offen lds")
    I("s_mov_b64 exec, -1")
    A.label(f"L{name}_nocs")
    A.wait_vm(("W", 0))
    I("s_barrier")
    I("s_cmp_ge_u32 s30, 4")
    I(f"s_cbranch_scc1 L{name}_half1")
    BODY = 6
    saved = (list(A.vmq), A.vmdone, list(A.lgq), A.lgdone)
    for ch in range(2):
        if ch == 1:
            A.label(f"L{name}_half1")
            A.vmq, A.vmdone, A.lgq, A.lgdone = list(saved[0]), saved[1], list(saved[2]), saved[3]
            A.hist = []
        c0 = 0 if ch == 0 else 5
        nc = 5 if ch == 0 else 4
        NF = 2 * nc
        def acc(i, c, mat):
            k = (i * NF + (c - c0) * 2 + mat) * 4
            return f"v[{k}:{k+3}]"
        def rd(fi):
            tt = fi // NF; c = c0 + (fi % NF) // 2; mat = fi & 1
            if tt >= 18: return
            b = WB + 4 * (fi % NB)
            for x in range(2):
                I(f"ds_read_b64_tr_b16 v[{b+2*x}:{b+2*x+1}], v{vA[tt & 1][c & 3]} offset:{128*(c >> 2) + x*6144 + mat*UOFF}", tag=("F", fi))
        for fi in range(PD): rd(fi)
        stamp(1)
        mid = NF // 2 - 1
        nextW = 1; nextH = 1
        for tt in range(18):
            wl = []
            if tt == 0:
                dma_unit(1); nextW = 2
                hloads(1); nextH = 2
            while nextW <= min(17, tt + 5) and len(wl) < (2 if tt < 4 else 1): wl.append(nextW); nextW += 1
            pieces = [(u, x) for u in wl for x in range(3)]
            for fr in range(NF):
                fi = tt * NF + fr; c = c0 + fr // 2; mat = fr & 1
                b = WB + 4 * (fi % NB)
                A.wait_lg(("F", fi))
                for i in range(4):
                    hb = HB + 16 * (tt % 3) + 4 * i
                    if fr == 0 and not ('nohl' in exp and tt >= 3) and 'nodma' not in exp: A.wait_vm(("H", tt, i))
                    cc = "0" if tt == 0 else acc(i, c, mat)
                    I(f"v_mfma_f32_16x16x32_bf16 {acc(i,c,mat)}, v[{b}:{b+3}], v[{hb}:{hb+3}], {cc}")
                    if i == 0: rd(fi + PD)
                if fr == 0 and nextH <= min(17, tt + 2):
                    hloads(nextH); nextH += 1
                if fr == mid and tt < 17:
                    if 'nodma' not in exp: A.wait_vm(("W", tt + 1))
                    if 'nobar' not in exp: I("s_barrier")
                    dl = SLOT if (tt % NSLOT) < NSLOT - 1 else -(NSLOT - 1) * SLOT
                    for m in range(4): I(f"v_add_u32 v{vA[(tt+1) & 1][m]}, {dl}, v{vA[tt & 1][m]}")
                if fr > mid:
                    k = 2 if len(pieces) > NF - fr else 1
                    for _ in range(k):
                        if pieces: dma_piece(*pieces.pop(0))
                if tt == 16 and fr == 1:
                    I(f"v_lshrrev_b32 v{T0+1}, 1, v{vL16}")
                    I(f"s_mul_i32 s47, s35, 768"); I(f"s_add_u32 s47, s47, {ST}")
                    for k in range(16): I(f"v_mov_b32 v{HB+k}, 0")
                    for i in range(4):
                        I(f"buffer_load_dwordx2 v[{HB+4*i}:{HB+4*i+1}], v{T0+1}, s[16:19], s47 offen offset:{768*i}", tag="ST")
                    I("s_mov_b32 exec_hi, 0")
                    for i in range(4):
                        I(f"buffer_load_dwordx2 v[{HB+4*i+2}:{HB+4*i+3}], v{T0+1}, s[16:19], s47 offen offset:{768*i+512}", tag="ST")
                    I("s_mov_b64 exec, -1")
            assert not pieces
        stamp(2)
        A.wait_vm("ST")
        I("s_lshl_b32 s46, s2, 3"); I("s_add_u32 s46, s46, s30"); I("s_mul_i32 s48, s46, 2688")
        I(f"v_lshlrev_b32 v{T0+2}, 3, v{vL16}")
        I("s_mov_b32 s24, s92"); I("s_mov_b32 s25, s93"); I("s_mov_b32 s26, 0x%x" % (D*F*2)); I("s_mov_b32 s27, 0x20000")
        I("s_mov_b32 exec_hi, 0"); I("s_mov_b32 exec_lo, 0x1fffff")
        I(f"buffer_load_dword v{T0+3}, v{T0+2}, s[24:27], s48 offen", tag="PF")
        I("s_mov_b64 exec, -1")
        I(f"s_mov_b32 s49, 0x3AE38E39")
        q = HB
        for i in range(4):
            I(f"v_add_f32 v{q+4*i}, v{q+4*i}, v{q+4*i+2}"); I(f"v_add_f32 v{q+4*i+1}, v{q+4*i+1}, v{q+4*i+3}")
        for op in ("v_permlane16_swap_b32", "v_permlane32_swap_b32"):
            for i in range(4):
                I(f"v_mov_b32 v{q+4*i+2}, v{q+4*i}"); I(f"v_mov_b32 v{q+4*i+3}, v{q+4*i+1}")
            for i in range(4):
                I(f"{op} v{q+4*i}, v{q+4*i+2}"); I(f"{op} v{q+4*i+1}, v{q+4*i+3}")
            I("s_nop 1")
            for i in range(4):
                I(f"v_add_f32 v{q+4*i}, v{q+4*i}, v{q+4*i+2}"); I(f"v_add_f32 v{q+4*i+1}, v{q+4*i+1}, v{q+4*i+3}")
        for i in range(4):
            m_, e_ = q + 4 * i, q + 4 * i + 1
            I(f"v_mul_f32 v{m_}, s49, v{m_}"); I(f"v_mul_f32 v{e_}, s49, v{e_}")
            I(f"v_fma_f32 v{e_}, -v{m_}, v{m_}, v{e_}")
            I(f"v_max_f32 v{e_}, 0, v{e_}")
            I(f"v_add_f32 v{e_}, 0x3727c5ac, v{e_}")
            I(f"v_rsq_f32 v{vR+2*i}, v{e_}")
            I(f"v_mul_f32 v{vR+2*i+1}, v{m_}, v{vR+2*i}")
            I(f"v_sub_f32 v{vR+2*i+1}, 0, v{vR+2*i+1}")
        I("s_mov_b32 s49, 0xbfb8aa3b")
        I("s_mul_i32 s56, s34, 9")
        vcs = T0
        I(f"v_lshrrev_b32 v{vcs}, 8, v{vL16}")
        I(f"v_lshlrev_b32 v{vcs}, 4, v{vcs}")
        I(f"v_add_u32 v{vcs}, {LCS}, v{vcs}")
        CSR = HB
        E = HB + 16
        for i in range(4):
            I(f"s_add_u32 s{52+i}, s35, {i}")
            I(f"s_mul_i32 s{52+i}, s{52+i}, 147456")
            I(f"s_add_u32 s{52+i}, s{52+i}, {ACT}")
        n = 0
        def csload(c):
            cb = CSR + 8 * (c & 1)
            I(f"ds_read_b128 v[{cb}:{cb+3}], v{vcs} offset:{64*c}", tag=("CS", c))
            I(f"ds_read_b128 v[{cb+4}:{cb+7}], v{vcs} offset:{576 + 64*c}", tag=("CS", c))
        csload(c0)
        for c in range(c0, c0 + nc):
            if c + 1 < c0 + nc: csload(c + 1)
            A.wait_lg(("CS", c))
            cb = CSR + 8 * (c & 1)
            I(f"s_add_u32 s58, s56, {c}")
            I("s_lshr_b32 s59, s58, 1"); I("s_lshl_b32 s59, s59, 10")
            I("s_and_b32 s58, s58, 1"); I("s_lshl_b32 s58, s58, 3")
            I("s_add_u32 s59, s59, s58")
            for i in range(4):
                e = E + 14 * (n % 4); n += 1
                k = (i * NF + (c - c0) * 2) * 4
                g = k; u = k + 4
                ra, rb = vR + 2 * i, vR + 2 * i + 1
                for r in range(8): I(f"v_mul_f32 v{e+r}, v{rb}, v{cb+r}")
                for r in range(8): I(f"v_fma_f32 v{k+r}, v{k+r}, v{ra}, v{e+r}")
                for r in range(4): I(f"v_mul_f32 v{e+r}, s49, v{g+r}")
                for r in range(4): I(f"v_exp_f32 v{e+r}, v{e+r}")
                for r in range(4): I(f"v_mul_f32 v{e+4+r}, v{g+r}, v{u+r}")
                for r in range(4): I(f"v_add_f32 v{e+r}, 1.0, v{e+r}")
                for r in range(4): I(f"v_rcp_f32 v{e+r}, v{e+r}")
                I(f"s_add_u32 s57, s59, s{52+i}")
                for r in range(4): I(f"v_mul_f32 v{e+4+r}, v{e+4+r}, v{e+r}")
                for r in range(2): I(f"v_cvt_pk_bf16_f32 v{e+8+r}, v{e+4+2*r}, v{e+5+2*r}")
                I(f"buffer_store_dwordx2 v[{e+8}:{e+9}], v{vL16}, s[16:19], s57 offen")
        if prof:
            I("s_waitcnt vmcnt(0)")
            stamp(3)
            I("s_lshl_b32 s96, s2, 3"); I("s_add_u32 s96, s96, s30"); I("s_lshl_b32 s96, s96, 7"); I(f"s_add_u32 s96, s96, {PROF}")
            for k in range(32): I(f"v_mov_b32 v{k}, s{60+k}")
            I("v_mov_b32 v32, 0")
            for k in range(8): I(f"buffer_store_dwordx4 v[{4*k}:{4*k+3}], v32, s[16:19], s96 offen offset:{16*k}")
        if ch == 0: I("s_endpgm")
    A.label(f"L{name}_end")
    I("s_endpgm")
    launch = f"; @launch kernel={name} grid=(256,1,1) block=(512,1,1) lds={LDS_BYTES}"
    return launch, A.text(), kernel_desc(name, 256)
```

```python
from asmlib import *
from layout import *

def gen_k4b(name="k4_kernel", prof=False, exp=""):
    A = Asm(); I = A.i
    PROF = 203 * MB
    SLOT = 24576; UOFF = 12288; NSLOT = 6
    LDS_BYTES = SLOT * NSLOT
    PD = 4; NB = 6
    HD = 6
    AB = 72; WB = 120
    vA = [[144, 145, 146, 147], [148, 149, 150, 151]]
    vD = [152, 153, 154]
    vL16 = 207
    T0 = 208
    A.raw(kernel_header(name))
    def stamp(i):
        if prof:
            I(f"s_memtime s[{60+4*i}:{61+4*i}]"); I(f"s_memrealtime s[{62+4*i}:{63+4*i}]"); I("s_waitcnt lgkmcnt(0)")
    I("s_cmp_ge_u32 s2, 256")
    I(f"s_cbranch_scc1 L{name}_end")
    stamp(0)
    I("s_load_dwordx2 s[4:5], s[0:1], 48")
    I("s_load_dwordx4 s[20:23], s[0:1], 56")
    I("s_load_dwordx2 s[24:25], s[0:1], 72")
    lane = T0
    I(f"v_lshrrev_b32 v{T0+1}, 6, v0")
    I(f"v_readfirstlane_b32 s30, v{T0+1}")
    I(f"v_and_b32 v{lane}, 63, v0")
    I("s_and_b32 s31, s2, 7"); I("s_lshr_b32 s32, s2, 3")
    I("s_lshr_b32 s33, s31, 1")
    I("s_and_b32 s34, s31, 1"); I("s_lshl_b32 s34, s34, 1"); I("s_and_b32 s36, s32, 1"); I("s_add_u32 s34, s34, s36")
    I("s_lshr_b32 s32, s32, 1")
    I("s_and_b32 s41, s30, 3"); I("s_lshr_b32 s39, s30, 2")
    I("s_lshl_b32 s35, s32, 3"); I("s_lshl_b32 s36, s41, 1"); I("s_add_u32 s35, s35, s36")
    I(f"v_lshlrev_b32 v{vL16}, 4, v{lane}")
    I("s_mov_b32 s36, 0xAAAB")
    for x in range(3):
        q, rw, p, t = T0+2, T0+3, T0+4, T0+5
        I(f"v_add_u32 v{q}, {64*x}, v{lane}")
        I(f"v_mul_lo_u32 v{rw}, v{q}, s36")
        I(f"v_lshrrev_b32 v{rw}, 20, v{rw}")
        I(f"v_mul_u32_u24 v{t}, 24, v{rw}")
        I(f"v_sub_u32 v{p}, v{q}, v{t}")
        I(f"v_and_b32 v{t}, 6, v{rw}")
        I(f"v_xor_b32 v{p}, v{p}, v{t}")
        I(f"v_mul_u32_u24 v{t}, 1152, v{rw}")
        I(f"v_lshl_add_u32 v{vD[x]}, v{p}, 4, v{t}")
    I("s_mul_i32 s40, s33, 1152"); I("s_mul_i32 s42, s39, 576"); I("s_add_u32 s40, s40, s42")
    I("s_lshl_b32 s42, s41, 3"); I("s_add_u32 s40, s40, s42")
    I("s_mul_i32 s40, s40, 1152")
    I("s_lshl_b32 s42, s34, 8"); I("s_add_u32 s40, s40, s42")
    I("s_mul_i32 s43, s41, 3072")
    I(f"s_mul_i32 s44, s39, {UOFF}"); I("s_add_u32 s43, s43, s44")
    I("s_mul_i32 s46, s33, 36"); I("s_mul_i32 s47, s39, 18"); I("s_add_u32 s46, s46, s47")
    for i in range(2):
        I(f"s_add_u32 s{52+i}, s35, {i}")
        I(f"s_mul_i32 s{52+i}, s{52+i}, 144")
        I(f"s_add_u32 s{52+i}, s{52+i}, s46")
        I(f"s_lshl_b32 s{52+i}, s{52+i}, 10")
        I(f"s_add_u32 s{52+i}, s{52+i}, {ACT}")
    I("s_waitcnt lgkmcnt(0)")
    I("s_mov_b32 s8, s4"); I("s_mov_b32 s9, s5"); I(f"s_mov_b32 s10, {D*F*2}"); I("s_mov_b32 s11, 0x20000")
    I("s_mov_b32 s16, s24"); I("s_mov_b32 s17, s25"); I(f"s_mov_b32 s18, {WS_BYTES}"); I("s_mov_b32 s19, 0x20000")
    def dma_piece(u, x):
        I(f"s_add_u32 m0, s43, {1024*x + (u % NSLOT)*SLOT}")
        I(f"buffer_load_dwordx4 v{vD[x]}, s[8:11], s40 offen lds", tag=("W", u))
        if x == 2: I(f"s_add_u32 s40, s40, {32*1152}")
    def dma_unit(u):
        for x in range(3): dma_piece(u, x)
    def aload(t):
        for i in range(2):
            b = AB + 8 * (t % HD) + 4 * i
            I(f"buffer_load_dwordx4 v[{b}:{b+3}], v{vL16}, s[16:19], s{52+i} offen", tag=("H", t, i))
            I(f"s_add_u32 s{52+i}, s{52+i}, 1024")
    dma_unit(0); aload(0); dma_unit(1); aload(1)
    I("s_mov_b32 s12, s20"); I("s_mov_b32 s13, s21"); I(f"s_mov_b32 s14, {S*D*2}"); I("s_mov_b32 s15, 0x20000")
    rowv, f, c4, t = T0+2, T0+3, T0+4, T0+5
    I(f"v_lshrrev_b32 v{rowv}, 2, v{lane}")
    I(f"v_bfe_u32 v{f}, v{lane}, 3, 2")
    I(f"v_and_b32 v{c4}, 3, v{lane}")
    I(f"v_mul_u32_u24 v{rowv}, 384, v{rowv}")
    I(f"v_lshl_add_u32 v{rowv}, v{c4}, 3, v{rowv}")
    I(f"s_mul_i32 s38, s39, {UOFF}")
    I(f"v_add_u32 v{rowv}, s38, v{rowv}")
    for m in range(4):
        I(f"s_add_u32 s38, s34, {m}")
        I(f"v_xor_b32 v{t}, s38, v{f}")
        I(f"v_lshl_add_u32 v{vA[0][m]}, v{t}, 5, v{rowv}")
    A.wait_vm(("W", 0))
    I("s_barrier")
    def acc(i, c):
        k = (i * 9 + c) * 4
        return f"v[{k}:{k+3}]"
    def rd(fi):
        tt = fi // 9; c = fi % 9
        if tt >= 18: return
        b = WB + 4 * (fi % NB)
        for x in range(2):
            I(f"ds_read_b64_tr_b16 v[{b+2*x}:{b+2*x+1}], v{vA[tt & 1][c & 3]} offset:{128*(c >> 2) + x*6144}", tag=("F", fi))
    for fi in range(PD): rd(fi)
    stamp(1)
    nextW = 2; nextA = 2
    for tt in range(18):
        wl = []
        lim = min(17, tt + 5)
        nW = 2 if tt < 4 else 1
        while nextW <= lim and len(wl) < nW: wl.append(nextW); nextW += 1
        al = []
        limA = min(17, tt + 5)
        nA = 2 if tt < 4 else 1
        while nextA <= limA and len(al) < nA: al.append(nextA); nextA += 1
        pieces = [(u, x) for u in wl for x in range(3)]
        for c in range(9):
            fi = tt * 9 + c
            b = WB + 4 * (fi % NB)
            A.wait_lg(("F", fi))
            for i in range(2):
                hb = AB + 8 * (tt % HD) + 4 * i
                if c == 0: A.wait_vm(("H", tt, i))
                cc = "0" if tt == 0 else acc(i, c)
                I(f"v_mfma_f32_16x16x32_bf16 {acc(i,c)}, v[{b}:{b+3}], v[{hb}:{hb+3}], {cc}")
                if i == 0: rd(fi + PD)
            if c == 1 and al: aload(al.pop(0))
            if c == 3 and tt < 17:
                A.wait_vm(("W", tt + 1))
                I("s_barrier")
                dl = SLOT if (tt % NSLOT) < NSLOT - 1 else -(NSLOT - 1) * SLOT
                for m in range(4): I(f"v_add_u32 v{vA[(tt+1) & 1][m]}, {dl}, v{vA[tt & 1][m]}")
            if c >= 4:
                k = 2 if len(pieces) > 8 - c + 1 else 1
                for _ in range(k):
                    if pieces: dma_piece(*pieces.pop(0))
            if c == 8 and al: aload(al.pop(0))
        assert not pieces and not al
    stamp(2)
    I("s_barrier")
    I(f"s_mul_i32 s46, s30, 9216")
    I(f"v_add_u32 v{T0+1}, s46, v{vL16}")
    I("s_xor_b32 s47, s30, 4"); I(f"s_mul_i32 s47, s47, 9216")
    I(f"v_add_u32 v{T0+2}, s47, v{vL16}")
    I("s_cmp_eq_u32 s39, 0")
    I(f"s_cbranch_scc1 L{name}_kh0")
    for c in range(9): I(f"ds_write_b128 v{T0+1}, v[{4*c}:{4*c+3}] offset:{1024*c}")
    A.flush_hazards()
    for k in range(36): I(f"v_mov_b32 v{k}, v{36+k}")
    I(f"s_branch L{name}_khj")
    A.label(f"L{name}_kh0")
    for c in range(9): I(f"ds_write_b128 v{T0+1}, v[{36+4*c}:{36+4*c+3}] offset:{1024*c}")
    A.label(f"L{name}_khj")
    I("s_waitcnt lgkmcnt(0)")
    I("s_barrier")
    for c in range(9): I(f"ds_read_b128 v[{36+4*c}:{36+4*c+3}], v{T0+2} offset:{1024*c}", tag=("X", c))
    I("s_lshl_b32 s46, s32, 2"); I("s_add_u32 s46, s46, s34")
    I("s_lshl_b32 s47, s46, 3"); I("s_add_u32 s47, s47, s30"); I("s_mul_i32 s47, s47, 9216"); I(f"s_add_u32 s47, s47, {SLAB}")
    I(f"s_mul_i32 s48, s33, {64*8*9216}"); I("s_add_u32 s48, s48, s47")
    I("s_sub_u32 s54, s33, s30"); I("s_and_b32 s54, s54, 3")
    I("s_add_u32 s49, s35, s39"); I("s_mul_i32 s49, s49, 36"); I("s_mul_i32 s50, s34, 9"); I("s_add_u32 s49, s49, s50")
    I("s_lshl_b32 s49, s49, 9"); I(f"s_add_u32 s49, s49, {H4}")
    I(f"v_lshrrev_b32 v{T0+3}, 1, v{vL16}")
    HR = 72
    n = [0]
    for c in range(9):
        A.wait_lg(("X", c))
        for r in range(4): I(f"v_add_f32 v{4*c+r}, v{4*c+r}, v{36+4*c+r}")
        n[0] += 1
        I(f"s_cmp_eq_u32 s54, {c & 3}")
        I(f"s_cbranch_scc1 L{name}_own{n[0]}")
        I(f"s_add_u32 s50, s48, {1024*c}")
        I(f"buffer_store_dwordx4 v[{4*c}:{4*c+3}], v{vL16}, s[16:19], s50 offen sc1")
        I(f"s_branch L{name}_ownj{n[0]}")
        A.label(f"L{name}_own{n[0]}")
        I(f"s_add_u32 s50, s49, {512*c}")
        I(f"buffer_load_dwordx2 v[{HR+2*c}:{HR+2*c+1}], v{T0+3}, s[16:19], s50 offen")
        A.label(f"L{name}_ownj{n[0]}")
    I(f"v_lshrrev_b32 v200, 4, v{vL16}")
    I(f"v_and_b32 v201, 15, v200"); I(f"v_lshrrev_b32 v200, 4, v200")
    I(f"v_mul_u32_u24 v201, 1152, v201"); I(f"v_lshl_add_u32 v201, v200, 3, v201")
    I("s_add_u32 s49, s35, s39"); I(f"s_mul_i32 s49, s49, {16*1152}"); I("s_mul_i32 s50, s34, 288"); I("s_add_u32 s49, s49, s50")
    stamp(3)
    I("s_waitcnt vmcnt(0)")
    stamp(4)
    I("s_barrier")
    I("s_cmp_lg_u32 s30, 0")
    I(f"s_cbranch_scc1 L{name}_noat")
    I("s_lshl_b32 s50, s46, 7"); I(f"s_add_u32 s50, s50, {FLG}")
    I("s_lshl_b32 s51, s33, 2")
    I(f"v_mov_b32 v{T0+4}, s51"); I(f"v_mov_b32 v{T0+5}, 1"); I(f"v_mov_b32 v{T0+6}, 0")
    I("s_mov_b64 exec, 1")
    I(f"buffer_store_dword v{T0+5}, v{T0+4}, s[16:19], s50 offen sc1")
    A.label(f"L{name}_poll")
    I(f"buffer_load_dwordx4 v[196:199], v{T0+6}, s[16:19], s50 offen sc1")
    I("s_waitcnt vmcnt(0)")
    I("v_and_b32 v196, v196, v197"); I("v_and_b32 v198, v198, v199"); I("v_and_b32 v196, v196, v198")
    I(f"v_readfirstlane_b32 s51, v196")
    I("s_cmp_lg_u32 s51, 1")
    I(f"s_cbranch_scc1 L{name}_poll")
    A.label(f"L{name}_go")
    I("s_mov_b64 exec, -1")
    A.label(f"L{name}_noat")
    I("s_barrier")
    stamp(5)
    LB = 92
    for c in range(9):
        n[0] += 1
        I(f"s_cmp_lg_u32 s54, {c & 3}")
        I(f"s_cbranch_scc1 L{name}_sk{n[0]}")
        for d in range(1, 4):
            I(f"s_add_u32 s50, s33, {d}"); I("s_and_b32 s50, s50, 3"); I(f"s_mul_i32 s50, s50, {64*8*9216}"); I("s_add_u32 s50, s50, s47")
            I(f"s_add_u32 s50, s50, {1024*c}")
            b = LB + 12 * (c >> 2) + 4 * (d - 1)
            I(f"buffer_load_dwordx4 v[{b}:{b+3}], v{vL16}, s[16:19], s50 offen sc1")
        A.label(f"L{name}_sk{n[0]}")
    I("s_waitcnt vmcnt(0)")
    stamp(6)
    for c in range(9):
        n[0] += 1
        I(f"s_cmp_lg_u32 s54, {c & 3}")
        I(f"s_cbranch_scc1 L{name}_sk{n[0]}")
        for d in range(1, 4):
            b = LB + 12 * (c >> 2) + 4 * (d - 1)
            for r in range(4): I(f"v_add_f32 v{4*c+r}, v{4*c+r}, v{b+r}")
        h0, h1 = HR + 2 * c, HR + 2 * c + 1
        I(f"v_lshlrev_b32 v202, 16, v{h0}"); I(f"v_and_b32 v203, 0xffff0000, v{h0}")
        I(f"v_lshlrev_b32 v204, 16, v{h1}"); I(f"v_and_b32 v205, 0xffff0000, v{h1}")
        for r in range(4): I(f"v_add_f32 v{4*c+r}, v{4*c+r}, v{202+r}")
        I(f"v_cvt_pk_bf16_f32 v{4*c}, v{4*c}, v{4*c+1}"); I(f"v_cvt_pk_bf16_f32 v{4*c+1}, v{4*c+2}, v{4*c+3}")
        I(f"buffer_store_dwordx2 v[{4*c}:{4*c+1}], v201, s[12:15], s49 offen offset:{32*c}")
        A.label(f"L{name}_sk{n[0]}")
    if prof:
        I("s_waitcnt vmcnt(0)")
        stamp(7)
        I("s_lshl_b32 s96, s2, 3"); I("s_add_u32 s96, s96, s30"); I("s_lshl_b32 s96, s96, 7"); I(f"s_add_u32 s96, s96, {PROF}")
        for k in range(32): I(f"v_mov_b32 v{k}, s{60+k}")
        I("v_mov_b32 v32, 0")
        for k in range(8): I(f"buffer_store_dwordx4 v[{4*k}:{4*k+3}], v32, s[16:19], s96 offen offset:{16*k}")
    A.label(f"L{name}_end")
    I("s_endpgm")
    launch = f"; @launch kernel={name} grid=(256,1,1) block=(512,1,1) lds={LDS_BYTES}"
    return launch, A.text(), kernel_desc(name, 216)
```

```python
from asmlib import *
from layout import *

def phi2(I, regs, tmp, s_log2e):
    for r, t in zip(regs, tmp): I(f"v_min_f32 v{t}, 0, v{r}")
    for r, t in zip(regs, tmp): I(f"v_mul_f32 v{t}, {s_log2e}, v{t}")
    for r, t in zip(regs, tmp): I(f"v_exp_f32 v{t}, v{t}")
    for r, t in zip(regs, tmp): I(f"v_max_f32 v{r}, 0, v{r}")
    for r, t in zip(regs, tmp): I(f"v_add_f32 v{t}, 0x358637bd, v{t}")
    for r, t in zip(regs, tmp): I(f"v_add_f32 v{r}, v{r}, v{t}")

def gen_k1c(name="k1_kernel", prof=False, exp=""):
    A = Asm(); I = A.i
    PROF = 200 * MB
    SLOT = 32768; NSLOT = 5; WOFF = 16384
    MISC = 0x6000 + 0x4000
    STP = MISC
    CSP = MISC + 4096
    FIN = MISC + 8192
    CSF = MISC + 10240
    LDS_BYTES = SLOT * NSLOT
    AC = 0
    XB = 32
    WB = 48
    SA = 80
    vX = [88, 89, 90, 91]
    vT = [92, 93]
    vXD, vWD = 94, 95
    vL16, lane = 96, 97
    T0 = 100
    A.raw(kernel_header(name))
    def stamp(i):
        if prof:
            I(f"s_memtime s[{60+4*i}:{61+4*i}]"); I(f"s_memrealtime s[{62+4*i}:{63+4*i}]"); I("s_waitcnt lgkmcnt(0)")
    I("s_cmp_ge_u32 s2, 256")
    I(f"s_cbranch_scc1 L{name}_end")
    stamp(0)
    I("s_load_dwordx4 s[4:7], s[0:1], 0")
    I("s_load_dwordx4 s[20:23], s[0:1], 64")
    I("s_load_dwordx2 s[84:85], s[0:1], 16")
    I("s_load_dwordx4 s[88:91], s[0:1], 32")
    I("s_load_dwordx2 s[92:93], s[0:1], 48")
    I(f"v_lshrrev_b32 v{T0}, 6, v0")
    I(f"v_readfirstlane_b32 s30, v{T0}")
    I(f"v_and_b32 v{lane}, 63, v0")
    I("s_and_b32 s31, s2, 7"); I("s_lshr_b32 s32, s2, 3")
    I("s_and_b32 s33, s31, 1"); I("s_lshl_b32 s33, s33, 3"); I("s_lshr_b32 s34, s32, 2"); I("s_add_u32 s33, s33, s34")
    I("s_lshr_b32 s34, s31, 1"); I("s_lshl_b32 s34, s34, 2"); I("s_and_b32 s32, s32, 3"); I("s_add_u32 s32, s32, s34")
    I("s_and_b32 s41, s30, 3")
    I("s_lshr_b32 s39, s30, 2")
    I(f"v_lshlrev_b32 v{vL16}, 4, v{lane}")
    I(f"v_lshrrev_b32 v{T0}, 4, v{lane}")
    I("s_and_b32 s42, s30, 1"); I("s_lshl_b32 s42, s42, 2")
    I(f"v_add_u32 v{T0}, s42, v{T0}")
    I(f"v_and_b32 v{T0+1}, 7, v{lane}")
    I(f"v_xor_b32 v{T0}, v{T0}, v{T0+1}")
    I(f"v_lshrrev_b32 v{T0+1}, 3, v{lane}")
    I(f"v_mul_u32_u24 v{T0+1}, 1152, v{T0+1}")
    I(f"v_lshl_add_u32 v{vXD}, v{T0}, 4, v{T0+1}")
    gi, sp, r_, t = T0, T0+1, T0+2, T0+3
    I(f"v_lshrrev_b32 v{gi}, 4, v{lane}"); I(f"v_and_b32 v{t}, 3, v{lane}"); I(f"v_lshl_add_u32 v{gi}, v{gi}, 2, v{t}")
    I(f"v_min_u32 v{gi}, 14, v{gi}")
    I(f"v_mul_u32_u24 v{sp}, 52, v{gi}"); I(f"v_lshrrev_b32 v{sp}, 8, v{sp}")
    I(f"v_mul_u32_u24 v{t}, 5, v{sp}"); I(f"v_sub_u32 v{gi}, v{gi}, v{t}")
    I(f"v_bfe_u32 v{r_}, v{lane}, 2, 2")
    I(f"v_mul_u32_u24 v{r_}, 3456, v{r_}")
    I(f"v_mul_u32_u24 v{sp}, 1152, v{sp}")
    I(f"v_add_u32 v{r_}, v{r_}, v{sp}")
    I(f"v_lshl_add_u32 v{vWD}, v{gi}, 4, v{r_}")
    I("s_waitcnt lgkmcnt(0)")
    I("s_mov_b32 s8, s4"); I("s_mov_b32 s9, s5"); I(f"s_mov_b32 s10, {S*D*2}"); I("s_mov_b32 s11, 0x20000")
    I("s_mov_b32 s12, s6"); I("s_mov_b32 s13, s7"); I(f"s_mov_b32 s14, {D*3*D*2}"); I("s_mov_b32 s15, 0x20000")
    I("s_mov_b32 s16, s22"); I("s_mov_b32 s17, s23"); I(f"s_mov_b32 s18, {WS_BYTES}"); I("s_mov_b32 s19, 0x20000")
    I("s_cmp_ge_u32 s2, 72"); I(f"s_cbranch_scc1 L{name}_nz")
    I("s_cmp_lg_u32 s30, 7"); I(f"s_cbranch_scc1 L{name}_nz")
    I("s_lshl_b32 s42, s2, 7"); I(f"s_add_u32 s42, s42, {FLG}")
    I("s_cmp_ge_u32 s2, 64"); I(f"s_cselect_b32 s43, {FL2 - FLG - 64*128}, 0"); I("s_add_u32 s42, s42, s43")
    I(f"v_mov_b32 v{T0+4}, 0"); I(f"v_lshlrev_b32 v{T0+5}, 2, v{lane}")
    I("s_mov_b32 exec_hi, 0")
    A.raw(f"    buffer_store_dword v{T0+4}, v{T0+5}, s[16:19], s42 offen")
    I("s_mov_b64 exec, -1")
    A.label(f"L{name}_nz")
    I("s_lshl_b32 s40, s32, 7"); I("s_lshl_b32 s42, s30, 3"); I("s_add_u32 s40, s40, s42"); I("s_mul_i32 s40, s40, 1152")
    I(f"s_add_u32 s43, s40, {64*1152}")
    I("s_mul_i32 s44, s33, 72"); I("s_and_b32 s44, s44, 0xfffffff0")
    I(f"s_mul_i32 s45, s30, {4*3456}"); I("s_add_u32 s44, s44, s45")
    I("s_lshl_b32 s45, s30, 10")
    def dma_part(c, p):
        sb = (c % NSLOT) * SLOT
        if p == 0:
            I(f"s_add_u32 m0, s45, {sb}")
            I(f"buffer_load_dwordx4 v{vXD}, s[8:11], s40 offen lds", tag=("C", c))
        elif p == 1:
            I(f"s_add_u32 m0, s45, {sb + WOFF}")
            I(f"buffer_load_dwordx4 v{vWD}, s[12:15], s44 offen lds", tag=("C", c))
            I(f"s_add_u32 s44, s44, {32*3456}")
        elif p == 2:
            I(f"s_add_u32 m0, s45, {sb + 8192}")
            I(f"buffer_load_dwordx4 v{vXD}, s[8:11], s43 offen lds", tag=("C", c))
            I("s_add_u32 s40, s40, 128"); I("s_add_u32 s43, s43, 128")
        else:
            I(f"s_add_u32 m0, s45, {sb + WOFF + 8192}")
            I(f"buffer_load_dwordx4 v{vWD}, s[12:15], s44 offen lds", tag=("C", c))
            I(f"s_add_u32 s44, s44, {32*3456}")
    def dma_chunk(c):
        for p in range(4): dma_part(c, p)
    dma_chunk(0)
    I("s_lshr_b32 s46, s2, 3"); I("s_lshl_b32 s46, s46, 3"); I("s_add_u32 s46, s46, s30")
    I(f"v_lshlrev_b32 v{T0+20}, 7, v{lane}")
    I("s_lshr_b32 s48, s31, 1"); I(f"s_mul_i32 s48, s48, {512*1152}"); I("s_mul_i32 s49, s46, 2304"); I("s_add_u32 s48, s48, s49")
    I("s_mul_i32 s49, s46, 34")
    I(f"v_add_u32 v{T0+21}, s49, v{lane}")
    I("s_mov_b32 s49, 0xCCCD")
    I(f"v_mul_lo_u32 v{T0+22}, v{T0+21}, s49"); I(f"v_lshrrev_b32 v{T0+22}, 18, v{T0+22}")
    I(f"v_mul_u32_u24 v{T0+23}, 5, v{T0+22}"); I(f"v_sub_u32 v{T0+21}, v{T0+21}, v{T0+23}")
    I(f"v_mul_u32_u24 v{T0+22}, 1152, v{T0+22}"); I(f"v_lshl_add_u32 v{T0+21}, v{T0+21}, 7, v{T0+22}")
    I("s_and_b32 s49, s31, 1"); I("s_lshl_b32 s49, s49, 9")
    I("s_mov_b32 exec_hi, 0"); I("s_mov_b32 exec_lo, 0x3ffff")
    I(f"buffer_load_dword v180, v{T0+20}, s[8:11], s48 offen", tag="PF0")
    I("s_mov_b32 exec_hi, 3"); I("s_mov_b32 exec_lo, -1")
    I(f"buffer_load_dword v181, v{T0+21}, s[12:15], s49 offen", tag="PF0")
    I("s_mov_b64 exec, -1")
    I("s_getpc_b64 s[94:95]")
    A.label(f"L{name}_pc")
    A.raw(f"    s_sub_u32 s94, s94, (L{name}_pc - {name})")
    I("s_subb_u32 s95, s95, 0")
    I("s_lshl_b32 s49, s46, 10")
    I(f"v_add_u32 v{T0+22}, s49, v{T0+20}")
    A.raw(f"    v_cmp_gt_u32 vcc, (Lcode_end - {name}), v{T0+22}")
    I("s_nop 1")
    I("s_and_b32 exec_lo, vcc_lo, 0xff"); I("s_mov_b32 exec_hi, 0")
    I(f"s_cbranch_execz L{name}_nocp")
    A.raw(f"    global_load_dword v182, v{T0+22}, s[94:95]")
    A.label(f"L{name}_nocp")
    I("s_mov_b64 exec, -1")
    s_, hf, f, t = T0, T0+1, T0+2, T0+3
    I(f"v_and_b32 v{s_}, 31, v{lane}"); I(f"v_lshrrev_b32 v{hf}, 5, v{lane}"); I(f"v_bfe_u32 v{f}, v{lane}, 1, 3")
    I("s_lshl_b32 s42, s41, 5"); I(f"v_add_u32 v{s_}, s42, v{s_}"); I(f"v_lshlrev_b32 v{s_}, 7, v{s_}")
    for m in range(4):
        I(f"v_add_u32 v{t}, {2*m}, v{hf}"); I(f"v_xor_b32 v{t}, v{t}, v{f}"); I(f"v_lshl_add_u32 v{vX[m]}, v{t}, 4, v{s_}")
    i_, w0, w1, t, base = T0+4, T0+5, T0+6, T0+7, T0+9
    I(f"v_bfe_u32 v{i_}, v{lane}, 4, 1"); I(f"v_and_b32 v{t}, 3, v{lane}"); I(f"v_lshl_add_u32 v{i_}, v{i_}, 2, v{t}")
    I("s_and_b32 s46, s33, 1")
    I("s_cmp_eq_u32 s39, 0")
    I(f"s_cbranch_scc0 L{name}_u1")
    I(f"v_add_u32 v{w0}, s46, v{i_}"); I(f"v_add_u32 v{w1}, 10, v{w0}")
    I(f"s_branch L{name}_uj")
    A.label(f"L{name}_u1")
    I(f"v_add_u32 v{w0}, 19, v{i_}")
    I(f"v_cmp_eq_u32 vcc, 0, v{i_}"); I(f"v_mov_b32 v{t}, 18"); I(f"v_cndmask_b32 v{w0}, v{w0}, v{t}, vcc")
    I(f"v_add_u32 v{w0}, s46, v{w0}")
    I(f"v_add_u32 v{w1}, 27, v{i_}")
    I(f"v_cmp_gt_u32 vcc, 2, v{i_}"); I(f"v_mov_b32 v{t}, 8"); I(f"v_cndmask_b32 v{w1}, v{t}, v{w1}, vcc")
    I(f"v_add_u32 v{w1}, s46, v{w1}")
    A.label(f"L{name}_uj")
    A.flush_hazards()
    I(f"v_lshrrev_b32 v{base}, 5, v{lane}"); I(f"v_lshlrev_b32 v{base}, 11, v{base}")
    I(f"v_bfe_u32 v{t}, v{lane}, 2, 2"); I(f"v_lshl_add_u32 v{base}, v{t}, 6, v{base}")
    I(f"v_add_u32 v{base}, {WOFF}, v{base}")
    for k, w in enumerate((w0, w1)):
        I(f"v_lshrrev_b32 v{t}, 3, v{w}"); I(f"v_lshl_add_u32 v{vT[k]}, v{t}, 8, v{base}")
        I(f"v_and_b32 v{t}, 7, v{w}"); I(f"v_lshl_add_u32 v{vT[k]}, v{t}, 3, v{vT[k]}")
    vX2 = [T0+10+m for m in range(4)]; vT2 = [T0+14, T0+15]
    vX3 = [T0+26+m for m in range(4)]; vT3 = [T0+30, T0+31]
    for m in range(4): I(f"v_add_u32 v{vX2[m]}, 65536, v{vX[m]}")
    for k in range(2): I(f"v_add_u32 v{vT2[k]}, 65536, v{vT[k]}")
    for m in range(4): I(f"v_add_u32 v{vX3[m]}, 131072, v{vX[m]}")
    for k in range(2): I(f"v_add_u32 v{vT3[k]}, 131072, v{vT[k]}")
    for k in range(32): I(f"v_mov_b32 v{AC+k}, 0")
    for k in range(6): I(f"v_mov_b32 v{SA+k}, 0")
    I("s_mov_b32 s47, 0x3f803f80")
    dma_chunk(1)
    A.wait_vm(("C", 0))
    I("s_barrier")
    stamp(1)
    I("s_cmp_eq_u32 s39, 0")
    I(f"s_cbranch_scc0 L{name}_cg1")
    saved = (list(A.vmq), A.vmdone, list(A.lgq), A.lgdone)
    lab = [0]
    for cg in range(2):
        if cg == 1:
            A.label(f"L{name}_cg1")
            A.vmq, A.vmdone, A.lgq, A.lgdone = list(saved[0]), saved[1], list(saved[2]), saved[3]
            A.hist = []
        def rd(tt, part):
            c = tt >> 2; tl = tt & 3; sl = c % NSLOT
            off = (sl & 1) * SLOT
            xa = (vX, vX2, vX3)[sl >> 1][tl]; ta = (vT, vT2, vT3)[sl >> 1]
            xb = XB + 4 * (tt % 4)
            if part == 0: I(f"ds_read_b128 v[{xb}:{xb+3}], v{xa} offset:{off}", tag=("F", tt, 0))
            k = part
            b = WB + 8 * (tt % 4) + 4 * k
            for x in range(2):
                I(f"ds_read_b64_tr_b16 v[{b+2*x}:{b+2*x+1}], v{ta[k]} offset:{off + tl*4096 + x*1024}", tag=("F", tt, k))
        PDK = 3
        pend = []
        for tt in range(PDK): rd(tt, 0); rd(tt, 1)
        for tt in range(36):
            c = tt >> 2; tl = tt & 3
            xb = XB + 4 * (tt % 4)
            xf = f"v[{xb}:{xb+3}]"
            dots = []
            if (tl >> 1) == cg:
                for d in range(4):
                    dots.append(f"v_dot2_f32_bf16 v{SA + (d & 1)}, v{xb+d}, s47, v{SA + (d & 1)}")
                    dots.append(f"v_dot2_f32_bf16 v{SA + 2 + (d & 1)}, v{xb+d}, v{xb+d}, v{SA + 2 + (d & 1)}")
            for k in range(2):
                A.wait_lg(("F", tt, k))
                b = WB + 8 * (tt % 4) + 4 * k
                ac = f"v[{AC+16*k}:{AC+16*k+15}]"; wf = f"v[{b}:{b+3}]"
                if cg == 0 and k == 0: I(f"v_mfma_f32_32x32x16_bf16 {ac}, {wf}, {xf}, {ac}")
                else: I(f"v_mfma_f32_32x32x16_bf16 {ac}, {xf}, {wf}, {ac}")
                for o in dots[4*k:4*k+4]: I(o)
                if k == 0:
                    pass
                if k == 1:
                    lab[0] += 1
                    I(f"s_cmp_lg_u32 s41, {tl}")
                    I(f"s_cbranch_scc1 L{name}_ncs{lab[0]}")
                    for k2 in range(2):
                        b2 = WB + 8 * (tt % 4) + 4 * k2
                        for d in range(4): I(f"v_dot2_f32_bf16 v{SA+4+k2}, v{b2+d}, s47, v{SA+4+k2}")
                    A.label(f"L{name}_ncs{lab[0]}")
                if tt + PDK < 36: rd(tt + PDK, k)
                if pend and (k == 0 or len(pend) > 4 or c < 2): dma_part(*pend.pop(0))
            if tl == 0 and c < 8:
                A.wait_vm(("C", c + 1))
                I("s_barrier")
                pend += [(cc, p) for cc in {0: [2, 3], 1: [4, 5]}.get(c, [c + 4] if c + 4 < 9 else []) for p in range(4)]
                if c == 4:
                    I("s_lshl_b32 s46, s2, 3"); I("s_add_u32 s46, s46, s30")
                    I(f"v_lshlrev_b32 v{T0+20}, 7, v{lane}")
                    I("s_mov_b32 s27, 0x20000"); I("s_mov_b32 exec_hi, 0")
                    I("s_mov_b32 exec_lo, 7")
                    I("s_mul_i32 s48, s46, 384")
                    I("s_mov_b32 s24, s84"); I("s_mov_b32 s25, s85"); I("s_mov_b32 s26, 0x%x" % (D*D*2))
                    I(f"buffer_load_dword v179, v{T0+20}, s[24:27], s48 offen", tag="PF")
                    I("s_mov_b64 exec, -1")
                if c == 7:
                    I("s_mul_i32 s48, s46, 2688")
                    I("s_mov_b32 s26, 0x%x" % (D*F*2))
                    I("s_mov_b32 exec_hi, 0"); I("s_mov_b32 exec_lo, 0x1fffff")
                    for k, sp_ in enumerate((88, 90)):
                        I(f"s_mov_b32 s24, s{sp_}"); I(f"s_mov_b32 s25, s{sp_+1}")
                        I(f"buffer_load_dword v{176+k}, v{T0+20}, s[24:27], s48 offen", tag="PF")
                    I("s_mov_b64 exec, -1")
        stamp(2)
        I("s_nop 4")
        I(f"v_add_f32 v{SA}, v{SA}, v{SA+1}"); I(f"v_add_f32 v{SA+1}, v{SA+2}, v{SA+3}")
        s_, hf = T0, T0+1
        I(f"v_and_b32 v{s_}, 31, v{lane}"); I(f"v_lshrrev_b32 v{hf}, 5, v{lane}")
        I("s_lshl_b32 s42, s41, 9")
        I(f"v_lshl_add_u32 v{T0+2}, v{s_}, 4, s42")
        I(f"v_lshl_add_u32 v{T0+3}, v{hf}, 3, v{T0+2}")
        I(f"v_add_u32 v{T0+3}, {STP + cg*2048}, v{T0+3}")
        I(f"ds_write_b64 v{T0+3}, v[{SA}:{SA+1}]")
        I("s_lshl_b32 s42, s41, 8")
        I(f"v_lshl_add_u32 v{T0+4}, v{lane}, 2, s42"); I(f"v_add_u32 v{T0+4}, {CSP + cg*2048}, v{T0+4}")
        I(f"ds_write_b32 v{T0+4}, v{SA+4}"); I(f"ds_write_b32 v{T0+4}, v{SA+5} offset:1024")
        I("s_waitcnt lgkmcnt(0)")
        I("s_barrier")
        I(f"v_add_u32 v{T0+2}, {STP}, v{T0+2}")
        I(f"ds_read_b128 v[32:35], v{T0+2}"); I(f"ds_read_b128 v[36:39], v{T0+2} offset:2048")
        I(f"v_lshlrev_b32 v{T0+4}, 2, v{s_}"); I(f"v_add_u32 v{T0+4}, {CSP + cg*2048}, v{T0+4}")
        for k in range(2):
            for j in range(8): I(f"ds_read_b32 v{40+8*k+j}, v{T0+4} offset:{1024*k + 128*j}")
        I("s_waitcnt lgkmcnt(0)")
        I("v_add_f32 v32, v32, v34"); I("v_add_f32 v33, v33, v35"); I("v_add_f32 v36, v36, v38"); I("v_add_f32 v37, v37, v39")
        I("v_add_f32 v32, v32, v36"); I("v_add_f32 v33, v33, v37")
        I("s_mov_b32 s49, 0x3AE38E39")
        I("v_mul_f32 v32, s49, v32"); I("v_mul_f32 v33, s49, v33")
        I("v_fma_f32 v33, -v32, v32, v33"); I("v_max_f32 v33, 0, v33"); I("v_add_f32 v33, 0x3727c5ac, v33")
        I("v_rsq_f32 v34, v33"); I("v_mul_f32 v35, v32, v34"); I("v_sub_f32 v35, 0, v35")
        for k in range(2):
            for st in (4, 2, 1):
                for j in range(st): I(f"v_add_f32 v{40+8*k+j}, v{40+8*k+j}, v{40+8*k+j+st}")
        I("s_lshl_b32 s42, s30, 8"); I(f"s_add_u32 s42, s42, {FIN}")
        I(f"v_lshl_add_u32 v{T0+2}, v{s_}, 3, s42")
        I(f"ds_write_b64 v{T0+2}, v[34:35]")
        if cg == 0:
            I("s_lshl_b32 s43, s30, 7"); I(f"s_add_u32 s43, s43, {CSF}")
            I(f"v_lshl_add_u32 v{T0+3}, v{s_}, 2, s43")
            I(f"ds_write_b32 v{T0+3}, v40")
        I("s_waitcnt lgkmcnt(0)")
        I(f"v_lshl_add_u32 v{T0+2}, v{hf}, 5, s42")
        RS = 112
        for a in range(4):
            I(f"ds_read_b128 v[{RS+8*a}:{RS+8*a+3}], v{T0+2} offset:{64*a}")
            I(f"ds_read_b128 v[{RS+8*a+4}:{RS+8*a+7}], v{T0+2} offset:{64*a+16}")
        if cg == 0:
            I(f"v_lshl_add_u32 v{T0+3}, v{hf}, 4, s43")
            for a in range(4): I(f"ds_read_b128 v[{144+4*a}:{147+4*a}], v{T0+3} offset:{32*a}")
        I("s_waitcnt lgkmcnt(0)")
        def scale_T(ac, cs):
            for r in range(16): I(f"v_mul_f32 v{56+r}, v{RS+2*r+1}, v{cs}")
            for r in range(16): I(f"v_fma_f32 v{ac+r}, v{ac+r}, v{RS+2*r}, v{56+r}")
        if cg == 0:
            for r in range(16): I(f"v_mul_f32 v{56+r}, v35, v{144+r}")
            for r in range(16): I(f"v_fma_f32 v{AC+r}, v{AC+r}, v34, v{56+r}")
            scale_T(AC + 16, 48)
        else:
            scale_T(AC, 40); scale_T(AC + 16, 48)
        I("s_mov_b32 s48, 0x3fb8aa3b")
        tmp = list(range(56, 72))
        I("s_lshl_b32 s50, s32, 2"); I("s_add_u32 s50, s50, s41"); I("s_lshl_b32 s50, s50, 2"); I("s_lshr_b32 s51, s33, 2"); I("s_add_u32 s50, s50, s51")
        I("s_mul_i32 s50, s50, 9216"); I(f"s_add_u32 s50, s50, {PQF}")
        I("s_and_b32 s51, s33, 3")
        I("s_lshl_b32 s52, s41, 11")
        I(f"v_add_u32 v{T0}, s52, v{vL16}")
        def pack_to_lds(ac, tile):
            for r in range(8): I(f"v_cvt_pk_bf16_f32 v{72+r}, v{ac+2*r}, v{ac+2*r+1}")
            I(f"ds_write_b128 v{T0}, v[72:75] offset:{tile*8192}")
            I(f"ds_write_b128 v{T0}, v[76:79] offset:{tile*8192+1024}")
        if cg == 0:
            q = AC; t1 = AC + 16
            phi2(I, list(range(t1, t1 + 16)), tmp, "s48")
            pack_to_lds(t1, 0)
            phi2(I, list(range(q, q + 16)), tmp, "s48")
            for r in range(8): I(f"v_cvt_pk_bf16_f32 v{32+r}, v{q+2*r}, v{q+2*r+1}")
            I("s_lshl_b32 s53, s51, 11"); I("s_add_u32 s53, s53, s50")
            I(f"buffer_store_dwordx4 v[32:35], v{vL16}, s[16:19], s53 offen")
            I(f"buffer_store_dwordx4 v[36:39], v{vL16}, s[16:19], s53 offen offset:1024")
        else:
            t2 = AC; t3 = AC + 16
            I("s_mov_b32 exec_lo, 0xf"); I("s_mov_b32 exec_hi, 0xf")
            phi2(I, list(range(t2, t2 + 16)), tmp, "s48")
            I("s_mov_b32 exec_lo, 0xf00"); I("s_mov_b32 exec_hi, 0xf00")
            phi2(I, list(range(t3, t3 + 16)), tmp, "s48")
            I("s_mov_b32 exec_lo, 0x1000"); I("s_mov_b32 exec_hi, 0x1000")
            for r in range(16): I(f"v_mov_b32 v{t3+r}, 1.0")
            I("s_mov_b64 exec, -1")
            pack_to_lds(t2, 1)
            pack_to_lds(t3, 2)
            ad = T0 + 3
            I(f"v_and_b32 v{ad}, 31, v{lane}")
            I(f"v_subrev_u32 v{ad}, 8, v{ad}"); I(f"v_lshlrev_b32 v{ad}, 1, v{ad}")
            I(f"v_lshrrev_b32 v{T0+4}, 5, v{lane}"); I(f"v_lshl_add_u32 v{ad}, v{T0+4}, 6, v{ad}")
            I("s_lshr_b32 s53, s51, 1"); I("s_lshl_b32 s53, s53, 9"); I("s_and_b32 s54, s51, 1"); I("s_lshl_b32 s54, s54, 3")
            I("s_add_u32 s53, s53, s54"); I("s_add_u32 s53, s53, s50"); I("s_add_u32 s53, s53, 8192")
            I("s_mov_b32 exec_lo, 0xf00"); I("s_mov_b32 exec_hi, 0xf00")
            for r in range(16):
                off = (8 * (r >> 2) + (r & 3)) * 16
                if r & 1: I(f"buffer_store_short_d16_hi v{72 + (r >> 1)}, v{ad}, s[16:19], s53 offen offset:{off}")
                else: I(f"buffer_store_short v{72 + (r >> 1)}, v{ad}, s[16:19], s53 offen offset:{off}")
            I("s_mov_b64 exec, -1")
        if cg == 0: I(f"s_branch L{name}_join")
    A.label(f"L{name}_join")
    A.flush_hazards()
    I("s_waitcnt lgkmcnt(0)")
    I("s_barrier")
    stamp(3)
    I("s_cmp_ge_u32 s30, 4")
    I(f"s_cbranch_scc1 L{name}_nokv")
    KA = 112
    I("s_lshr_b32 s52, s30, 1"); I("s_and_b32 s53, s30, 1")
    I("s_lshl_b32 s54, s52, 13"); I(f"v_add_u32 v{T0}, s54, v{vL16}")
    I("s_add_u32 s54, s53, 1"); I("s_lshl_b32 s54, s54, 13"); I(f"v_add_u32 v{T0+1}, s54, v{vL16}")
    for k in range(8):
        I(f"ds_read_b128 v[{KA+8*k}:{KA+8*k+3}], v{T0} offset:{1024*k}", tag=("KA", k))
        I(f"ds_read_b128 v[{KA+8*k+4}:{KA+8*k+7}], v{T0+1} offset:{1024*k}", tag=("KA", k))
    n_, hf, vc, o0, o1, t, big, om = 32, 33, 34, 35, 36, 37, 38, 39
    I(f"v_and_b32 v{n_}, 31, v{lane}"); I(f"v_lshrrev_b32 v{hf}, 5, v{lane}")
    I(f"v_mov_b32 v{big}, 0x40000000")
    I("s_cmp_eq_u32 s53, 0"); I("s_cselect_b32 s54, -4, 28")
    I(f"v_add_u32 v{vc}, s54, v{n_}")
    I(f"v_lshlrev_b32 v{o0}, 2, v{vc}")
    I(f"v_cmp_gt_u32 vcc, 18, v{vc}"); I(f"v_cndmask_b32 v{o0}, v{big}, v{o0}, vcc")
    I(f"v_subrev_u32 v{t}, 18, v{vc}"); I(f"v_lshlrev_b32 v{o1}, 2, v{t}")
    I(f"v_cmp_gt_u32 vcc, 18, v{t}"); I(f"v_cndmask_b32 v{o1}, v{big}, v{o1}, vcc")
    I(f"v_cmp_eq_u32 vcc, 40, v{vc}"); I(f"v_mov_b32 v{t}, 72")
    I(f"v_cndmask_b32 v{o0}, v{o0}, v{t}, vcc"); I(f"v_cndmask_b32 v{o1}, v{o1}, v{t}, vcc")
    I(f"v_mul_u32_u24 v{t}, 320, v{hf}")
    I(f"v_add_u32 v{o0}, v{o0}, v{t}"); I(f"v_add_u32 v{o1}, v{o1}, v{t}")
    I(f"v_cmp_eq_u32 vcc, 0, v{hf}"); I(f"v_cndmask_b32 v{om}, v{o1}, v{o0}, vcc")
    I("s_lshl_b32 s55, s33, 4"); I("s_add_u32 s55, s55, s32"); I("s_mul_i32 s55, s55, 2880"); I(f"s_add_u32 s55, s55, {KVP}")
    for k in range(8):
        A.wait_lg(("KA", k))
        c = "0" if k == 0 else f"v[{AC}:{AC+15}]"
        I(f"v_mfma_f32_32x32x16_bf16 v[{AC}:{AC+15}], v[{KA+8*k}:{KA+8*k+3}], v[{KA+8*k+4}:{KA+8*k+7}], {c}")
    I("s_cmp_eq_u32 s52, 0")
    I(f"s_cbranch_scc0 L{name}_kvT2")
    for r in range(16):
        a = r >> 2; b = r & 3
        ad = o0 if a < 2 else (o1 if (a == 3 or b >= 2) else om)
        I(f"buffer_store_dword v{AC+r}, v{ad}, s[16:19], s55 offen offset:{(8*a+b)*80}")
    I(f"s_branch L{name}_nokv")
    A.label(f"L{name}_kvT2")
    A.flush_hazards()
    I("s_mov_b32 exec_hi, 0")
    for r in range(4):
        I(f"buffer_store_dword v{AC+r}, v{o1}, s[16:19], s55 offen offset:{(32+r)*80}")
    I("s_mov_b64 exec, -1")
    A.label(f"L{name}_nokv")
    A.label(f"L{name}_fin")
    if prof:
        I("s_waitcnt vmcnt(0)")
        I(f"s_memtime s[76:77]"); I(f"s_memrealtime s[78:79]"); I("s_waitcnt lgkmcnt(0)")
        I("s_lshl_b32 s80, s2, 3"); I("s_add_u32 s80, s80, s30"); I("s_lshl_b32 s80, s80, 7"); I(f"s_add_u32 s80, s80, {PROF}")
        for k in range(20): I(f"v_mov_b32 v{k}, s{60+k}")
        I("v_mov_b32 v20, 0")
        for k in range(5): I(f"buffer_store_dwordx4 v[{4*k}:{4*k+3}], v20, s[16:19], s80 offen offset:{16*k}")
    A.label(f"L{name}_end")
    I("s_endpgm")
    launch = f"; @launch kernel={name} grid=(256,1,1) block=(512,1,1) lds={LDS_BYTES}"
    return launch, A.text(), kernel_desc(name, 184)
```

```python
from asmlib import *
from layout import *

import os
STF = os.environ.get("K3STF", "sc1")
def gen_k3e(name="k3_kernel", prof=False, exp=""):
    A = Asm(); I = A.i
    PROF = (200 + 2) * MB
    SLOT = 24576; UOFF = 12288; NSLOT = 6
    LCS = SLOT * NSLOT
    LDS_BYTES = LCS + 1152
    PD = int(os.environ.get("K3PD", "3")); NB = 6
    HB = 160
    WB = 208
    vA = [[232, 233, 234, 235], [236, 237, 238, 239]]
    vD = [240, 241, 242]
    vL16 = 243
    vR = 244
    T0 = 252
    A.raw(kernel_header(name))
    def stamp(i):
        if prof:
            I(f"s_memtime s[{60+4*i}:{61+4*i}]"); I(f"s_memrealtime s[{62+4*i}:{63+4*i}]"); I("s_waitcnt lgkmcnt(0)")
    I("s_cmp_ge_u32 s2, 256")
    I(f"s_cbranch_scc1 L{name}_end")
    stamp(0)
    I("s_load_dwordx4 s[4:7], s[0:1], 32")
    I("s_load_dwordx2 s[24:25], s[0:1], 72")
    I("s_load_dwordx2 s[92:93], s[0:1], 48")
    lane = 100
    I(f"v_lshrrev_b32 v{101}, 6, v0")
    I(f"v_readfirstlane_b32 s30, v{101}")
    I(f"v_and_b32 v{lane}, 63, v0")
    I("s_and_b32 s31, s2, 7"); I("s_lshr_b32 s32, s2, 3"); I("s_and_b32 s33, s32, 7"); I("s_lshr_b32 s32, s32, 3")
    I("s_lshl_b32 s34, s31, 2"); I("s_add_u32 s34, s34, s32")
    I("s_and_b32 s41, s30, 3")
    I("s_lshl_b32 s35, s33, 4"); I("s_lshl_b32 s36, s41, 2"); I("s_add_u32 s35, s35, s36")
    I(f"v_lshlrev_b32 v{vL16}, 4, v{lane}")
    I("s_mov_b32 s36, 0xAAAB")
    for x in range(3):
        q, rw, p, t = 102, 103, 104, 105
        I(f"v_add_u32 v{q}, {64*x}, v{lane}")
        I(f"v_mul_lo_u32 v{rw}, v{q}, s36")
        I(f"v_lshrrev_b32 v{rw}, 20, v{rw}")
        I(f"v_mul_u32_u24 v{t}, 24, v{rw}")
        I(f"v_sub_u32 v{p}, v{q}, v{t}")
        I(f"v_and_b32 v{t}, 6, v{rw}")
        I(f"v_xor_b32 v{p}, v{p}, v{t}")
        I(f"v_mul_u32_u24 v{t}, 9216, v{rw}")
        I(f"v_lshl_add_u32 v{vD[x]}, v{p}, 4, v{t}")
    rowv, f, c4, t = 102, 103, 104, 105
    I(f"v_lshrrev_b32 v{rowv}, 2, v{lane}")
    I(f"v_bfe_u32 v{f}, v{lane}, 3, 2")
    I(f"v_and_b32 v{c4}, 3, v{lane}")
    I(f"v_mul_u32_u24 v{rowv}, 384, v{rowv}")
    I(f"v_lshl_add_u32 v{rowv}, v{c4}, 3, v{rowv}")
    I("s_and_b32 s37, s34, 3")
    for m in range(4):
        I(f"s_add_u32 s38, s37, {m}")
        I(f"v_xor_b32 v{t}, s38, v{f}")
        I(f"v_lshl_add_u32 v{vA[0][m]}, v{t}, 5, v{rowv}")
    I("s_waitcnt lgkmcnt(0)")
    I("s_cmp_lt_u32 s30, 4")
    I("s_cselect_b32 s8, s4, s6"); I("s_cselect_b32 s9, s5, s7")
    I(f"s_mov_b32 s10, {D*F*2}"); I("s_mov_b32 s11, 0x20000")
    I("s_mov_b32 s16, s24"); I("s_mov_b32 s17, s25"); I(f"s_mov_b32 s18, {WS_BYTES}"); I("s_mov_b32 s19, 0x20000")
    I("s_mul_i32 s40, s34, 288"); I("s_and_b32 s40, s40, 0xffffff80")
    I(f"s_mul_i32 s42, s41, {8*9216}"); I("s_add_u32 s40, s40, s42")
    I("s_mul_i32 s43, s41, 3072")
    I("s_cmp_lt_u32 s30, 4"); I(f"s_cselect_b32 s44, 0, {UOFF}"); I("s_add_u32 s43, s43, s44")
    def dma_piece(u, x):
        if 'nodma' in exp and u >= 2:
            A.vmq.append(("W", u)); A.vmdone = len(A.vmq) if A.vmdone >= len(A.vmq) - 1 else A.vmdone; return
        I(f"s_add_u32 m0, s43, {1024*x + (u % NSLOT)*SLOT}")
        I(f"buffer_load_dwordx4 v{vD[x]}, s[8:11], s40 offen lds", tag=("W", u))
        if x == 2:
            I(f"s_add_u32 s40, s40, {32*9216}")
    def hload(t, i):
        if 'nohl' in exp and t >= 3:
            A.vmq.append(("H", t, i)); return
        b = HB + 16 * (t % 3) + 4 * i
        I(f"buffer_load_dwordx4 v[{b}:{b+3}], v{vL16}, s[16:19], s{52+i} offen", tag=("H", t, i))
        I(f"s_add_u32 s{52+i}, s{52+i}, 1024")
    for i in range(4):
        I(f"s_add_u32 s{52+i}, s35, {i}")
        I(f"s_mul_i32 s{52+i}, s{52+i}, {18*1024}")
        I(f"s_add_u32 s{52+i}, s{52+i}, {HF}")
    def dma_unit(u):
        for x in range(3): dma_piece(u, x)
    def hloads(t):
        for i in range(4): hload(t, i)
    dma_unit(0); hloads(0)
    I("s_cmp_lg_u32 s41, 0")
    I(f"s_cbranch_scc1 L{name}_nocs")
    I("s_mul_i32 s47, s34, 576")
    I("s_lshr_b32 s46, s30, 2")
    I(f"s_mul_i32 s48, s46, {4608*4}")
    I("s_add_u32 s47, s47, s48")
    I(f"s_add_u32 s47, s47, {CS}")
    I("s_mul_i32 s46, s46, 576")
    I(f"s_add_u32 m0, s46, {LCS}")
    I("s_mov_b32 exec_hi, 0xf")
    A.raw(f"    buffer_load_dwordx4 v{vL16}, s[16:19], s47 offen lds")
    I("s_mov_b64 exec, -1")
    A.label(f"L{name}_nocs")
    A.wait_vm(("W", 0))
    I("s_barrier")
    I("s_cmp_ge_u32 s30, 4")
    I(f"s_cbranch_scc1 L{name}_half1")
    BODY = 6
    saved = (list(A.vmq), A.vmdone, list(A.lgq), A.lgdone)
    for ch in range(2):
        if ch == 1:
            A.label(f"L{name}_half1")
            A.vmq, A.vmdone, A.lgq, A.lgdone = list(saved[0]), saved[1], list(saved[2]), saved[3]
            A.hist = []
        TL = [0, 1, 2, 3, 8] if ch == 0 else [4, 5, 6, 7]
        nc = len(TL)
        NF = 2 * nc
        def acc(i, c, mat):
            k = (i * NF + TL.index(c) * 2 + mat) * 4
            return f"v[{k}:{k+3}]"
        def rd(fi):
            tt = fi // NF; c = TL[(fi % NF) // 2]; mat = fi & 1
            if tt >= 18: return
            b = WB + 4 * (fi % NB)
            for x in range(2):
                I(f"ds_read_b64_tr_b16 v[{b+2*x}:{b+2*x+1}], v{vA[tt & 1][c & 3]} offset:{128*(c >> 2) + x*6144 + mat*UOFF}", tag=("F", fi))
        if os.environ.get("K3PRIO", "") == str(ch): I("s_setprio 1")
        for fi in range(PD): rd(fi)
        stamp(1)
        mid = NF // 2 - 1
        nextW = 1; nextH = 1
        for tt in range(18):
            ops = []
            wl = []
            while nextW <= min(17, tt + 4) and len(wl) < (2 if tt < 4 else 1): wl.append(nextW); nextW += 1
            hl = []
            while nextH <= min(17, tt + 2) and len(hl) < (2 if tt < 1 else 1): hl.append(nextH); nextH += 1
            wp = [("W", u, x) for u in wl for x in range(3)]
            hp = [("H", t_, i_) for t_ in hl for i_ in range(4)]
            if tt == 0:
                ops = wp[:3] + hp[:4] + wp[3:] + hp[4:]
            else:
                while wp or hp:
                    if hp: ops.append(hp.pop(0))
                    if wp: ops.append(wp.pop(0))
            nm = 4 * NF
            slots = {}
            for k, o in enumerate(ops):
                p = int((k + (0.25 if ch == 0 else 0.75)) * (nm - 4) / len(ops)) if tt > 0 else 2 * k
                slots.setdefault(p, []).append(o)
            for fr in range(NF):
                fi = tt * NF + fr; c = TL[fr // 2]; mat = fr & 1
                b = WB + 4 * (fi % NB)
                A.wait_lg(("F", fi))
                for i in range(4):
                    hb = HB + 16 * (tt % 3) + 4 * i
                    if fr == 0: A.wait_vm(("H", tt, i))
                    cc = "0" if tt == 0 else acc(i, c, mat)
                    I(f"v_mfma_f32_16x16x32_bf16 {acc(i,c,mat)}, v[{b}:{b+3}], v[{hb}:{hb+3}], {cc}")
                    if i == 0: rd(fi + PD)
                    for o in slots.get(4 * fr + i, []):
                        if o[0] == "W": dma_piece(o[1], o[2])
                        else: hload(o[1], o[2])
                if fr == mid and tt < 17:
                    A.wait_vm(("W", tt + 1))
                    I("s_barrier")
                    dl = SLOT if (tt % NSLOT) < NSLOT - 1 else -(NSLOT - 1) * SLOT
                    for m in range(4): I(f"v_add_u32 v{vA[(tt+1) & 1][m]}, {dl}, v{vA[tt & 1][m]}")
                if tt == 16 and fr == 1:
                    I(f"v_lshrrev_b32 v{T0+1}, 1, v{vL16}")
                    I(f"s_mul_i32 s47, s35, 768"); I(f"s_add_u32 s47, s47, {ST}")
                    for k in range(16): I(f"v_mov_b32 v{HB+k}, 0")
                    for i in range(4):
                        I(f"buffer_load_dwordx2 v[{HB+4*i}:{HB+4*i+1}], v{T0+1}, s[16:19], s47 offen offset:{768*i}", tag="ST")
                    I("s_mov_b32 exec_hi, 0")
                    for i in range(4):
                        I(f"buffer_load_dwordx2 v[{HB+4*i+2}:{HB+4*i+3}], v{T0+1}, s[16:19], s47 offen offset:{768*i+512}", tag="ST")
                    I("s_mov_b64 exec, -1")
        stamp(2)
        A.wait_vm("ST")
        I("s_lshl_b32 s46, s2, 3"); I("s_add_u32 s46, s46, s30"); I("s_mul_i32 s48, s46, 2688")
        I(f"v_lshlrev_b32 v{T0+2}, 3, v{vL16}")
        I("s_mov_b32 s24, s92"); I("s_mov_b32 s25, s93"); I("s_mov_b32 s26, 0x%x" % (D*F*2)); I("s_mov_b32 s27, 0x20000")
        I("s_mov_b32 exec_hi, 0"); I("s_mov_b32 exec_lo, 0x1fffff")
        I(f"buffer_load_dword v{T0+3}, v{T0+2}, s[24:27], s48 offen", tag="PF")
        I("s_mov_b64 exec, -1")
        I(f"s_mov_b32 s49, 0x3AE38E39")
        q = HB
        for i in range(4):
            I(f"v_add_f32 v{q+4*i}, v{q+4*i}, v{q+4*i+2}"); I(f"v_add_f32 v{q+4*i+1}, v{q+4*i+1}, v{q+4*i+3}")
        for op in ("v_permlane16_swap_b32", "v_permlane32_swap_b32"):
            for i in range(4):
                I(f"v_mov_b32 v{q+4*i+2}, v{q+4*i}"); I(f"v_mov_b32 v{q+4*i+3}, v{q+4*i+1}")
            for i in range(4):
                I(f"{op} v{q+4*i}, v{q+4*i+2}"); I(f"{op} v{q+4*i+1}, v{q+4*i+3}")
            I("s_nop 1")
            for i in range(4):
                I(f"v_add_f32 v{q+4*i}, v{q+4*i}, v{q+4*i+2}"); I(f"v_add_f32 v{q+4*i+1}, v{q+4*i+1}, v{q+4*i+3}")
        for i in range(4):
            m_, e_ = q + 4 * i, q + 4 * i + 1
            I(f"v_mul_f32 v{m_}, s49, v{m_}"); I(f"v_mul_f32 v{e_}, s49, v{e_}")
            I(f"v_fma_f32 v{e_}, -v{m_}, v{m_}, v{e_}")
            I(f"v_max_f32 v{e_}, 0, v{e_}")
            I(f"v_add_f32 v{e_}, 0x3727c5ac, v{e_}")
            I(f"v_rsq_f32 v{vR+2*i}, v{e_}")
            I(f"v_mul_f32 v{vR+2*i+1}, v{m_}, v{vR+2*i}")
            I(f"v_sub_f32 v{vR+2*i+1}, 0, v{vR+2*i+1}")
        I("s_mov_b32 s49, 0xbfb8aa3b")
        I("s_lshr_b32 s56, s34, 1"); I("s_mul_i32 s56, s56, 9"); I("s_and_b32 s58, s34, 1")
        I("s_lshl_b32 s59, s58, 2"); I("s_add_u32 s59, s59, s56"); I("s_lshl_b32 s59, s59, 10")
        I("s_add_u32 s56, s56, 8"); I("s_lshl_b32 s56, s56, 10"); I("s_lshl_b32 s58, s58, 3"); I("s_add_u32 s56, s56, s58")
        vcs = T0
        I(f"v_lshrrev_b32 v{vcs}, 8, v{vL16}")
        I(f"v_lshlrev_b32 v{vcs}, 4, v{vcs}")
        I(f"v_add_u32 v{vcs}, {LCS}, v{vcs}")
        CSR = HB + 16
        E = HB + 32
        for i in range(4):
            I(f"s_add_u32 s{52+i}, s35, {i}")
            I(f"s_mul_i32 s{52+i}, s{52+i}, 147456")
            I(f"s_add_u32 s{52+i}, s{52+i}, {ACT}")
        n = 0
        def csload(ci):
            c = TL[ci]; cb = CSR + 8 * (ci & 1)
            I(f"ds_read_b128 v[{cb}:{cb+3}], v{vcs} offset:{64*c}", tag=("CS", c))
            I(f"ds_read_b128 v[{cb+4}:{cb+7}], v{vcs} offset:{576 + 64*c}", tag=("CS", c))
        csload(0)
        for ci, c in enumerate(TL):
            if ci + 1 < nc: csload(ci + 1)
            A.wait_lg(("CS", c))
            cb = CSR + 8 * (ci & 1)
            for i in range(4):
                e = E + 8 * (n % 5); n += 1
                k = (i * NF + ci * 2) * 4
                g = k; u = k + 4
                ra, rb = vR + 2 * i, vR + 2 * i + 1
                for r in range(8): I(f"v_mul_f32 v{e+r}, v{rb}, v{cb+r}")
                for r in range(8): I(f"v_fmac_f32 v{e+r}, v{k+r}, v{ra}")
                g = e; u = e + 4
                for r in range(4): I(f"v_mul_f32 v{k+4+r}, s49, v{g+r}")
                for r in range(4): I(f"v_exp_f32 v{k+4+r}, v{k+4+r}")
                for r in range(4): I(f"v_mul_f32 v{u+r}, v{g+r}, v{u+r}")
                for r in range(4): I(f"v_add_f32 v{k+4+r}, 1.0, v{k+4+r}")
                for r in range(4): I(f"v_rcp_f32 v{k+4+r}, v{k+4+r}")
                for r in range(4): I(f"v_mul_f32 v{u+r}, v{u+r}, v{k+4+r}")
                if c == 8:
                    for r in range(2): I(f"v_cvt_pk_bf16_f32 v{k+r}, v{u+2*r}, v{u+2*r+1}")
                    I(f"s_add_u32 s57, s56, s{52+i}")
                    I(f"buffer_store_dwordx2 v[{k}:{k+1}], v{vL16}, s[16:19], s57 offen")
                else:
                    kp = k if (c & 1) == 0 else k - 8
                    for r in range(2): I(f"v_cvt_pk_bf16_f32 v{kp + 2*(c & 1) + r}, v{u+2*r}, v{u+2*r+1}")
                    if c & 1:
                        I(f"s_add_u32 s57, s59, s{52+i}")
                        I(f"buffer_store_dwordx4 v[{kp}:{kp+3}], v{vL16}, s[16:19], s57 offen offset:{1024*(c >> 1)} {STF}")
        if prof:
            I("s_waitcnt vmcnt(0)")
            stamp(3)
            I("s_lshl_b32 s96, s2, 3"); I("s_add_u32 s96, s96, s30"); I("s_lshl_b32 s96, s96, 7"); I(f"s_add_u32 s96, s96, {PROF}")
            for k in range(32): I(f"v_mov_b32 v{k}, s{60+k}")
            I("v_mov_b32 v32, 0")
            for k in range(8): I(f"buffer_store_dwordx4 v[{4*k}:{4*k+3}], v32, s[16:19], s96 offen offset:{16*k}")
        if ch == 0: I("s_endpgm")
    A.label(f"L{name}_end")
    I("s_endpgm")
    launch = f"; @launch kernel={name} grid=(256,1,1) block=(512,1,1) lds={LDS_BYTES}"
    return launch, A.text(), kernel_desc(name, 256)
```

```python
from asmlib import *
from layout import *

def gen_k4c(name="k4_kernel", prof=False, exp=""):
    A = Asm(); I = A.i
    PROF = 203 * MB
    SLOT = 24576; UOFF = 12288; NSLOT = 6
    LDS_BYTES = SLOT * NSLOT
    PD = 4; NB = 6
    HD = 6
    AB = 72; WB = 120
    vA = [[144, 145, 146, 147], [148, 149, 150, 151]]
    vD = [152, 153, 154]
    vL16 = 207
    T0 = 208
    A.raw(kernel_header(name))
    def stamp(i):
        if prof:
            I(f"s_memtime s[{60+4*i}:{61+4*i}]"); I(f"s_memrealtime s[{62+4*i}:{63+4*i}]"); I("s_waitcnt lgkmcnt(0)")
    I("s_cmp_ge_u32 s2, 256")
    I(f"s_cbranch_scc1 L{name}_end")
    stamp(0)
    I("s_load_dwordx2 s[4:5], s[0:1], 48")
    I("s_load_dwordx4 s[20:23], s[0:1], 56")
    I("s_load_dwordx2 s[24:25], s[0:1], 72")
    lane = T0
    I(f"v_lshrrev_b32 v{T0+1}, 6, v0")
    I(f"v_readfirstlane_b32 s30, v{T0+1}")
    I(f"v_and_b32 v{lane}, 63, v0")
    I("s_and_b32 s31, s2, 7"); I("s_lshr_b32 s32, s2, 3")
    I("s_lshr_b32 s33, s31, 1")
    I("s_and_b32 s34, s31, 1"); I("s_lshl_b32 s34, s34, 1"); I("s_and_b32 s36, s32, 1"); I("s_add_u32 s34, s34, s36")
    I("s_lshr_b32 s32, s32, 1")
    I("s_and_b32 s41, s30, 3"); I("s_lshr_b32 s39, s30, 2")
    I("s_lshl_b32 s35, s32, 3"); I("s_lshl_b32 s36, s41, 1"); I("s_add_u32 s35, s35, s36")
    I(f"v_lshlrev_b32 v{vL16}, 4, v{lane}")
    I("s_mov_b32 s36, 0xAAAB")
    for x in range(3):
        q, rw, p, t = T0+2, T0+3, T0+4, T0+5
        I(f"v_add_u32 v{q}, {64*x}, v{lane}")
        I(f"v_mul_lo_u32 v{rw}, v{q}, s36")
        I(f"v_lshrrev_b32 v{rw}, 20, v{rw}")
        I(f"v_mul_u32_u24 v{t}, 24, v{rw}")
        I(f"v_sub_u32 v{p}, v{q}, v{t}")
        I(f"v_and_b32 v{t}, 6, v{rw}")
        I(f"v_xor_b32 v{p}, v{p}, v{t}")
        I(f"v_mul_u32_u24 v{t}, 1152, v{rw}")
        I(f"v_lshl_add_u32 v{vD[x]}, v{p}, 4, v{t}")
    I("s_mul_i32 s40, s33, 1152"); I("s_mul_i32 s42, s39, 576"); I("s_add_u32 s40, s40, s42")
    I("s_lshl_b32 s42, s41, 3"); I("s_add_u32 s40, s40, s42")
    I("s_mul_i32 s40, s40, 1152")
    I("s_lshr_b32 s45, s41, 1"); I(f"s_mul_i32 s45, s45, {128*1152}")
    I("s_lshl_b32 s42, s34, 8"); I("s_add_u32 s40, s40, s42")
    I("s_mul_i32 s43, s41, 3072")
    I(f"s_mul_i32 s44, s39, {UOFF}"); I("s_add_u32 s43, s43, s44")
    I("s_mul_i32 s46, s33, 36"); I("s_mul_i32 s47, s39, 18"); I("s_add_u32 s46, s46, s47")
    for i in range(2):
        I(f"s_add_u32 s{52+i}, s35, {i}")
        I(f"s_mul_i32 s{52+i}, s{52+i}, 144")
        I(f"s_add_u32 s{52+i}, s{52+i}, s46")
        I(f"s_lshl_b32 s{52+i}, s{52+i}, 10")
        I(f"s_add_u32 s{52+i}, s{52+i}, {ACT}")
    I("s_waitcnt lgkmcnt(0)")
    I("s_mov_b32 s8, s4"); I("s_mov_b32 s9, s5"); I(f"s_mov_b32 s10, {D*F*2}"); I("s_mov_b32 s11, 0x20000")
    I("s_mov_b32 s16, s24"); I("s_mov_b32 s17, s25"); I(f"s_mov_b32 s18, {WS_BYTES}"); I("s_mov_b32 s19, 0x20000")
    def dma_piece(u, x):
        I(f"s_add_u32 m0, s43, {1024*x + (u % NSLOT)*SLOT}")
        sp = u // 9; v = u % 9
        row = 288 * sp + (32 * v if v < 4 else (144 + 32 * (v - 4) if v < 8 else 128))
        if x == 0:
            I(f"s_add_u32 s37, s40, {row*1152}")
            if v == 8: I("s_add_u32 s37, s37, s45")
        I(f"buffer_load_dwordx4 v{vD[x]}, s[8:11], s37 offen lds", tag=("W", u))
    def dma_unit(u):
        for x in range(3): dma_piece(u, x)
    def aload(t):
        for i in range(2):
            b = AB + 8 * (t % HD) + 4 * i
            I(f"buffer_load_dwordx4 v[{b}:{b+3}], v{vL16}, s[16:19], s{52+i} offen", tag=("H", t, i))
            I(f"s_add_u32 s{52+i}, s{52+i}, 1024")
    dma_unit(0); aload(0); dma_unit(1); aload(1)
    I("s_mov_b32 s12, s20"); I("s_mov_b32 s13, s21"); I(f"s_mov_b32 s14, {S*D*2}"); I("s_mov_b32 s15, 0x20000")
    rowv, f, c4, t = T0+2, T0+3, T0+4, T0+5
    I(f"v_lshrrev_b32 v{rowv}, 2, v{lane}")
    I(f"v_bfe_u32 v{f}, v{lane}, 3, 2")
    I(f"v_and_b32 v{c4}, 3, v{lane}")
    I(f"v_mul_u32_u24 v{rowv}, 384, v{rowv}")
    I(f"v_lshl_add_u32 v{rowv}, v{c4}, 3, v{rowv}")
    I(f"s_mul_i32 s38, s39, {UOFF}")
    I(f"v_add_u32 v{rowv}, s38, v{rowv}")
    for m in range(4):
        I(f"s_add_u32 s38, s34, {m}")
        I(f"v_xor_b32 v{t}, s38, v{f}")
        I(f"v_lshl_add_u32 v{vA[0][m]}, v{t}, 5, v{rowv}")
    A.wait_vm(("W", 0))
    I("s_barrier")
    def acc(i, c):
        k = (i * 9 + c) * 4
        return f"v[{k}:{k+3}]"
    def rd(fi):
        tt = fi // 9; c = fi % 9
        if tt >= 18: return
        b = WB + 4 * (fi % NB)
        for x in range(2):
            I(f"ds_read_b64_tr_b16 v[{b+2*x}:{b+2*x+1}], v{vA[tt & 1][c & 3]} offset:{128*(c >> 2) + x*6144}", tag=("F", fi))
    for fi in range(PD): rd(fi)
    stamp(1)
    def aload1(t, i):
        b = AB + 8 * (t % HD) + 4 * i
        I(f"buffer_load_dwordx4 v[{b}:{b+3}], v{vL16}, s[16:19], s{52+i} offen", tag=("H", t, i))
        I(f"s_add_u32 s{52+i}, s{52+i}, 1024")
    nextW = 2; nextA = 2
    for tt in range(18):
        wl = []
        while nextW <= min(17, tt + 4) and len(wl) < (2 if tt < 3 else 1): wl.append(nextW); nextW += 1
        al = []
        while nextA <= min(17, tt + 5) and len(al) < (2 if tt < 4 else 1): al.append(nextA); nextA += 1
        wp = [("W", u, x) for u in wl for x in range(3)]
        hp = [("H", t_, i_) for t_ in al for i_ in range(2)]
        ops = []
        while wp or hp:
            if wp: ops.append(wp.pop(0))
            if hp: ops.append(hp.pop(0))
        slots = {}
        for k, o in enumerate(ops):
            slots.setdefault(int((k + 0.5) * 18 / len(ops)), []).append(o)
        for c in range(9):
            fi = tt * 9 + c
            b = WB + 4 * (fi % NB)
            A.wait_lg(("F", fi))
            for i in range(2):
                hb = AB + 8 * (tt % HD) + 4 * i
                if c == 0: A.wait_vm(("H", tt, i))
                cc = "0" if tt == 0 else acc(i, c)
                I(f"v_mfma_f32_16x16x32_bf16 {acc(i,c)}, v[{b}:{b+3}], v[{hb}:{hb+3}], {cc}")
                if i == 0: rd(fi + PD)
                for o in slots.get(2 * c + i, []):
                    if o[0] == "W": dma_piece(o[1], o[2])
                    else: aload1(o[1], o[2])
            if c == 3 and tt < 17:
                A.wait_vm(("W", tt + 1))
                I("s_barrier")
                dl = SLOT if (tt % NSLOT) < NSLOT - 1 else -(NSLOT - 1) * SLOT
                for m in range(4): I(f"v_add_u32 v{vA[(tt+1) & 1][m]}, {dl}, v{vA[tt & 1][m]}")
    stamp(2)
    I("s_barrier")
    I(f"s_mul_i32 s46, s30, 9216")
    I(f"v_add_u32 v{T0+1}, s46, v{vL16}")
    I("s_xor_b32 s47, s30, 4"); I(f"s_mul_i32 s47, s47, 9216")
    I(f"v_add_u32 v{T0+2}, s47, v{vL16}")
    I("s_cmp_eq_u32 s39, 0")
    I(f"s_cbranch_scc1 L{name}_kh0")
    for c in range(9): I(f"ds_write_b128 v{T0+1}, v[{4*c}:{4*c+3}] offset:{1024*c}")
    A.flush_hazards()
    for k in range(36): I(f"v_mov_b32 v{k}, v{36+k}")
    I(f"s_branch L{name}_khj")
    A.label(f"L{name}_kh0")
    for c in range(9): I(f"ds_write_b128 v{T0+1}, v[{36+4*c}:{36+4*c+3}] offset:{1024*c}")
    A.label(f"L{name}_khj")
    I("s_waitcnt lgkmcnt(0)")
    I("s_barrier")
    for c in range(9): I(f"ds_read_b128 v[{36+4*c}:{36+4*c+3}], v{T0+2} offset:{1024*c}", tag=("X", c))
    I("s_lshl_b32 s46, s32, 2"); I("s_add_u32 s46, s46, s34")
    I("s_lshl_b32 s47, s46, 3"); I("s_add_u32 s47, s47, s30"); I("s_mul_i32 s47, s47, 4608"); I(f"s_add_u32 s47, s47, {SLAB}")
    I(f"s_mul_i32 s48, s33, {64*8*4608}"); I("s_add_u32 s48, s48, s47")
    I("s_sub_u32 s54, s33, s30"); I("s_and_b32 s54, s54, 3")
    I("s_add_u32 s49, s35, s39"); I("s_mul_i32 s49, s49, 36"); I("s_mul_i32 s50, s34, 9"); I("s_add_u32 s49, s49, s50")
    I("s_lshl_b32 s49, s49, 9"); I(f"s_add_u32 s49, s49, {H4}")
    I(f"v_lshrrev_b32 v{T0+3}, 1, v{vL16}")
    HR = 72; PK = 92
    n = [0]
    order = [0, 4, 1, 5, 2, 6, 3, 7, 8]
    for c in order:
        A.wait_lg(("X", c))
        for r in range(4): I(f"v_add_f32 v{4*c+r}, v{4*c+r}, v{36+4*c+r}")
        if c < 4: continue
        q = c & 3
        n[0] += 1
        I(f"s_cmp_eq_u32 s54, {q}")
        I(f"s_cbranch_scc1 L{name}_own{n[0]}")
        if c < 8:
            p = PK + 4 * q
            for h_, cc in enumerate((q, q + 4)):
                I(f"v_cvt_pk_bf16_f32 v{p+2*h_}, v{4*cc}, v{4*cc+1}"); I(f"v_cvt_pk_bf16_f32 v{p+2*h_+1}, v{4*cc+2}, v{4*cc+3}")
            I(f"buffer_store_dwordx4 v[{p}:{p+3}], v{vL16}, s[16:19], s48 offen offset:{1024*q} sc1")
        else:
            p = PK + 16
            I(f"v_cvt_pk_bf16_f32 v{p}, v32, v33"); I(f"v_cvt_pk_bf16_f32 v{p+1}, v34, v35")
            I(f"s_add_u32 s50, s48, 4096")
            I(f"buffer_store_dwordx2 v[{p}:{p+1}], v{T0+3}, s[16:19], s50 offen sc1")
        I(f"s_branch L{name}_ownj{n[0]}")
        A.label(f"L{name}_own{n[0]}")
        for cc in ((q, q + 4) if c < 8 else (8,)):
            I(f"s_add_u32 s50, s49, {512*cc}")
            I(f"buffer_load_dwordx2 v[{HR+2*cc}:{HR+2*cc+1}], v{T0+3}, s[16:19], s50 offen")
        A.label(f"L{name}_ownj{n[0]}")
    I(f"v_lshrrev_b32 v200, 4, v{vL16}")
    I(f"v_and_b32 v201, 15, v200"); I(f"v_lshrrev_b32 v200, 4, v200")
    I(f"v_mul_u32_u24 v201, 1152, v201"); I(f"v_lshl_add_u32 v201, v200, 3, v201")
    I("s_add_u32 s49, s35, s39"); I(f"s_mul_i32 s49, s49, {16*1152}"); I("s_mul_i32 s50, s34, 288"); I("s_add_u32 s49, s49, s50")
    stamp(3)
    I("s_waitcnt vmcnt(0)")
    stamp(4)
    I("s_barrier")
    I("s_cmp_lg_u32 s30, 0")
    I(f"s_cbranch_scc1 L{name}_noat")
    I("s_lshl_b32 s50, s46, 7"); I(f"s_add_u32 s50, s50, {FLG}")
    I("s_lshl_b32 s51, s33, 2")
    I(f"v_mov_b32 v{T0+4}, s51"); I(f"v_mov_b32 v{T0+5}, 1"); I(f"v_mov_b32 v{T0+6}, 0")
    I("s_mov_b64 exec, 1")
    I(f"buffer_store_dword v{T0+5}, v{T0+4}, s[16:19], s50 offen sc1")
    A.label(f"L{name}_poll")
    I(f"buffer_load_dwordx4 v[196:199], v{T0+6}, s[16:19], s50 offen sc1")
    I("s_waitcnt vmcnt(0)")
    I("v_and_b32 v196, v196, v197"); I("v_and_b32 v198, v198, v199"); I("v_and_b32 v196, v196, v198")
    I(f"v_readfirstlane_b32 s51, v196")
    I("s_cmp_lg_u32 s51, 1")
    I(f"s_cbranch_scc1 L{name}_poll")
    I("s_mov_b64 exec, -1")
    A.label(f"L{name}_noat")
    I("s_barrier")
    stamp(5)
    LB = 112
    I("s_lshl_b32 s55, s54, 10")
    for d in range(1, 4):
        I(f"s_add_u32 s50, s33, {d}"); I("s_and_b32 s50, s50, 3"); I(f"s_mul_i32 s50, s50, {64*8*4608}"); I("s_add_u32 s50, s50, s47")
        I(f"s_add_u32 s{55+d}, s50, 4096")
        I("s_add_u32 s50, s50, s55")
        I(f"buffer_load_dwordx4 v[{LB+4*(d-1)}:{LB+4*(d-1)+3}], v{vL16}, s[16:19], s50 offen sc1")
    I("s_cmp_lg_u32 s54, 0")
    I(f"s_cbranch_scc1 L{name}_no8")
    for d in range(1, 4):
        I(f"buffer_load_dwordx2 v[{LB+12+2*(d-1)}:{LB+13+2*(d-1)}], v{T0+3}, s[16:19], s{55+d} offen sc1")
    A.label(f"L{name}_no8")
    I("s_waitcnt vmcnt(0)")
    stamp(6)
    def addbf(c, src):
        I(f"v_lshlrev_b32 v202, 16, v{src}"); I(f"v_and_b32 v203, 0xffff0000, v{src}")
        I(f"v_lshlrev_b32 v204, 16, v{src+1}"); I(f"v_and_b32 v205, 0xffff0000, v{src+1}")
        for r in range(4): I(f"v_add_f32 v{4*c+r}, v{4*c+r}, v{202+r}")
    def fin(c):
        addbf(c, HR + 2 * c)
        I(f"v_cvt_pk_bf16_f32 v{4*c}, v{4*c}, v{4*c+1}"); I(f"v_cvt_pk_bf16_f32 v{4*c+1}, v{4*c+2}, v{4*c+3}")
        I(f"buffer_store_dwordx2 v[{4*c}:{4*c+1}], v201, s[12:15], s49 offen offset:{32*c}")
    for q in range(4):
        n[0] += 1
        I(f"s_cmp_lg_u32 s54, {q}")
        I(f"s_cbranch_scc1 L{name}_sk{n[0]}")
        for h_, cc in enumerate((q, q + 4)):
            for d in range(3): addbf(cc, LB + 4 * d + 2 * h_)
            fin(cc)
        if q == 0:
            for d in range(3): addbf(8, LB + 12 + 2 * d)
            fin(8)
        A.label(f"L{name}_sk{n[0]}")
    if prof:
        I("s_waitcnt vmcnt(0)")
        stamp(7)
        I("s_lshl_b32 s96, s2, 3"); I("s_add_u32 s96, s96, s30"); I("s_lshl_b32 s96, s96, 7"); I(f"s_add_u32 s96, s96, {PROF}")
        for k in range(32): I(f"v_mov_b32 v{k}, s{60+k}")
        I("v_mov_b32 v32, 0")
        for k in range(8): I(f"buffer_store_dwordx4 v[{4*k}:{4*k+3}], v32, s[16:19], s96 offen offset:{16*k}")
    A.label(f"L{name}_end")
    I("s_endpgm")
    launch = f"; @launch kernel={name} grid=(256,1,1) block=(512,1,1) lds={LDS_BYTES}"
    return launch, A.text(), kernel_desc(name, 216)
```

```python
from asmlib import *
from layout import *

def phi2(I, regs, tmp, s_log2e):
    for r, t in zip(regs, tmp): I(f"v_min_f32 v{t}, 0, v{r}")
    for r, t in zip(regs, tmp): I(f"v_mul_f32 v{t}, {s_log2e}, v{t}")
    for r, t in zip(regs, tmp): I(f"v_exp_f32 v{t}, v{t}")
    for r, t in zip(regs, tmp): I(f"v_max_f32 v{r}, 0, v{r}")
    for r, t in zip(regs, tmp): I(f"v_add_f32 v{t}, 0x358637bd, v{t}")
    for r, t in zip(regs, tmp): I(f"v_add_f32 v{r}, v{r}, v{t}")

def gen_k1c(name="k1_kernel", prof=False, exp=""):
    A = Asm(); I = A.i
    PROF = 200 * MB
    SLOT = 32768; NSLOT = 5; WOFF = 16384
    MISC = 0x6000 + 0x4000
    STP = MISC
    CSP = MISC + 4096
    FIN = MISC + 8192
    CSF = MISC + 10240
    LDS_BYTES = SLOT * NSLOT
    AC = 0
    XB = 32
    WB = 48
    SA = 80
    vX = [88, 89, 90, 91]
    vT = [92, 93]
    vXD, vWD = 94, 95
    vL16, lane = 96, 97
    T0 = 100
    A.raw(kernel_header(name))
    def stamp(i):
        if prof:
            I(f"s_memtime s[{60+4*i}:{61+4*i}]"); I(f"s_memrealtime s[{62+4*i}:{63+4*i}]"); I("s_waitcnt lgkmcnt(0)")
    I("s_cmp_ge_u32 s2, 256")
    I(f"s_cbranch_scc1 L{name}_end")
    stamp(0)
    I("s_load_dwordx4 s[4:7], s[0:1], 0")
    I("s_load_dwordx4 s[20:23], s[0:1], 64")
    I("s_load_dwordx2 s[84:85], s[0:1], 16")
    I("s_load_dwordx4 s[88:91], s[0:1], 32")
    I("s_load_dwordx2 s[92:93], s[0:1], 48")
    I(f"v_lshrrev_b32 v{T0}, 6, v0")
    I(f"v_readfirstlane_b32 s30, v{T0}")
    I(f"v_and_b32 v{lane}, 63, v0")
    I("s_and_b32 s31, s2, 7"); I("s_lshr_b32 s32, s2, 3")
    I("s_and_b32 s33, s31, 1"); I("s_lshl_b32 s33, s33, 3"); I("s_lshr_b32 s34, s32, 2"); I("s_add_u32 s33, s33, s34")
    I("s_lshr_b32 s34, s31, 1"); I("s_lshl_b32 s34, s34, 2"); I("s_and_b32 s32, s32, 3"); I("s_add_u32 s32, s32, s34")
    I("s_and_b32 s41, s30, 3")
    I("s_lshr_b32 s39, s30, 2")
    I(f"v_lshlrev_b32 v{vL16}, 4, v{lane}")
    I(f"v_lshrrev_b32 v{T0}, 4, v{lane}")
    I("s_and_b32 s42, s30, 1"); I("s_lshl_b32 s42, s42, 2")
    I(f"v_add_u32 v{T0}, s42, v{T0}")
    I(f"v_and_b32 v{T0+1}, 7, v{lane}")
    I(f"v_xor_b32 v{T0}, v{T0}, v{T0+1}")
    I(f"v_lshrrev_b32 v{T0+1}, 3, v{lane}")
    I(f"v_mul_u32_u24 v{T0+1}, 1152, v{T0+1}")
    I(f"v_lshl_add_u32 v{vXD}, v{T0}, 4, v{T0+1}")
    gi, sp, r_, t = T0, T0+1, T0+2, T0+3
    I(f"v_lshrrev_b32 v{gi}, 4, v{lane}"); I(f"v_and_b32 v{t}, 3, v{lane}"); I(f"v_lshl_add_u32 v{gi}, v{gi}, 2, v{t}")
    I(f"v_min_u32 v{gi}, 14, v{gi}")
    I(f"v_mul_u32_u24 v{sp}, 52, v{gi}"); I(f"v_lshrrev_b32 v{sp}, 8, v{sp}")
    I(f"v_mul_u32_u24 v{t}, 5, v{sp}"); I(f"v_sub_u32 v{gi}, v{gi}, v{t}")
    I(f"v_bfe_u32 v{r_}, v{lane}, 2, 2")
    I(f"v_mul_u32_u24 v{r_}, 3456, v{r_}")
    I(f"v_mul_u32_u24 v{sp}, 1152, v{sp}")
    I(f"v_add_u32 v{r_}, v{r_}, v{sp}")
    I(f"v_lshl_add_u32 v{vWD}, v{gi}, 4, v{r_}")
    I("s_waitcnt lgkmcnt(0)")
    I("s_mov_b32 s8, s4"); I("s_mov_b32 s9, s5"); I(f"s_mov_b32 s10, {S*D*2}"); I("s_mov_b32 s11, 0x20000")
    I("s_mov_b32 s12, s6"); I("s_mov_b32 s13, s7"); I(f"s_mov_b32 s14, {D*3*D*2}"); I("s_mov_b32 s15, 0x20000")
    I("s_mov_b32 s16, s22"); I("s_mov_b32 s17, s23"); I(f"s_mov_b32 s18, {WS_BYTES}"); I("s_mov_b32 s19, 0x20000")
    I("s_cmp_ge_u32 s2, 72"); I(f"s_cbranch_scc1 L{name}_nz")
    I("s_cmp_lg_u32 s30, 7"); I(f"s_cbranch_scc1 L{name}_nz")
    I("s_lshl_b32 s42, s2, 7"); I(f"s_add_u32 s42, s42, {FLG}")
    I("s_cmp_ge_u32 s2, 64"); I(f"s_cselect_b32 s43, {FL2 - FLG - 64*128}, 0"); I("s_add_u32 s42, s42, s43")
    I(f"v_mov_b32 v{T0+4}, 0"); I(f"v_lshlrev_b32 v{T0+5}, 2, v{lane}")
    I("s_mov_b32 exec_hi, 0")
    A.raw(f"    buffer_store_dword v{T0+4}, v{T0+5}, s[16:19], s42 offen")
    I("s_mov_b64 exec, -1")
    A.label(f"L{name}_nz")
    I("s_lshl_b32 s40, s32, 7"); I("s_lshl_b32 s42, s30, 3"); I("s_add_u32 s40, s40, s42"); I("s_mul_i32 s40, s40, 1152")
    I(f"s_add_u32 s43, s40, {64*1152}")
    I("s_mul_i32 s44, s33, 72"); I("s_and_b32 s44, s44, 0xfffffff0")
    I(f"s_mul_i32 s45, s30, {4*3456}"); I("s_add_u32 s44, s44, s45")
    I("s_lshl_b32 s45, s30, 10")
    def dma_part(c, p):
        sb = (c % NSLOT) * SLOT
        if p == 0:
            I(f"s_add_u32 m0, s45, {sb}")
            I(f"buffer_load_dwordx4 v{vXD}, s[8:11], s40 offen lds", tag=("C", c))
        elif p == 1:
            I(f"s_add_u32 m0, s45, {sb + WOFF}")
            I(f"buffer_load_dwordx4 v{vWD}, s[12:15], s44 offen lds", tag=("C", c))
            I(f"s_add_u32 s44, s44, {32*3456}")
        elif p == 2:
            I(f"s_add_u32 m0, s45, {sb + 8192}")
            I(f"buffer_load_dwordx4 v{vXD}, s[8:11], s43 offen lds", tag=("C", c))
            I("s_add_u32 s40, s40, 128"); I("s_add_u32 s43, s43, 128")
        else:
            I(f"s_add_u32 m0, s45, {sb + WOFF + 8192}")
            I(f"buffer_load_dwordx4 v{vWD}, s[12:15], s44 offen lds", tag=("C", c))
            I(f"s_add_u32 s44, s44, {32*3456}")
    def dma_chunk(c):
        for p in range(4): dma_part(c, p)
    dma_chunk(0)
    s_, hf, f, t = T0, T0+1, T0+2, T0+3
    I(f"v_and_b32 v{s_}, 31, v{lane}"); I(f"v_lshrrev_b32 v{hf}, 5, v{lane}"); I(f"v_bfe_u32 v{f}, v{lane}, 1, 3")
    I("s_lshl_b32 s42, s41, 5"); I(f"v_add_u32 v{s_}, s42, v{s_}"); I(f"v_lshlrev_b32 v{s_}, 7, v{s_}")
    for m in range(4):
        I(f"v_add_u32 v{t}, {2*m}, v{hf}"); I(f"v_xor_b32 v{t}, v{t}, v{f}"); I(f"v_lshl_add_u32 v{vX[m]}, v{t}, 4, v{s_}")
    i_, w0, w1, t, base = T0+4, T0+5, T0+6, T0+7, T0+9
    I(f"v_bfe_u32 v{i_}, v{lane}, 4, 1"); I(f"v_and_b32 v{t}, 3, v{lane}"); I(f"v_lshl_add_u32 v{i_}, v{i_}, 2, v{t}")
    I("s_and_b32 s46, s33, 1")
    I("s_cmp_eq_u32 s39, 0")
    I(f"s_cbranch_scc0 L{name}_u1")
    I(f"v_add_u32 v{w0}, s46, v{i_}"); I(f"v_add_u32 v{w1}, 10, v{w0}")
    I(f"s_branch L{name}_uj")
    A.label(f"L{name}_u1")
    I(f"v_add_u32 v{w0}, 19, v{i_}")
    I(f"v_cmp_eq_u32 vcc, 0, v{i_}"); I(f"v_mov_b32 v{t}, 18"); I(f"v_cndmask_b32 v{w0}, v{w0}, v{t}, vcc")
    I(f"v_add_u32 v{w0}, s46, v{w0}")
    I(f"v_add_u32 v{w1}, 27, v{i_}")
    I(f"v_cmp_gt_u32 vcc, 2, v{i_}"); I(f"v_mov_b32 v{t}, 8"); I(f"v_cndmask_b32 v{w1}, v{t}, v{w1}, vcc")
    I(f"v_add_u32 v{w1}, s46, v{w1}")
    A.label(f"L{name}_uj")
    A.flush_hazards()
    I(f"v_lshrrev_b32 v{base}, 5, v{lane}"); I(f"v_lshlrev_b32 v{base}, 11, v{base}")
    I(f"v_bfe_u32 v{t}, v{lane}, 2, 2"); I(f"v_lshl_add_u32 v{base}, v{t}, 6, v{base}")
    I(f"v_add_u32 v{base}, {WOFF}, v{base}")
    for k, w in enumerate((w0, w1)):
        I(f"v_lshrrev_b32 v{t}, 3, v{w}"); I(f"v_lshl_add_u32 v{vT[k]}, v{t}, 8, v{base}")
        I(f"v_and_b32 v{t}, 7, v{w}"); I(f"v_lshl_add_u32 v{vT[k]}, v{t}, 3, v{vT[k]}")
    vX2 = [T0+10+m for m in range(4)]; vT2 = [T0+14, T0+15]
    vX3 = [T0+26+m for m in range(4)]; vT3 = [T0+30, T0+31]
    for m in range(4): I(f"v_add_u32 v{vX2[m]}, 65536, v{vX[m]}")
    for k in range(2): I(f"v_add_u32 v{vT2[k]}, 65536, v{vT[k]}")
    for m in range(4): I(f"v_add_u32 v{vX3[m]}, 131072, v{vX[m]}")
    for k in range(2): I(f"v_add_u32 v{vT3[k]}, 131072, v{vT[k]}")
    for k in range(32): I(f"v_mov_b32 v{AC+k}, 0")
    for k in range(6): I(f"v_mov_b32 v{SA+k}, 0")
    I("s_mov_b32 s47, 0x3f803f80")
    dma_chunk(1)
    A.wait_vm(("C", 0))
    I("s_barrier")
    stamp(1)
    I("s_lshr_b32 s46, s2, 3"); I("s_lshl_b32 s46, s46, 3"); I("s_add_u32 s46, s46, s30")
    I(f"v_lshlrev_b32 v{T0+20}, 7, v{lane}")
    I("s_lshr_b32 s48, s31, 1"); I(f"s_mul_i32 s48, s48, {512*1152}"); I("s_mul_i32 s49, s46, 2304"); I("s_add_u32 s48, s48, s49")
    I("s_mul_i32 s49, s46, 34")
    I(f"v_add_u32 v{T0+21}, s49, v{lane}")
    I("s_mov_b32 s49, 0xCCCD")
    I(f"v_mul_lo_u32 v{T0+22}, v{T0+21}, s49"); I(f"v_lshrrev_b32 v{T0+22}, 18, v{T0+22}")
    I(f"v_mul_u32_u24 v{T0+23}, 5, v{T0+22}"); I(f"v_sub_u32 v{T0+21}, v{T0+21}, v{T0+23}")
    I(f"v_mul_u32_u24 v{T0+22}, 1152, v{T0+22}"); I(f"v_lshl_add_u32 v{T0+21}, v{T0+21}, 7, v{T0+22}")
    I("s_and_b32 s49, s31, 1"); I("s_lshl_b32 s49, s49, 9")
    I("s_mov_b32 exec_hi, 0"); I("s_mov_b32 exec_lo, 0x3ffff")
    I(f"buffer_load_dword v180, v{T0+20}, s[8:11], s48 offen", tag="PF0")
    I("s_mov_b32 exec_hi, 3"); I("s_mov_b32 exec_lo, -1")
    I(f"buffer_load_dword v181, v{T0+21}, s[12:15], s49 offen", tag="PF0")
    I("s_mov_b64 exec, -1")
    I("s_getpc_b64 s[94:95]")
    A.label(f"L{name}_pc")
    A.raw(f"    s_sub_u32 s94, s94, (L{name}_pc - {name})")
    I("s_subb_u32 s95, s95, 0")
    I("s_lshl_b32 s49, s46, 10")
    I(f"v_add_u32 v{T0+22}, s49, v{T0+20}")
    A.raw(f"    v_cmp_gt_u32 vcc, (Lcode_end - {name}), v{T0+22}")
    I("s_nop 1")
    I("s_and_b32 exec_lo, vcc_lo, 0xff"); I("s_mov_b32 exec_hi, 0")
    I(f"s_cbranch_execz L{name}_nocp")
    A.raw(f"    global_load_dword v182, v{T0+22}, s[94:95]")
    A.label(f"L{name}_nocp")
    I("s_mov_b64 exec, -1")
    I("s_cmp_eq_u32 s39, 0")
    I(f"s_cbranch_scc0 L{name}_cg1")
    saved = (list(A.vmq), A.vmdone, list(A.lgq), A.lgdone)
    lab = [0]
    for cg in range(2):
        if cg == 1:
            A.label(f"L{name}_cg1")
            A.vmq, A.vmdone, A.lgq, A.lgdone = list(saved[0]), saved[1], list(saved[2]), saved[3]
            A.hist = []
        def rd(tt, part):
            c = tt >> 2; tl = tt & 3; sl = c % NSLOT
            off = (sl & 1) * SLOT
            xa = (vX, vX2, vX3)[sl >> 1][tl]; ta = (vT, vT2, vT3)[sl >> 1]
            xb = XB + 4 * (tt % 4)
            if part == 0: I(f"ds_read_b128 v[{xb}:{xb+3}], v{xa} offset:{off}", tag=("F", tt, 0))
            k = part
            b = WB + 8 * (tt % 4) + 4 * k
            for x in range(2):
                I(f"ds_read_b64_tr_b16 v[{b+2*x}:{b+2*x+1}], v{ta[k]} offset:{off + tl*4096 + x*1024}", tag=("F", tt, k))
        PDK = 3
        pend = []
        for tt in range(PDK): rd(tt, 0); rd(tt, 1)
        for tt in range(36):
            c = tt >> 2; tl = tt & 3
            xb = XB + 4 * (tt % 4)
            xf = f"v[{xb}:{xb+3}]"
            dots = []
            if (tl >> 1) == cg:
                for d in range(4):
                    dots.append(f"v_dot2c_f32_bf16 v{SA + (d & 1)}, s47, v{xb+d}")
                    dots.append(f"v_dot2c_f32_bf16 v{SA + 2 + (d & 1)}, v{xb+d}, v{xb+d}")
            for k in range(2):
                A.wait_lg(("F", tt, k))
                b = WB + 8 * (tt % 4) + 4 * k
                ac = f"v[{AC+16*k}:{AC+16*k+15}]"; wf = f"v[{b}:{b+3}]"
                if cg == 0 and k == 0: I(f"v_mfma_f32_32x32x16_bf16 {ac}, {wf}, {xf}, {ac}")
                else: I(f"v_mfma_f32_32x32x16_bf16 {ac}, {xf}, {wf}, {ac}")
                for o in dots[4*k:4*k+4]: I(o)
                if k == 0:
                    pass
                if k == 1:
                    lab[0] += 1
                    I(f"s_cmp_lg_u32 s41, {tl}")
                    I(f"s_cbranch_scc1 L{name}_ncs{lab[0]}")
                    for k2 in range(2):
                        b2 = WB + 8 * (tt % 4) + 4 * k2
                        for d in range(4): I(f"v_dot2c_f32_bf16 v{SA+4+k2}, s47, v{b2+d}")
                    A.label(f"L{name}_ncs{lab[0]}")
                if tt + PDK < 36: rd(tt + PDK, k)
                if pend and (k == 0 or len(pend) > 4 or c < 2): dma_part(*pend.pop(0))
            if tl == 0 and c < 8:
                A.wait_vm(("C", c + 1))
                I("s_barrier")
                pend += [(cc, p) for cc in {0: [2, 3], 1: [4, 5]}.get(c, [c + 4] if c + 4 < 9 else []) for p in range(4)]
                if c == 4:
                    I("s_lshr_b32 s46, s2, 3"); I("s_lshl_b32 s46, s46, 3"); I("s_add_u32 s46, s46, s30")
                    I(f"v_lshlrev_b32 v{T0+20}, 7, v{lane}")
                    I("s_mov_b32 s27, 0x20000"); I("s_mov_b32 exec_hi, 0")
                    I("s_mov_b32 exec_lo, 0x1fffff")
                    I("s_mul_i32 s48, s46, 2688")
                    I("s_mov_b32 s24, s84"); I("s_mov_b32 s25, s85"); I("s_mov_b32 s26, 0x%x" % (D*D*2))
                    I(f"buffer_load_dword v179, v{T0+20}, s[24:27], s48 offen", tag="PF")
                    I("s_mov_b64 exec, -1")
                    I("s_lshl_b32 s46, s2, 3"); I("s_add_u32 s46, s46, s30")
                if c == 7:
                    I("s_lshr_b32 s46, s2, 3"); I("s_lshl_b32 s46, s46, 3"); I("s_add_u32 s46, s46, s30"); I("s_mul_i32 s46, s46, 21")
                    I(f"v_add_u32 v{T0+20}, s46, v{lane}")
                    I("s_mov_b32 s48, 0xE38F")
                    I(f"v_mul_lo_u32 v{T0+21}, v{T0+20}, s48"); I(f"v_lshrrev_b32 v{T0+21}, 19, v{T0+21}")
                    I(f"v_mul_u32_u24 v{T0+22}, 9, v{T0+21}"); I(f"v_sub_u32 v{T0+20}, v{T0+20}, v{T0+22}")
                    I(f"v_mul_u32_u24 v{T0+21}, 9216, v{T0+21}"); I(f"v_lshl_add_u32 v{T0+20}, v{T0+20}, 7, v{T0+21}")
                    I("s_mul_i32 s48, s31, 1152")
                    I("s_mov_b32 s26, 0x%x" % (D*F*2))
                    I("s_mov_b32 exec_hi, 0"); I("s_mov_b32 exec_lo, 0x1fffff")
                    for k, sp_ in enumerate((88, 90)):
                        I(f"s_mov_b32 s24, s{sp_}"); I(f"s_mov_b32 s25, s{sp_+1}")
                        I(f"buffer_load_dword v{176+k}, v{T0+20}, s[24:27], s48 offen", tag="PF")
                    I("s_mov_b64 exec, -1")
        stamp(2)
        I("s_nop 4")
        I(f"v_add_f32 v{SA}, v{SA}, v{SA+1}"); I(f"v_add_f32 v{SA+1}, v{SA+2}, v{SA+3}")
        s_, hf = T0, T0+1
        I(f"v_and_b32 v{s_}, 31, v{lane}"); I(f"v_lshrrev_b32 v{hf}, 5, v{lane}")
        I("s_lshl_b32 s42, s41, 9")
        I(f"v_lshl_add_u32 v{T0+2}, v{s_}, 4, s42")
        I(f"v_lshl_add_u32 v{T0+3}, v{hf}, 3, v{T0+2}")
        I(f"v_add_u32 v{T0+3}, {STP + cg*2048}, v{T0+3}")
        I(f"ds_write_b64 v{T0+3}, v[{SA}:{SA+1}]")
        I("s_lshl_b32 s42, s41, 8")
        I(f"v_lshl_add_u32 v{T0+4}, v{lane}, 2, s42"); I(f"v_add_u32 v{T0+4}, {CSP + cg*2048}, v{T0+4}")
        I(f"ds_write_b32 v{T0+4}, v{SA+4}"); I(f"ds_write_b32 v{T0+4}, v{SA+5} offset:1024")
        I("s_waitcnt lgkmcnt(0)")
        I("s_barrier")
        I(f"v_add_u32 v{T0+2}, {STP}, v{T0+2}")
        I(f"ds_read_b128 v[32:35], v{T0+2}"); I(f"ds_read_b128 v[36:39], v{T0+2} offset:2048")
        I(f"v_lshlrev_b32 v{T0+4}, 2, v{s_}"); I(f"v_add_u32 v{T0+4}, {CSP + cg*2048}, v{T0+4}")
        for k in range(2):
            for j in range(8): I(f"ds_read_b32 v{40+8*k+j}, v{T0+4} offset:{1024*k + 128*j}")
        I("s_waitcnt lgkmcnt(0)")
        I("v_add_f32 v32, v32, v34"); I("v_add_f32 v33, v33, v35"); I("v_add_f32 v36, v36, v38"); I("v_add_f32 v37, v37, v39")
        I("v_add_f32 v32, v32, v36"); I("v_add_f32 v33, v33, v37")
        I("s_mov_b32 s49, 0x3AE38E39")
        I("v_mul_f32 v32, s49, v32"); I("v_mul_f32 v33, s49, v33")
        I("v_fma_f32 v33, -v32, v32, v33"); I("v_max_f32 v33, 0, v33"); I("v_add_f32 v33, 0x3727c5ac, v33")
        I("v_rsq_f32 v34, v33"); I("v_mul_f32 v35, v32, v34"); I("v_sub_f32 v35, 0, v35")
        for k in range(2):
            for st in (4, 2, 1):
                for j in range(st): I(f"v_add_f32 v{40+8*k+j}, v{40+8*k+j}, v{40+8*k+j+st}")
        I("s_lshl_b32 s42, s30, 8"); I(f"s_add_u32 s42, s42, {FIN}")
        I(f"v_lshl_add_u32 v{T0+2}, v{s_}, 3, s42")
        I(f"ds_write_b64 v{T0+2}, v[34:35]")
        if cg == 0:
            I("s_lshl_b32 s43, s30, 7"); I(f"s_add_u32 s43, s43, {CSF}")
            I(f"v_lshl_add_u32 v{T0+3}, v{s_}, 2, s43")
            I(f"ds_write_b32 v{T0+3}, v40")
        I("s_waitcnt lgkmcnt(0)")
        I(f"v_lshl_add_u32 v{T0+2}, v{hf}, 5, s42")
        RS = 112
        for a in range(4):
            I(f"ds_read_b128 v[{RS+8*a}:{RS+8*a+3}], v{T0+2} offset:{64*a}")
            I(f"ds_read_b128 v[{RS+8*a+4}:{RS+8*a+7}], v{T0+2} offset:{64*a+16}")
        if cg == 0:
            I(f"v_lshl_add_u32 v{T0+3}, v{hf}, 4, s43")
            for a in range(4): I(f"ds_read_b128 v[{144+4*a}:{147+4*a}], v{T0+3} offset:{32*a}")
        I("s_waitcnt lgkmcnt(0)")
        def scale_T(ac, cs):
            for r in range(16): I(f"v_mul_f32 v{56+r}, v{RS+2*r+1}, v{cs}")
            for r in range(16): I(f"v_fma_f32 v{ac+r}, v{ac+r}, v{RS+2*r}, v{56+r}")
        if cg == 0:
            for r in range(16): I(f"v_mul_f32 v{56+r}, v35, v{144+r}")
            for r in range(16): I(f"v_fma_f32 v{AC+r}, v{AC+r}, v34, v{56+r}")
            scale_T(AC + 16, 48)
        else:
            scale_T(AC, 40); scale_T(AC + 16, 48)
        I("s_mov_b32 s48, 0x3fb8aa3b")
        tmp = list(range(56, 72))
        I("s_lshl_b32 s50, s32, 2"); I("s_add_u32 s50, s50, s41"); I("s_lshl_b32 s50, s50, 2"); I("s_lshr_b32 s51, s33, 2"); I("s_add_u32 s50, s50, s51")
        I("s_mul_i32 s50, s50, 9216"); I(f"s_add_u32 s50, s50, {PQF}")
        I("s_and_b32 s51, s33, 3")
        I("s_lshl_b32 s52, s41, 11")
        I(f"v_add_u32 v{T0}, s52, v{vL16}")
        def pack_to_lds(ac, tile):
            for r in range(8): I(f"v_cvt_pk_bf16_f32 v{72+r}, v{ac+2*r}, v{ac+2*r+1}")
            I(f"ds_write_b128 v{T0}, v[72:75] offset:{tile*8192}")
            I(f"ds_write_b128 v{T0}, v[76:79] offset:{tile*8192+1024}")
        if cg == 0:
            q = AC; t1 = AC + 16
            phi2(I, list(range(t1, t1 + 16)), tmp, "s48")
            pack_to_lds(t1, 0)
            phi2(I, list(range(q, q + 16)), tmp, "s48")
            for r in range(8): I(f"v_cvt_pk_bf16_f32 v{32+r}, v{q+2*r}, v{q+2*r+1}")
            I("s_lshl_b32 s53, s51, 11"); I("s_add_u32 s53, s53, s50")
            I(f"buffer_store_dwordx4 v[32:35], v{vL16}, s[16:19], s53 offen")
            I(f"buffer_store_dwordx4 v[36:39], v{vL16}, s[16:19], s53 offen offset:1024")
        else:
            t2 = AC; t3 = AC + 16
            I("s_mov_b32 exec_lo, 0xf"); I("s_mov_b32 exec_hi, 0xf")
            phi2(I, list(range(t2, t2 + 16)), tmp, "s48")
            I("s_mov_b32 exec_lo, 0xf00"); I("s_mov_b32 exec_hi, 0xf00")
            phi2(I, list(range(t3, t3 + 16)), tmp, "s48")
            I("s_mov_b32 exec_lo, 0x1000"); I("s_mov_b32 exec_hi, 0x1000")
            for r in range(16): I(f"v_mov_b32 v{t3+r}, 1.0")
            I("s_mov_b64 exec, -1")
            pack_to_lds(t2, 1)
            pack_to_lds(t3, 2)
            ad = T0 + 3
            I(f"v_and_b32 v{ad}, 31, v{lane}")
            I(f"v_subrev_u32 v{ad}, 8, v{ad}"); I(f"v_lshlrev_b32 v{ad}, 1, v{ad}")
            I(f"v_lshrrev_b32 v{T0+4}, 5, v{lane}"); I(f"v_lshl_add_u32 v{ad}, v{T0+4}, 6, v{ad}")
            I("s_lshr_b32 s53, s51, 1"); I("s_lshl_b32 s53, s53, 9"); I("s_and_b32 s54, s51, 1"); I("s_lshl_b32 s54, s54, 3")
            I("s_add_u32 s53, s53, s54"); I("s_add_u32 s53, s53, s50"); I("s_add_u32 s53, s53, 8192")
            I("s_mov_b32 exec_lo, 0xf00"); I("s_mov_b32 exec_hi, 0xf00")
            for r in range(16):
                off = (8 * (r >> 2) + (r & 3)) * 16
                if r & 1: I(f"buffer_store_short_d16_hi v{72 + (r >> 1)}, v{ad}, s[16:19], s53 offen offset:{off}")
                else: I(f"buffer_store_short v{72 + (r >> 1)}, v{ad}, s[16:19], s53 offen offset:{off}")
            I("s_mov_b64 exec, -1")
        if cg == 0: I(f"s_branch L{name}_join")
    A.label(f"L{name}_join")
    A.flush_hazards()
    I("s_waitcnt lgkmcnt(0)")
    I("s_barrier")
    stamp(3)
    I("s_cmp_ge_u32 s30, 4")
    I(f"s_cbranch_scc1 L{name}_nokv")
    KA = 112
    I("s_lshr_b32 s52, s30, 1"); I("s_and_b32 s53, s30, 1")
    I("s_lshl_b32 s54, s52, 13"); I(f"v_add_u32 v{T0}, s54, v{vL16}")
    I("s_add_u32 s54, s53, 1"); I("s_lshl_b32 s54, s54, 13"); I(f"v_add_u32 v{T0+1}, s54, v{vL16}")
    for k in range(8):
        I(f"ds_read_b128 v[{KA+8*k}:{KA+8*k+3}], v{T0} offset:{1024*k}", tag=("KA", k))
        I(f"ds_read_b128 v[{KA+8*k+4}:{KA+8*k+7}], v{T0+1} offset:{1024*k}", tag=("KA", k))
    n_, hf, vc, o0, o1, t, big, om = 32, 33, 34, 35, 36, 37, 38, 39
    I(f"v_and_b32 v{n_}, 31, v{lane}"); I(f"v_lshrrev_b32 v{hf}, 5, v{lane}")
    I(f"v_mov_b32 v{big}, 0x40000000")
    I("s_cmp_eq_u32 s53, 0"); I("s_cselect_b32 s54, -4, 28")
    I(f"v_add_u32 v{vc}, s54, v{n_}")
    I(f"v_lshlrev_b32 v{o0}, 2, v{vc}")
    I(f"v_cmp_gt_u32 vcc, 18, v{vc}"); I(f"v_cndmask_b32 v{o0}, v{big}, v{o0}, vcc")
    I(f"v_subrev_u32 v{t}, 18, v{vc}"); I(f"v_lshlrev_b32 v{o1}, 2, v{t}")
    I(f"v_cmp_gt_u32 vcc, 18, v{t}"); I(f"v_cndmask_b32 v{o1}, v{big}, v{o1}, vcc")
    I(f"v_cmp_eq_u32 vcc, 40, v{vc}"); I(f"v_mov_b32 v{t}, 72")
    I(f"v_cndmask_b32 v{o0}, v{o0}, v{t}, vcc"); I(f"v_cndmask_b32 v{o1}, v{o1}, v{t}, vcc")
    I(f"v_mul_u32_u24 v{t}, 320, v{hf}")
    I(f"v_add_u32 v{o0}, v{o0}, v{t}"); I(f"v_add_u32 v{o1}, v{o1}, v{t}")
    I(f"v_cmp_eq_u32 vcc, 0, v{hf}"); I(f"v_cndmask_b32 v{om}, v{o1}, v{o0}, vcc")
    I("s_lshl_b32 s55, s33, 4"); I("s_add_u32 s55, s55, s32"); I("s_mul_i32 s55, s55, 2880"); I(f"s_add_u32 s55, s55, {KVP}")
    for k in range(8):
        A.wait_lg(("KA", k))
        c = "0" if k == 0 else f"v[{AC}:{AC+15}]"
        I(f"v_mfma_f32_32x32x16_bf16 v[{AC}:{AC+15}], v[{KA+8*k}:{KA+8*k+3}], v[{KA+8*k+4}:{KA+8*k+7}], {c}")
    I("s_cmp_eq_u32 s52, 0")
    I(f"s_cbranch_scc0 L{name}_kvT2")
    for r in range(16):
        a = r >> 2; b = r & 3
        ad = o0 if a < 2 else (o1 if (a == 3 or b >= 2) else om)
        I(f"buffer_store_dword v{AC+r}, v{ad}, s[16:19], s55 offen offset:{(8*a+b)*80}")
    I(f"s_branch L{name}_nokv")
    A.label(f"L{name}_kvT2")
    A.flush_hazards()
    I("s_mov_b32 exec_hi, 0")
    for r in range(4):
        I(f"buffer_store_dword v{AC+r}, v{o1}, s[16:19], s55 offen offset:{(32+r)*80}")
    I("s_mov_b64 exec, -1")
    A.label(f"L{name}_nokv")
    A.label(f"L{name}_fin")
    if prof:
        I("s_waitcnt vmcnt(0)")
        I(f"s_memtime s[76:77]"); I(f"s_memrealtime s[78:79]"); I("s_waitcnt lgkmcnt(0)")
        I("s_lshl_b32 s80, s2, 3"); I("s_add_u32 s80, s80, s30"); I("s_lshl_b32 s80, s80, 7"); I(f"s_add_u32 s80, s80, {PROF}")
        for k in range(20): I(f"v_mov_b32 v{k}, s{60+k}")
        I("v_mov_b32 v20, 0")
        for k in range(5): I(f"buffer_store_dwordx4 v[{4*k}:{4*k+3}], v20, s[16:19], s80 offen offset:{16*k}")
    A.label(f"L{name}_end")
    I("s_endpgm")
    launch = f"; @launch kernel={name} grid=(256,1,1) block=(512,1,1) lds={LDS_BYTES}"
    return launch, A.text(), kernel_desc(name, 184)
```

```python
from asmlib import *
from layout import *

def gen_k2b(name="k2_kernel", prof=False):
    A = Asm(); I = A.i
    PROF = (200 + 1) * MB
    LDS_BYTES = 147456
    PQ = 0
    KZ = 36
    DD = 100
    OF = 132
    AC = 168
    WB = 36
    vM = [[216, 217, 218], [219, 220, 221]]
    vLf = [222, 223, 224]
    vL16 = 225; lane = 226
    XR = 228
    T0 = 234
    A.raw(kernel_header(name))
    def stamp(i):
        if prof:
            I(f"s_memtime s[{60+4*i}:{61+4*i}]"); I(f"s_memrealtime s[{62+4*i}:{63+4*i}]"); I("s_waitcnt lgkmcnt(0)")
    I("s_cmp_ge_u32 s2, 256")
    I(f"s_cbranch_scc1 L{name}_end")
    stamp(0)
    I("s_load_dwordx2 s[4:5], s[0:1], 0")
    I("s_load_dwordx2 s[6:7], s[0:1], 16")
    I("s_load_dwordx4 s[24:27], s[0:1], 32")
    I("s_load_dwordx2 s[22:23], s[0:1], 72")
    I(f"v_lshrrev_b32 v{T0}, 6, v0")
    I(f"v_readfirstlane_b32 s30, v{T0}")
    I(f"v_and_b32 v{lane}, 63, v0")
    I(f"v_lshlrev_b32 v{vL16}, 4, v{lane}")
    I("s_waitcnt lgkmcnt(0)")
    I("s_mov_b32 s16, s22"); I("s_mov_b32 s17, s23"); I(f"s_mov_b32 s18, {WS_BYTES}"); I("s_mov_b32 s19, 0x20000")
    I("s_cmp_lt_u32 s2, 64")
    I(f"s_cbranch_scc1 L{name}_cs")
    I("s_sub_u32 s3, s2, 64")
    I("s_mov_b32 s8, s4"); I("s_mov_b32 s9, s5"); I(f"s_mov_b32 s10, {S*D*2}"); I("s_mov_b32 s11, 0x20000")
    I("s_mov_b32 s12, s6"); I("s_mov_b32 s13, s7"); I(f"s_mov_b32 s14, {D*D*2}"); I("s_mov_b32 s15, 0x20000")
    I("s_and_b32 s31, s3, 7"); I("s_lshr_b32 s34, s3, 3")
    I("s_lshr_b32 s32, s31, 1"); I("s_lshl_b32 s32, s32, 3"); I("s_and_b32 s36, s34, 7"); I("s_add_u32 s32, s32, s36")
    I("s_and_b32 s33, s31, 1"); I("s_mul_i32 s33, s33, 3"); I("s_lshr_b32 s36, s34, 3"); I("s_add_u32 s33, s33, s36")
    I("s_and_b32 s41, s30, 1")
    I("s_lshr_b32 s39, s30, 1")
    I("s_lshl_b32 s35, s32, 1"); I("s_add_u32 s35, s35, s41")
    I("s_lshl_b32 s40, s35, 2"); I("s_add_u32 s40, s40, s39"); I("s_mul_i32 s40, s40, 9216"); I(f"s_add_u32 s40, s40, {PQF}")
    for k in range(9):
        if k in (4, 8): I("s_add_u32 s40, s40, 4096")
        I(f"buffer_load_dwordx4 v[{PQ+4*k}:{PQ+4*k+3}], v{vL16}, s[16:19], s40 offen offset:{1024*(k % 4)}", tag=("PQ", k))
    r_, p_, t = T0, T0+1, T0+2
    vW = T0 + 3
    I(f"v_lshrrev_b32 v{r_}, 4, v{lane}")
    I(f"v_bfe_u32 v{p_}, v{lane}, 2, 2")
    I(f"v_xor_b32 v{p_}, v{p_}, v{r_}")
    I(f"v_and_b32 v{t}, 3, v{lane}")
    I(f"v_lshl_add_u32 v{p_}, v{p_}, 2, v{t}")
    I(f"v_mul_u32_u24 v{r_}, 1152, v{r_}")
    I(f"v_lshl_add_u32 v{vW}, v{p_}, 4, v{r_}")
    I("s_mul_i32 s42, s33, 192"); I("s_and_b32 s43, s42, 0xffffff80"); I("s_sub_u32 s42, s42, s43")
    I(f"s_mul_i32 s44, s30, {4*1152}"); I("s_add_u32 s44, s44, s43")
    I("s_lshl_b32 s45, s30, 10")
    for x in range(18):
        I(f"s_add_u32 m0, s45, {8192*x}")
        I(f"buffer_load_dwordx4 v{vW}, s[12:15], s44 offen lds", tag="W")
        I(f"s_add_u32 s44, s44, {32*1152}")
    I(f"v_and_b32 v{T0}, 31, v{lane}"); I(f"v_mul_u32_u24 v{T0}, 1152, v{T0}")
    I(f"v_lshrrev_b32 v{T0+1}, 5, v{lane}"); I(f"v_lshl_add_u32 v{T0}, v{T0+1}, 3, v{T0}")
    I(f"s_mul_i32 s46, s35, {32*1152}"); I("s_mul_i32 s47, s33, 192"); I("s_add_u32 s46, s46, s47"); I("s_mul_i32 s47, s39, 48"); I("s_add_u32 s46, s46, s47")
    for k in range(3):
        I(f"buffer_load_dwordx2 v[{XR+2*k}:{XR+2*k+1}], v{T0}, s[8:11], s46 offen offset:{16*k}", tag="XR")
    hf, grp, r_, c4, base, t = T0, T0+1, T0+2, T0+4, T0+5, T0+6
    I(f"v_lshrrev_b32 v{hf}, 5, v{lane}"); I(f"v_bfe_u32 v{grp}, v{lane}, 4, 1"); I(f"v_bfe_u32 v{r_}, v{lane}, 2, 2"); I(f"v_and_b32 v{c4}, 3, v{lane}")
    I(f"v_lshlrev_b32 v{base}, 5, v{grp}"); I(f"v_lshl_add_u32 v{base}, v{c4}, 3, v{base}")
    I(f"s_mul_i32 s46, s39, {144*256}"); I(f"v_add_u32 v{base}, s46, v{base}")
    I("s_lshr_b32 s42, s42, 6")
    for par in range(2):
        for c in range(3):
            I(f"v_add_u32 v{t}, {2*par}, v{r_}"); I(f"v_and_b32 v{t}, 3, v{t}")
            I(f"s_add_u32 s47, s42, {c}")
            I(f"v_xor_b32 v{t}, s47, v{t}")
            I(f"v_lshl_add_u32 v{vM[par][c]}, v{t}, 6, v{base}")
            I(f"v_lshl_add_u32 v{t}, v{hf}, 3, v{r_}")
            I(f"v_lshl_add_u32 v{vM[par][c]}, v{t}, 8, v{vM[par][c]}")
    for c in range(3):
        I(f"v_lshl_add_u32 v{t}, v{r_}, 1, v{hf}"); I(f"v_and_b32 v{t}, 3, v{t}")
        I(f"s_add_u32 s47, s42, {c}")
        I(f"v_xor_b32 v{t}, s47, v{t}")
        I(f"v_lshl_add_u32 v{vLf[c]}, v{t}, 6, v{base}")
        I(f"v_mul_u32_u24 v{t}, 18, v{r_}"); I(f"v_add3_u32 v{t}, v{t}, v{hf}, 16")
        I(f"v_lshl_add_u32 v{vLf[c]}, v{t}, 8, v{vLf[c]}")
    for k in range(48): I(f"v_mov_b32 v{AC+k}, 0")
    stamp(4)
    I("s_cmp_lg_u32 s30, 0")
    I(f"s_cbranch_scc1 L{name}_nopoll")
    I("s_and_b32 s46, s2, 7"); I("s_lshl_b32 s46, s46, 7"); I(f"s_add_u32 s46, s46, {FL2}")
    I(f"v_lshlrev_b32 v{T0}, 2, v{lane}")
    I("s_mov_b64 exec, 0xffff")
    A.label(f"L{name}_poll")
    A.raw(f"    buffer_load_dword v{T0+1}, v{T0}, s[16:19], s46 offen sc1")
    A.raw("    s_waitcnt vmcnt(0)")
    I(f"v_cmp_ne_u32 vcc, 1, v{T0+1}")
    I("s_nop 4")
    I(f"s_cbranch_vccz L{name}_polld")
    I("s_sleep 2")
    I(f"s_branch L{name}_poll")
    A.label(f"L{name}_polld")
    I("s_mov_b64 exec, -1")
    A.label(f"L{name}_nopoll")
    I("s_barrier")
    stamp(5)
    I("s_lshl_b32 s40, s39, 14"); I(f"s_add_u32 s40, s40, {KVZ}")
    for k in range(16):
        if k and k % 4 == 0: I("s_add_u32 s40, s40, 4096")
        I(f"buffer_load_dwordx4 v[{KZ+4*k}:{KZ+4*k+3}], v{vL16}, s[16:19], s40 offen offset:{1024*(k % 4)} sc1", tag=("KZ", k))
    stamp(1)
    LO = T0 + 8
    for hd in range(8):
        p = hd >> 1; hh = hd & 1
        d = DD + 16 * (hd & 1)
        b0 = 2 * p + hh; b1 = (2 * p + 1) if hh == 0 else 8
        A.wait_vm(("KZ", 2 * hd + 1))
        I(f"v_mfma_f32_32x32x16_bf16 v[{d}:{d+15}], v[{KZ+8*hd}:{KZ+8*hd+3}], v[{PQ+4*b0}:{PQ+4*b0+3}], 0")
        I(f"v_mfma_f32_32x32x16_bf16 v[{d}:{d+15}], v[{KZ+8*hd+4}:{KZ+8*hd+7}], v[{PQ+4*b1}:{PQ+4*b1+3}], v[{d}:{d+15}]")
        if hd >= 1:
            dp = DD + 16 * ((hd - 1) & 1); hp = hd - 1
            I(f"v_add_f32 v{dp+9}, 0x358637bd, v{dp+9}")
            I(f"v_rcp_f32 v{dp+9}, v{dp+9}")
            for r in range(8): I(f"v_mul_f32 v{dp+r}, v{dp+r}, v{dp+9}")
            I(f"v_mul_f32 v{LO+hp}, v{dp+8}, v{dp+9}")
            for r in range(4): I(f"v_cvt_pk_bf16_f32 v{OF+4*hp+r}, v{dp+2*r}, v{dp+2*r+1}")
    dp = DD + 16; hp = 7
    I(f"v_add_f32 v{dp+9}, 0x358637bd, v{dp+9}")
    I(f"v_rcp_f32 v{dp+9}, v{dp+9}")
    for r in range(8): I(f"v_mul_f32 v{dp+r}, v{dp+r}, v{dp+9}")
    I(f"v_mul_f32 v{LO+hp}, v{dp+8}, v{dp+9}")
    for r in range(4): I(f"v_cvt_pk_bf16_f32 v{OF+4*hp+r}, v{dp+2*r}, v{dp+2*r+1}")
    for r in range(4): I(f"v_cvt_pk_bf16_f32 v{OF+32+r}, v{LO+2*r}, v{LO+2*r+1}")
    A.wait_vm("W")
    I("s_barrier")
    stamp(2)
    NB = 8; PD = 5
    def rd(fi):
        ks = fi // 3; c = fi % 3
        b = WB + 4 * (fi % NB)
        for x in range(2):
            if ks < 8: I(f"ds_read_b64_tr_b16 v[{b+2*x}:{b+2*x+1}], v{vM[ks & 1][c]} offset:{ks*18*256 + x*1024}", tag=("F", fi))
            else: I(f"ds_read_b64_tr_b16 v[{b+2*x}:{b+2*x+1}], v{vLf[c]} offset:{x*72*256}", tag=("F", fi))
    for fi in range(PD): rd(fi)
    for fi in range(27):
        ks = fi // 3; c = fi % 3
        b = WB + 4 * (fi % NB)
        A.wait_lg(("F", fi))
        I(f"v_mfma_f32_32x32x16_bf16 v[{AC+16*c}:{AC+16*c+15}], v[{b}:{b+3}], v[{OF+4*ks}:{OF+4*ks+3}], v[{AC+16*c}:{AC+16*c+15}]")
        if fi + PD < 27: rd(fi + PD)
    stamp(6)
    I("s_barrier")
    I("s_lshl_b32 s46, s41, 2"); I("s_add_u32 s46, s46, s39"); I("s_mul_i32 s46, s46, 12288")
    I(f"v_add_u32 v{T0}, s46, v{vL16}")
    for a in range(12): I(f"ds_write_b128 v{T0}, v[{AC+4*a}:{AC+4*a+3}] offset:{1024*a}")
    I("s_waitcnt lgkmcnt(0)")
    I("s_barrier")
    I("s_mul_i32 s46, s41, 49152"); I("s_mul_i32 s47, s39, 3072"); I("s_add_u32 s46, s46, s47")
    I(f"v_add_u32 v{T0}, s46, v{vL16}")
    for g in range(4):
        for k in range(3):
            I(f"ds_read_b128 v[{48*0 + 12*g + 4*k}:{12*g + 4*k + 3}], v{T0} offset:{12288*g + 1024*k}", tag=("R", g))
    I("s_waitcnt lgkmcnt(0)")
    for g in range(1, 4):
        for r in range(12): I(f"v_add_f32 v{r}, v{r}, v{12*g+r}")
    stamp(7)
    A.wait_vm("XR")
    for k in range(3):
        for dw in range(2):
            xr = XR + 2 * k + dw
            I(f"v_lshlrev_b32 v{T0+1}, 16, v{xr}"); I(f"v_and_b32 v{T0+2}, 0xffff0000, v{xr}")
            I(f"v_add_f32 v{4*k+2*dw}, v{4*k+2*dw}, v{T0+1}"); I(f"v_add_f32 v{4*k+2*dw+1}, v{4*k+2*dw+1}, v{T0+2}")
            I(f"v_cvt_pk_bf16_f32 v{16+2*k+dw}, v{4*k+2*dw}, v{4*k+2*dw+1}")
    I(f"v_mov_b32 v24, 0"); I(f"v_mov_b32 v25, 0"); I("s_mov_b32 s47, 0x3f803f80")
    for k in range(6):
        I(f"v_dot2_f32_bf16 v24, v{16+k}, s47, v24"); I(f"v_dot2_f32_bf16 v25, v{16+k}, v{16+k}, v25")
    I("s_nop 4")
    s4, l16 = T0 + 1, T0 + 2
    I(f"v_bfe_u32 v{s4}, v{lane}, 4, 1")
    I(f"v_lshrrev_b32 v{l16}, 5, v{lane}"); I(f"v_and_b32 v{T0+3}, 15, v{lane}"); I(f"v_lshl_add_u32 v{l16}, v{l16}, 4, v{T0+3}")
    I(f"v_mul_u32_u24 v{T0+3}, 18432, v{s4}")
    I(f"v_lshl_add_u32 v{T0+4}, v{l16}, 4, v{T0+3}")
    I(f"v_lshl_add_u32 v{T0+5}, v{l16}, 3, v{T0+3}")
    I(f"s_mul_i32 s48, s35, {2*18432}")
    for k in range(3):
        I(f"s_mul_i32 s49, s39, 3"); I(f"s_add_u32 s49, s49, {k}")
        I("s_lshr_b32 s50, s49, 1"); I("s_mul_i32 s51, s33, 6"); I("s_add_u32 s50, s50, s51")
        I("s_and_b32 s49, s49, 1")
        I("s_lshr_b32 s51, s50, 1"); I("s_lshl_b32 s51, s51, 10"); I("s_lshl_b32 s52, s49, 9"); I("s_add_u32 s51, s51, s52")
        I("s_and_b32 s52, s50, 1"); I("s_lshl_b32 s52, s52, 3"); I("s_add_u32 s51, s51, s52"); I("s_add_u32 s51, s51, s48"); I(f"s_add_u32 s51, s51, {HF}")
        I(f"buffer_store_dwordx2 v[{16+2*k}:{17+2*k}], v{T0+4}, s[16:19], s51 offen")
        I("s_lshl_b32 s51, s50, 9"); I("s_lshl_b32 s52, s49, 8"); I("s_add_u32 s51, s51, s52"); I("s_add_u32 s51, s51, s48"); I(f"s_add_u32 s51, s51, {H4}")
        I(f"buffer_store_dwordx2 v[{16+2*k}:{17+2*k}], v{T0+5}, s[16:19], s51 offen")
    I("s_barrier")
    I("s_lshl_b32 s46, s41, 2"); I("s_add_u32 s46, s46, s39"); I("s_lshl_b32 s46, s46, 9"); I("s_add_u32 s46, s46, 0x18000")
    I(f"v_lshl_add_u32 v{T0}, v{lane}, 3, s46")
    I(f"ds_write_b64 v{T0}, v[24:25]")
    I("s_waitcnt lgkmcnt(0)")
    I("s_barrier")
    I("s_cmp_lg_u32 s39, 0")
    I(f"s_cbranch_scc1 L{name}_fin")
    I(f"v_and_b32 v{T0+1}, 31, v{lane}")
    I("s_lshl_b32 s46, s41, 11"); I("s_add_u32 s46, s46, 0x18000")
    I(f"v_lshl_add_u32 v{T0}, v{T0+1}, 3, s46")
    for k in range(8): I(f"ds_read_b64 v[{2*k}:{2*k+1}], v{T0} offset:{256*k}")
    I("s_waitcnt lgkmcnt(0)")
    for k in range(1, 8):
        I(f"v_add_f32 v0, v0, v{2*k}"); I(f"v_add_f32 v1, v1, v{2*k+1}")
    I(f"v_lshrrev_b32 v{T0+2}, 4, v{T0+1}"); I(f"v_mul_u32_u24 v{T0+2}, 768, v{T0+2}")
    I(f"v_and_b32 v{T0+1}, 15, v{T0+1}"); I(f"v_lshl_add_u32 v{T0+1}, v{T0+1}, 3, v{T0+2}")
    I(f"s_mul_i32 s46, s35, {2*768}"); I("s_lshl_b32 s47, s33, 7"); I("s_add_u32 s46, s46, s47"); I(f"s_add_u32 s46, s46, {ST}")
    I("s_mov_b32 exec_hi, 0")
    I(f"buffer_store_dwordx2 v[0:1], v{T0+1}, s[16:19], s46 offen")
    I("s_mov_b64 exec, -1")
    I(f"s_branch L{name}_fin")
    A.label(f"L{name}_cs")
    A.hist = []
    I("s_cmp_ge_u32 s2, 16")
    I(f"s_cbranch_scc1 L{name}_cs2")
    I("s_mov_b32 s33, s2")
    I("s_lshl_b32 s50, s30, 10")
    I(f"v_add_u32 v{T0}, s50, v{vL16}")
    I(f"s_mul_i32 s55, s33, {16*2880}"); I(f"s_add_u32 s55, s55, {KVP}")
    I(f"v_mov_b32 v{T0+1}, 0x40000000")
    I(f"v_cmp_gt_u32 vcc, 2880, v{T0}")
    I(f"v_cndmask_b32 v{T0+2}, v{T0+1}, v{T0}, vcc")
    I("s_cmp_ge_u32 s30, 3")
    I(f"s_cbranch_scc1 L{name}_nored")
    for k in range(16):
        I(f"buffer_load_dwordx4 v[{4*k}:{4*k+3}], v{T0+2}, s[16:19], s55 offen", tag=("P", k))
        I("s_add_u32 s55, s55, 2880")
    A.label(f"L{name}_nored")
    I("s_lshr_b32 s52, s30, 1"); I("s_and_b32 s53, s30, 1"); I("s_add_u32 s54, s52, s53")
    m_, hf, r_, sl, t, u_, zc = 64, 65, 66, 67, 68, 69, 70
    I(f"v_and_b32 v{m_}, 31, v{lane}"); I(f"v_lshrrev_b32 v{hf}, 5, v{lane}")
    I(f"v_lshrrev_b32 v{r_}, 3, v{m_}"); I(f"v_and_b32 v{t}, 3, v{m_}"); I(f"v_lshl_add_u32 v{r_}, v{r_}, 2, v{t}")
    I(f"v_bfe_u32 v{t}, v{m_}, 2, 1")
    I(f"v_lshl_add_u32 v{sl}, v{t}, 3, v{r_}")
    I(f"v_add_u32 v{u_}, 16, v{t}")
    I(f"v_cmp_eq_u32 vcc, 8, v{r_}"); I(f"v_cndmask_b32 v{sl}, v{sl}, v{u_}, vcc")
    I(f"v_mov_b32 v{u_}, 18")
    I(f"v_cmp_eq_u32 vcc, 9, v{r_}"); I(f"v_cndmask_b32 v{sl}, v{sl}, v{u_}, vcc")
    I(f"v_cmp_gt_u32 s[56:57], 10, v{r_}")
    I(f"v_mov_b32 v{zc}, 2880")
    I("s_mul_i32 s58, s52, 18")
    I("s_and_b32 s51, s33, 3")
    for j in range(8):
        col, ad = 72 + 2*j, 73 + 2*j
        I("s_lshl_b32 s59, s54, 4"); I(f"s_add_u32 s59, s59, {8*(j >> 2) + (j & 3)}")
        I(f"v_lshl_add_u32 v{col}, v{hf}, 2, s59")
        I(f"v_lshl_add_u32 v{t}, v{hf}, 1, {j >> 2}")
        I(f"v_cmp_eq_u32 vcc, s51, v{t}")
        I(f"v_mov_b32 v{u_}, {32 + (j & 3)}"); I(f"v_mov_b32 v{t}, 100")
        I(f"v_cndmask_b32 v{u_}, v{t}, v{u_}, vcc")
        I("s_cmp_eq_u32 s54, 2"); I("s_cselect_b64 vcc, -1, 0")
        I(f"v_cndmask_b32 v{col}, v{col}, v{u_}, vcc")
        I(f"v_mul_u32_u24 v{ad}, 20, v{col}"); I(f"v_add_lshl_u32 v{ad}, v{ad}, v{sl}, 2")
        I(f"v_subrev_u32 v{t}, s58, v{col}")
        I(f"v_cmp_gt_u32 vcc, 18, v{t}")
        I("s_and_b64 vcc, vcc, s[56:57]")
        I(f"v_cndmask_b32 v{ad}, v{zc}, v{ad}, vcc")
    I("s_cmp_ge_u32 s30, 3")
    I(f"s_cbranch_scc1 L{name}_nored2")
    for k in range(1, 16):
        A.wait_vm(("P", k))
        for r in range(4): I(f"v_add_f32 v{r}, v{r}, v{4*k+r}")
    I(f"ds_write_b128 v{T0}, v[0:3] offset:{0x9000}")
    A.label(f"L{name}_nored2")
    I("s_waitcnt lgkmcnt(0)")
    I("s_barrier")
    I("s_cmp_ge_u32 s30, 4")
    I(f"s_cbranch_scc1 L{name}_nob")
    for j in range(8): I(f"ds_read_b32 v{j}, v{73+2*j} offset:{0x9000}")
    I("s_waitcnt lgkmcnt(0)")
    for r in range(4): I(f"v_cvt_pk_bf16_f32 v{8+r}, v{2*r}, v{2*r+1}")
    I("s_lshl_b32 s59, s33, 2"); I("s_add_u32 s59, s59, s30"); I("s_lshl_b32 s59, s59, 10"); I(f"s_add_u32 s59, s59, {KVZ}")
    I(f"buffer_store_dwordx4 v[8:11], v{vL16}, s[16:19], s59 offen sc1")
    I("s_waitcnt vmcnt(0)")
    A.label(f"L{name}_nob")
    I("s_barrier")
    I("s_cmp_lg_u32 s30, 0")
    I(f"s_cbranch_scc1 L{name}_cs2")
    I(f"v_lshlrev_b32 v{T0}, 7, v{lane}"); I(f"v_mov_b32 v{T0+1}, 1")
    I("s_lshl_b32 s59, s33, 2"); I(f"s_add_u32 s59, s59, {FL2}")
    I("s_mov_b64 exec, 0xff")
    I(f"buffer_store_dword v{T0+1}, v{T0}, s[16:19], s59 offen sc1")
    I("s_mov_b64 exec, -1")
    A.label(f"L{name}_cs2")
    A.hist = []
    I("s_and_b32 s32, s2, 7"); I("s_lshl_b32 s32, s32, 2"); I("s_lshr_b32 s34, s2, 4"); I("s_add_u32 s32, s32, s34")
    I("s_bfe_u32 s34, s2, 0x10003"); I("s_lshl_b32 s34, s34, 5"); I("s_add_u32 s32, s32, s34")
    I("s_cmp_ge_u32 s32, 32")
    I("s_cselect_b32 s8, s26, s24"); I("s_cselect_b32 s9, s27, s25")
    I(f"s_mov_b32 s10, {D*F*2}"); I("s_mov_b32 s11, 0x20000")
    I("s_and_b32 s34, s32, 31")
    I(f"v_mul_u32_u24 v{T0}, 57, v{lane}"); I(f"v_lshrrev_b32 v{T0}, 10, v{T0}")
    I(f"v_mul_u32_u24 v{T0+1}, 18, v{T0}"); I(f"v_sub_u32 v{T0+1}, v{lane}, v{T0+1}")
    I(f"v_mul_u32_u24 v{T0+2}, 9216, v{T0}"); I(f"v_lshl_add_u32 v{T0+2}, v{T0+1}, 4, v{T0+2}")
    I(f"v_mov_b32 v{T0+3}, 0x40000000")
    I(f"v_cmp_gt_u32 vcc, 54, v{lane}")
    I(f"v_cndmask_b32 v{T0+2}, v{T0+3}, v{T0+2}, vcc")
    I(f"s_mul_i32 s40, s30, {3*9216}"); I("s_mul_i32 s41, s34, 288"); I("s_add_u32 s40, s40, s41")
    for it in range(24):
        I(f"buffer_load_dwordx4 v[{4*it}:{4*it+3}], v{T0+2}, s[8:11], s40 offen", tag=("C", it))
        I(f"s_add_u32 s40, s40, {24*9216}")
    for k in range(8): I(f"v_mov_b32 v{100+k}, 0")
    for it in range(24):
        A.wait_vm(("C", it))
        for dw in range(4):
            a, b = 110 + 2 * (dw & 1), 111 + 2 * (dw & 1)
            I(f"v_lshlrev_b32 v{a}, 16, v{4*it+dw}"); I(f"v_and_b32 v{b}, 0xffff0000, v{4*it+dw}")
            I(f"v_add_f32 v{100+2*dw}, v{100+2*dw}, v{a}"); I(f"v_add_f32 v{101+2*dw}, v{101+2*dw}, v{b}")
    I("s_mul_i32 s40, s30, 2304")
    I(f"v_mul_u32_u24 v{T0}, 576, v{T0}"); I(f"v_lshl_add_u32 v{T0}, v{T0+1}, 5, v{T0}"); I(f"v_add_u32 v{T0}, s40, v{T0}")
    I(f"ds_write_b128 v{T0}, v[100:103]"); I(f"ds_write_b128 v{T0}, v[104:107] offset:16")
    I("s_waitcnt lgkmcnt(0)")
    I("s_barrier")
    I("s_cmp_ge_u32 s30, 3")
    I(f"s_cbranch_scc1 L{name}_fin")
    I("s_lshl_b32 s40, s30, 8")
    I(f"v_lshl_add_u32 v{T0}, v{lane}, 2, s40")
    n = 0
    for w in range(8):
        for r3 in range(3):
            I(f"ds_read_b32 v{n}, v{T0} offset:{(w*4 + r3)*576}"); n += 1
    I("s_waitcnt lgkmcnt(0)")
    for k in range(1, 24): I(f"v_add_f32 v0, v0, v{k}")
    I(f"v_mov_b32 v{T0+3}, 0x40000000")
    I(f"v_cmp_gt_u32 vcc, 576, v{T0}")
    I(f"v_cndmask_b32 v{T0}, v{T0+3}, v{T0}, vcc")
    I("s_mul_i32 s40, s32, 576"); I(f"s_add_u32 s40, s40, {CS}")
    I(f"buffer_store_dword v0, v{T0}, s[16:19], s40 offen")
    A.label(f"L{name}_fin")
    if prof:
        I("s_waitcnt vmcnt(0)")
        stamp(3)
        I("s_add_u32 s96, s2, 192"); I("s_and_b32 s96, s96, 255"); I("s_lshl_b32 s96, s96, 3"); I("s_add_u32 s96, s96, s30"); I("s_lshl_b32 s96, s96, 7"); I(f"s_add_u32 s96, s96, {PROF}")
        for k in range(32): I(f"v_mov_b32 v{k}, s{60+k}")
        I("v_mov_b32 v32, 0")
        for k in range(8): I(f"buffer_store_dwordx4 v[{4*k}:{4*k+3}], v32, s[16:19], s96 offen offset:{16*k}")
    A.label(f"L{name}_end")
    I("s_endpgm")
    launch = f"; @launch kernel={name} grid=(256,1,1) block=(512,1,1) lds={LDS_BYTES}"
    return launch, A.text(), kernel_desc(name, 252)
```

```python
from asmlib import *
from layout import *

import os
STF = os.environ.get("K3STF", "sc1")
STF8 = ""
def gen_k3f(name="k3_kernel", prof=False, exp=""):
    A = Asm(); I = A.i
    PROF = (200 + 2) * MB
    SLOT = 24576; UOFF = 12288; NSLOT = 6
    LCS = SLOT * NSLOT
    LDS_BYTES = LCS + 1152
    PD = 3; NB = 4
    HB = 160
    WB = 208
    CSR = 224
    vA = [[232, 233, 234, 235], [236, 237, 238, 239]]
    vD = [240, 241, 242]
    vL16 = 243
    vR = 244
    T0 = 252
    A.raw(kernel_header(name))
    def stamp(i):
        if prof:
            I(f"s_memtime s[{60+4*i}:{61+4*i}]"); I(f"s_memrealtime s[{62+4*i}:{63+4*i}]"); I("s_waitcnt lgkmcnt(0)")
    I("s_cmp_ge_u32 s2, 256")
    I(f"s_cbranch_scc1 L{name}_end")
    stamp(0)
    I("s_load_dwordx4 s[4:7], s[0:1], 32")
    I("s_load_dwordx2 s[24:25], s[0:1], 72")
    I("s_load_dwordx2 s[92:93], s[0:1], 48")
    lane = 100
    I(f"v_lshrrev_b32 v{101}, 6, v0")
    I(f"v_readfirstlane_b32 s30, v{101}")
    I(f"v_and_b32 v{lane}, 63, v0")
    I("s_and_b32 s31, s2, 7"); I("s_lshr_b32 s32, s2, 3"); I("s_and_b32 s33, s32, 7"); I("s_lshr_b32 s32, s32, 3")
    I("s_lshl_b32 s34, s31, 2"); I("s_add_u32 s34, s34, s32")
    I("s_and_b32 s41, s30, 3")
    I("s_lshl_b32 s35, s33, 4"); I("s_lshl_b32 s36, s41, 2"); I("s_add_u32 s35, s35, s36")
    I(f"v_lshlrev_b32 v{vL16}, 4, v{lane}")
    I("s_mov_b32 s36, 0xAAAB")
    for x in range(3):
        q, rw, p, t = 102, 103, 104, 105
        I(f"v_add_u32 v{q}, {64*x}, v{lane}")
        I(f"v_mul_lo_u32 v{rw}, v{q}, s36")
        I(f"v_lshrrev_b32 v{rw}, 20, v{rw}")
        I(f"v_mul_u32_u24 v{t}, 24, v{rw}")
        I(f"v_sub_u32 v{p}, v{q}, v{t}")
        I(f"v_and_b32 v{t}, 6, v{rw}")
        I(f"v_xor_b32 v{p}, v{p}, v{t}")
        I(f"v_mul_u32_u24 v{t}, 9216, v{rw}")
        I(f"v_lshl_add_u32 v{vD[x]}, v{p}, 4, v{t}")
    rowv, f, c4, t = 102, 103, 104, 105
    I(f"v_lshrrev_b32 v{rowv}, 2, v{lane}")
    I(f"v_bfe_u32 v{f}, v{lane}, 3, 2")
    I(f"v_and_b32 v{c4}, 3, v{lane}")
    I(f"v_mul_u32_u24 v{rowv}, 384, v{rowv}")
    I(f"v_lshl_add_u32 v{rowv}, v{c4}, 3, v{rowv}")
    I("s_and_b32 s37, s34, 3")
    for m in range(4):
        I(f"s_add_u32 s38, s37, {m}")
        I(f"v_xor_b32 v{t}, s38, v{f}")
        I(f"v_lshl_add_u32 v{vA[0][m]}, v{t}, 5, v{rowv}")
    I("s_waitcnt lgkmcnt(0)")
    I("s_cmp_lt_u32 s30, 4")
    I("s_cselect_b32 s8, s4, s6"); I("s_cselect_b32 s9, s5, s7")
    I(f"s_mov_b32 s10, {D*F*2}"); I("s_mov_b32 s11, 0x20000")
    I("s_mov_b32 s16, s24"); I("s_mov_b32 s17, s25"); I(f"s_mov_b32 s18, {WS_BYTES}"); I("s_mov_b32 s19, 0x20000")
    I("s_mul_i32 s40, s34, 288"); I("s_and_b32 s40, s40, 0xffffff80")
    I(f"s_mul_i32 s42, s41, {8*9216}"); I("s_add_u32 s40, s40, s42")
    I("s_mul_i32 s43, s41, 3072")
    I("s_cmp_lt_u32 s30, 4"); I(f"s_cselect_b32 s44, 0, {UOFF}"); I("s_add_u32 s43, s43, s44")
    def dma_piece(u, x):
        if 'nodma' in exp and u >= 2:
            A.vmq.append(("W", u)); A.vmdone = len(A.vmq) if A.vmdone >= len(A.vmq) - 1 else A.vmdone; return
        I(f"s_add_u32 m0, s43, {1024*x + (u % NSLOT)*SLOT}")
        I(f"buffer_load_dwordx4 v{vD[x]}, s[8:11], s40 offen lds", tag=("W", u))
        if x == 2:
            I(f"s_add_u32 s40, s40, {32*9216}")
    def hload(t, i):
        if 'nohl' in exp and t >= 3:
            A.vmq.append(("H", t, i)); return
        b = HB + 16 * (t % 3) + 4 * i
        I(f"buffer_load_dwordx4 v[{b}:{b+3}], v{vL16}, s[16:19], s{52+i} offen", tag=("H", t, i))
        I(f"s_add_u32 s{52+i}, s{52+i}, 1024")
    for i in range(4):
        I(f"s_add_u32 s{52+i}, s35, {i}")
        I(f"s_mul_i32 s{52+i}, s{52+i}, {18*1024}")
        I(f"s_add_u32 s{52+i}, s{52+i}, {HF}")
    def dma_unit(u):
        for x in range(3): dma_piece(u, x)
    def hloads(t):
        for i in range(4): hload(t, i)
    dma_unit(0); hloads(0)
    I("s_cmp_lg_u32 s41, 0")
    I(f"s_cbranch_scc1 L{name}_nocs")
    I("s_mul_i32 s47, s34, 576")
    I("s_lshr_b32 s46, s30, 2")
    I(f"s_mul_i32 s48, s46, {4608*4}")
    I("s_add_u32 s47, s47, s48")
    I(f"s_add_u32 s47, s47, {CS}")
    I("s_mul_i32 s46, s46, 576")
    I(f"s_add_u32 m0, s46, {LCS}")
    I("s_mov_b32 exec_hi, 0xf")
    A.raw(f"    buffer_load_dwordx4 v{vL16}, s[16:19], s47 offen lds")
    I("s_mov_b64 exec, -1")
    A.label(f"L{name}_nocs")
    A.wait_vm(("W", 0))
    I("s_barrier")
    I("s_cmp_ge_u32 s30, 4")
    I(f"s_cbranch_scc1 L{name}_half1")
    saved = (list(A.vmq), A.vmdone, list(A.lgq), A.lgdone)
    G0 = 15
    for ch in range(2):
        if ch == 1:
            A.label(f"L{name}_half1")
            A.vmq, A.vmdone, A.lgq, A.lgdone = list(saved[0]), saved[1], list(saved[2]), saved[3]
            A.hist = []
        TL = [0, 1, 2, 3, 8] if ch == 0 else [4, 5, 6, 7]
        nc = len(TL); NF = 2 * nc
        def accb(i, c, mat): return (i * NF + TL.index(c) * 2 + mat) * 4
        def acc(i, c, mat):
            k = accb(i, c, mat); return f"v[{k}:{k+3}]"
        seq = [(tt, TL[fr // 2], fr & 1) for tt in range(G0) for fr in range(NF)]
        seq += [(tt, c, mat) for c in TL for tt in range(G0, 18) for mat in range(2)]
        def rd(fi):
            if fi >= len(seq): return
            tt, c, mat = seq[fi]
            b = WB + 4 * (fi % NB)
            if tt < G0: va = vA[tt & 1][c & 3]; so = 0
            elif tt < 17: va = vA[G0 & 1][c & 3]; so = (tt - G0) * SLOT
            else: va = vA[1 - (G0 & 1)][c & 3]; so = 0
            for x in range(2):
                I(f"ds_read_b64_tr_b16 v[{b+2*x}:{b+2*x+1}], v{va} offset:{so + 128*(c >> 2) + x*6144 + mat*UOFF}", tag=("F", fi))
        def stats_load(h_):
            I(f"v_lshrrev_b32 v{T0+1}, 1, v{vL16}")
            I(f"s_mul_i32 s47, s35, 768"); I(f"s_add_u32 s47, s47, {ST}")
            for k in range(8): I(f"v_mov_b32 v{CSR+k}, 0")
            for i in range(2):
                I(f"buffer_load_dwordx2 v[{CSR+4*i}:{CSR+4*i+1}], v{T0+1}, s[16:19], s47 offen offset:{768*(2*h_+i)}", tag=("ST", h_))
            I("s_mov_b32 exec_hi, 0")
            for i in range(2):
                I(f"buffer_load_dwordx2 v[{CSR+4*i+2}:{CSR+4*i+3}], v{T0+1}, s[16:19], s47 offen offset:{768*(2*h_+i)+512}", tag=("ST", h_))
            I("s_mov_b64 exec, -1")
        def stats_math(h_):
            A.wait_vm(("ST", h_))
            I(f"s_mov_b32 s49, 0x3AE38E39")
            q = CSR
            for i in range(2):
                I(f"v_add_f32 v{q+4*i}, v{q+4*i}, v{q+4*i+2}"); I(f"v_add_f32 v{q+4*i+1}, v{q+4*i+1}, v{q+4*i+3}")
            for op in ("v_permlane16_swap_b32", "v_permlane32_swap_b32"):
                for i in range(2):
                    I(f"v_mov_b32 v{q+4*i+2}, v{q+4*i}"); I(f"v_mov_b32 v{q+4*i+3}, v{q+4*i+1}")
                for i in range(2):
                    I(f"{op} v{q+4*i}, v{q+4*i+2}"); I(f"{op} v{q+4*i+1}, v{q+4*i+3}")
                I("s_nop 1")
                for i in range(2):
                    I(f"v_add_f32 v{q+4*i}, v{q+4*i}, v{q+4*i+2}"); I(f"v_add_f32 v{q+4*i+1}, v{q+4*i+1}, v{q+4*i+3}")
            for i in range(2):
                m_, e_ = q + 4 * i, q + 4 * i + 1; r = vR + 2 * (2 * h_ + i)
                I(f"v_mul_f32 v{m_}, s49, v{m_}"); I(f"v_mul_f32 v{e_}, s49, v{e_}")
                I(f"v_fma_f32 v{e_}, -v{m_}, v{m_}, v{e_}")
                I(f"v_max_f32 v{e_}, 0, v{e_}")
                I(f"v_add_f32 v{e_}, 0x3727c5ac, v{e_}")
                I(f"v_rsq_f32 v{r}, v{e_}")
                I(f"v_mul_f32 v{r+1}, v{m_}, v{r}")
                I(f"v_sub_f32 v{r+1}, 0, v{r+1}")
        for fi in range(PD): rd(fi)
        stamp(1)
        mid = NF // 2 - 1
        nextW = 1; nextH = 1
        fi = 0
        for tt in range(G0):
            wl = []
            while nextW <= min(17, tt + 4) and len(wl) < (2 if tt < 4 else 1): wl.append(nextW); nextW += 1
            hl = []
            while nextH <= min(17, tt + 2) and len(hl) < (2 if tt < 1 else 1): hl.append(nextH); nextH += 1
            wp = [("W", u, x) for u in wl for x in range(3)]
            hp = [("H", t_, i_) for t_ in hl for i_ in range(4)]
            ops = []
            if tt == 0: ops = wp[:3] + hp[:4] + wp[3:] + hp[4:]
            else:
                while wp or hp:
                    if hp: ops.append(hp.pop(0))
                    if wp: ops.append(wp.pop(0))
            nm = 4 * NF
            slots = {}
            for k, o in enumerate(ops):
                p = int((k + (0.25 if ch == 0 else 0.75)) * (nm - 4) / len(ops)) if tt > 0 else 2 * k
                slots.setdefault(p, []).append(o)
            for fr in range(NF):
                c = TL[fr // 2]; mat = fr & 1
                b = WB + 4 * (fi % NB)
                A.wait_lg(("F", fi))
                for i in range(4):
                    hb = HB + 16 * (tt % 3) + 4 * i
                    if fr == 0: A.wait_vm(("H", tt, i))
                    cc = "0" if tt == 0 else acc(i, c, mat)
                    I(f"v_mfma_f32_16x16x32_bf16 {acc(i,c,mat)}, v[{b}:{b+3}], v[{hb}:{hb+3}], {cc}")
                    if i == 0: rd(fi + PD)
                    for o in slots.get(4 * fr + i, []):
                        if o[0] == "W": dma_piece(o[1], o[2])
                        else: hload(o[1], o[2])
                if fr == mid:
                    A.wait_vm(("W", tt + 1 if tt < G0 - 1 else 17))
                    I("s_barrier")
                    dl = SLOT if (tt % NSLOT) < NSLOT - 1 else -(NSLOT - 1) * SLOT
                    for m in range(4): I(f"v_add_u32 v{vA[(tt+1) & 1][m]}, {dl}, v{vA[tt & 1][m]}")
                if fr == 1 and tt in (6, 9): stats_load((tt - 6) // 3)
                if fr == 1 and tt in (8, 11): stats_math((tt - 8) // 3)
                fi += 1
        hloads(17)
        for m in range(4): I(f"v_add_u32 v{vA[1 - (G0 & 1)][m]}, {2*SLOT}, v{vA[G0 & 1][m]}")
        I("s_mov_b32 s49, 0xbfb8aa3b")
        I("s_lshr_b32 s56, s34, 1"); I("s_mul_i32 s56, s56, 9"); I("s_and_b32 s58, s34, 1")
        I("s_lshl_b32 s59, s58, 2"); I("s_add_u32 s59, s59, s56"); I("s_lshl_b32 s59, s59, 10")
        I("s_add_u32 s56, s56, 8"); I("s_lshl_b32 s56, s56, 10"); I("s_lshl_b32 s58, s58, 3"); I("s_add_u32 s56, s56, s58")
        vcs = T0
        I(f"v_lshrrev_b32 v{vcs}, 8, v{vL16}"); I(f"v_lshlrev_b32 v{vcs}, 4, v{vcs}"); I(f"v_add_u32 v{vcs}, {LCS}, v{vcs}")
        for i in range(4):
            I(f"s_add_u32 s{84+i}, s35, {i}"); I(f"s_mul_i32 s{84+i}, s{84+i}, 147456"); I(f"s_add_u32 s{84+i}, s{84+i}, {ACT}")
        def epi_ops(c):
            L = []
            L.append(lambda: (I(f"ds_read_b128 v[{CSR}:{CSR+3}], v{vcs} offset:{64*c}", tag=("CS", c)),
                              I(f"ds_read_b128 v[{CSR+4}:{CSR+7}], v{vcs} offset:{576 + 64*c}", tag=("CS", c))))
            for i in range(4):
                k = accb(i, c, 0); g = k; u = k + 4
                ra, rb = vR + 2 * i, vR + 2 * i + 1
                for r in range(8): L.append(f"v_mul_f32 v{k+r}, v{k+r}, v{ra}")
                if i == 0: L.append(lambda: A.wait_lg(("CS", c)))
                for r in range(8): L.append(f"v_fmac_f32 v{k+r}, v{rb}, v{CSR+r}")
                for r in range(4): L.append(f"v_mul_f32 v{u+r}, v{g+r}, v{u+r}")
                for r in range(4): L.append(f"v_mul_f32 v{g+r}, s49, v{g+r}")
                for r in range(4): L.append(f"v_exp_f32 v{g+r}, v{g+r}")
                for r in range(4): L.append(f"v_add_f32 v{g+r}, 1.0, v{g+r}")
                for r in range(4): L.append(f"v_rcp_f32 v{g+r}, v{g+r}")
                for r in range(4): L.append(f"v_mul_f32 v{u+r}, v{u+r}, v{g+r}")
                if c == 8:
                    for r in range(2): L.append(f"v_cvt_pk_bf16_f32 v{k+r}, v{u+2*r}, v{u+2*r+1}")
                    L.append(f"s_add_u32 s57, s56, s{84+i}")
                    L.append(f"buffer_store_dwordx2 v[{k}:{k+1}], v{vL16}, s[16:19], s57 offen {STF8}")
                else:
                    kp = k if (c & 1) == 0 else k - 8
                    for r in range(2): L.append(f"v_cvt_pk_bf16_f32 v{kp + 2*(c & 1) + r}, v{u+2*r}, v{u+2*r+1}")
                    if c & 1:
                        L.append(f"s_add_u32 s57, s59, s{84+i}")
                        L.append(f"buffer_store_dwordx4 v[{kp}:{kp+3}], v{vL16}, s[16:19], s57 offen offset:{1024*(c >> 1)} {STF}")
            return L
        def emit(o):
            if callable(o): o()
            else: I(o)
        pend = []
        for ci, c in enumerate(TL):
            nmf = 24; done = 0; tot = len(pend)
            for tt in range(G0, 18):
                for mat in range(2):
                    b = WB + 4 * (fi % NB)
                    A.wait_lg(("F", fi))
                    for i in range(4):
                        hb = HB + 16 * (tt % 3) + 4 * i
                        if ci == 0 and mat == 0: A.wait_vm(("H", tt, i))
                        I(f"v_mfma_f32_16x16x32_bf16 {acc(i,c,mat)}, v[{b}:{b+3}], v[{hb}:{hb+3}], {acc(i,c,mat)}")
                        if i == 0: rd(fi + PD)
                        done += 1
                        while pend and (tot - len(pend)) < tot * done // nmf: emit(pend.pop(0))
                    fi += 1
            while pend: emit(pend.pop(0))
            pend = epi_ops(c)
            if ci == 0:
                I("s_lshr_b32 s46, s2, 3"); I("s_lshl_b32 s46, s46, 3"); I("s_add_u32 s46, s46, s30"); I("s_mul_i32 s46, s46, 23")
                I(f"v_lshrrev_b32 v{T0+2}, 4, v{vL16}"); I(f"v_add_u32 v{T0+2}, s46, v{T0+2}")
                I(f"v_min_u32 v{T0+2}, 5759, v{T0+2}")
                I("s_mov_b32 s48, 0xCCCD")
                I(f"v_mul_lo_u32 v{T0+3}, v{T0+2}, s48"); I(f"v_lshrrev_b32 v{T0+3}, 18, v{T0+3}")
                I(f"v_mul_u32_u24 v{T0+1}, 5, v{T0+3}"); I(f"v_sub_u32 v{T0+2}, v{T0+2}, v{T0+1}")
                I(f"v_mul_u32_u24 v{T0+3}, 1152, v{T0+3}"); I(f"v_lshl_add_u32 v{T0+2}, v{T0+2}, 7, v{T0+3}")
                I("s_lshr_b32 s48, s31, 1"); I(f"s_mul_i32 s48, s48, {1152*1152}"); I("s_and_b32 s46, s31, 1"); I("s_lshl_b32 s46, s46, 9"); I("s_add_u32 s48, s48, s46")
                I("s_mov_b32 s24, s92"); I("s_mov_b32 s25, s93"); I("s_mov_b32 s26, 0x%x" % (D*F*2)); I("s_mov_b32 s27, 0x20000")
                I("s_mov_b32 exec_hi, 0"); I("s_mov_b32 exec_lo, 0x7fffff")
                I(f"buffer_load_dword v{T0+3}, v{T0+2}, s[24:27], s48 offen", tag="PF")
                I("s_mov_b64 exec, -1")
        stamp(2)
        while pend: emit(pend.pop(0))
        if prof:
            I("s_waitcnt vmcnt(0)")
            stamp(3)
            I("s_lshl_b32 s96, s2, 3"); I("s_add_u32 s96, s96, s30"); I("s_lshl_b32 s96, s96, 7"); I(f"s_add_u32 s96, s96, {PROF}")
            for k in range(16): I(f"v_mov_b32 v{k}, s{60+k}")
            I("v_mov_b32 v32, 0")
            for k in range(4): I(f"buffer_store_dwordx4 v[{4*k}:{4*k+3}], v32, s[16:19], s96 offen offset:{16*k}")
        if ch == 0: I("s_endpgm")
    A.label(f"L{name}_end")
    I("s_endpgm")
    launch = f"; @launch kernel={name} grid=(256,1,1) block=(512,1,1) lds={LDS_BYTES}"
    return launch, A.text(), kernel_desc(name, 256)
```

```python
import os
from k1c import gen_k1c as gen_k1
from k2b import gen_k2b as gen_k2
from k3f import gen_k3f as gen_k3
from k4d import gen_k4d as gen_k4c
def parts(prof=False):
    return [gen_k1(prof=prof), gen_k2(prof=prof), gen_k3(prof=prof), gen_k4c(prof=prof)]
PROFS = [(256, 5, 8), (192, 8, 8), (256, 4, 8), (256, 8, 8)]
```

```python
from asmlib import *
from layout import *
import os
EXP = os.environ.get('K1EXP', '')
PFA = int(os.environ.get('K1PFA', '5')); PFB = int(os.environ.get('K1PFB', '6'))
NT0 = 'nt' if 'nt0' in EXP else ''
NT1 = 'nt' if 'nt1' in EXP else ''
NT2 = 'nt' if 'nt2' in EXP else ''

def phi2(I, regs, tmp, s_log2e):
    for r, t in zip(regs, tmp): I(f"v_min_f32 v{t}, 0, v{r}")
    for r, t in zip(regs, tmp): I(f"v_mul_f32 v{t}, {s_log2e}, v{t}")
    for r, t in zip(regs, tmp): I(f"v_exp_f32 v{t}, v{t}")
    for r, t in zip(regs, tmp): I(f"v_max_f32 v{r}, 0, v{r}")
    for r, t in zip(regs, tmp): I(f"v_add_f32 v{t}, 0x358637bd, v{t}")
    for r, t in zip(regs, tmp): I(f"v_add_f32 v{r}, v{r}, v{t}")

def gen_k1c(name="k1_kernel", prof=False, exp=""):
    A = Asm(); I = A.i
    PROF = 200 * MB
    SLOT = 32768; NSLOT = 5; WOFF = 16384
    MISC = 0x6000 + 0x4000
    STP = MISC
    CSP = MISC + 4096
    FIN = MISC + 8192
    CSF = MISC + 10240
    LDS_BYTES = SLOT * NSLOT
    AC = 0
    XB = 32
    WB = 48
    SA = 80
    vX = [88, 89, 90, 91]
    vT = [92, 93]
    vXD, vWD = 94, 95
    vL16, lane = 96, 97
    T0 = 100
    A.raw(kernel_header(name))
    def stamp(i):
        if prof:
            I(f"s_memtime s[{60+4*i}:{61+4*i}]"); I(f"s_memrealtime s[{62+4*i}:{63+4*i}]"); I("s_waitcnt lgkmcnt(0)")
    I("s_cmp_ge_u32 s2, 256")
    I(f"s_cbranch_scc1 L{name}_end")
    stamp(0)
    I("s_load_dwordx4 s[4:7], s[0:1], 0")
    I("s_load_dwordx4 s[20:23], s[0:1], 64")
    I("s_load_dwordx2 s[84:85], s[0:1], 16")
    I("s_load_dwordx4 s[88:91], s[0:1], 32")
    I("s_load_dwordx2 s[92:93], s[0:1], 48")
    I(f"v_lshrrev_b32 v{T0}, 6, v0")
    I(f"v_readfirstlane_b32 s30, v{T0}")
    I(f"v_and_b32 v{lane}, 63, v0")
    I("s_and_b32 s31, s2, 7"); I("s_lshr_b32 s32, s2, 3")
    I("s_and_b32 s33, s31, 1"); I("s_lshl_b32 s33, s33, 3"); I("s_lshr_b32 s34, s32, 2"); I("s_add_u32 s33, s33, s34")
    I("s_lshr_b32 s34, s31, 1"); I("s_lshl_b32 s34, s34, 2"); I("s_and_b32 s32, s32, 3"); I("s_add_u32 s32, s32, s34")
    I("s_and_b32 s41, s30, 3")
    I("s_lshr_b32 s39, s30, 2")
    I(f"v_lshlrev_b32 v{vL16}, 4, v{lane}")
    I(f"v_lshrrev_b32 v{T0}, 4, v{lane}")
    I("s_and_b32 s42, s30, 1"); I("s_lshl_b32 s42, s42, 2")
    I(f"v_add_u32 v{T0}, s42, v{T0}")
    I(f"v_and_b32 v{T0+1}, 7, v{lane}")
    I(f"v_xor_b32 v{T0}, v{T0}, v{T0+1}")
    I(f"v_lshrrev_b32 v{T0+1}, 3, v{lane}")
    I(f"v_mul_u32_u24 v{T0+1}, 1152, v{T0+1}")
    I(f"v_lshl_add_u32 v{vXD}, v{T0}, 4, v{T0+1}")
    gi, sp, r_, t = T0, T0+1, T0+2, T0+3
    I(f"v_lshrrev_b32 v{gi}, 4, v{lane}"); I(f"v_and_b32 v{t}, 3, v{lane}"); I(f"v_lshl_add_u32 v{gi}, v{gi}, 2, v{t}")
    I(f"v_min_u32 v{gi}, 14, v{gi}")
    I(f"v_mul_u32_u24 v{sp}, 52, v{gi}"); I(f"v_lshrrev_b32 v{sp}, 8, v{sp}")
    I(f"v_mul_u32_u24 v{t}, 5, v{sp}"); I(f"v_sub_u32 v{gi}, v{gi}, v{t}")
    I(f"v_bfe_u32 v{r_}, v{lane}, 2, 2")
    I(f"v_mul_u32_u24 v{r_}, 3456, v{r_}")
    I(f"v_mul_u32_u24 v{sp}, 1152, v{sp}")
    I(f"v_add_u32 v{r_}, v{r_}, v{sp}")
    I(f"v_lshl_add_u32 v{vWD}, v{gi}, 4, v{r_}")
    I("s_xor_b32 s38, s33, 1")
    I("s_mul_i32 s44, s33, 72"); I("s_and_b32 s44, s44, 0xfffffff0")
    I("s_mul_i32 s37, s38, 72"); I("s_and_b32 s37, s37, 0xfffffff0")
    I(f"v_mov_b32 v{gi}, s44"); I(f"v_mov_b32 v{t}, s37")
    I(f"v_cmp_eq_u32 vcc, 0, v{sp}")
    I(f"v_cndmask_b32 v{gi}, v{gi}, v{t}, vcc")
    I(f"v_add_u32 v{vWD}, v{vWD}, v{gi}")
    I("s_waitcnt lgkmcnt(0)")
    I("s_mov_b32 s8, s4"); I("s_mov_b32 s9, s5"); I(f"s_mov_b32 s10, {S*D*2}"); I("s_mov_b32 s11, 0x20000")
    I("s_mov_b32 s12, s6"); I("s_mov_b32 s13, s7"); I(f"s_mov_b32 s14, {D*3*D*2}"); I("s_mov_b32 s15, 0x20000")
    I("s_mov_b32 s16, s22"); I("s_mov_b32 s17, s23"); I(f"s_mov_b32 s18, {WS_BYTES}"); I("s_mov_b32 s19, 0x20000")
    I("s_cmp_ge_u32 s2, 80"); I(f"s_cbranch_scc1 L{name}_nz")
    I("s_cmp_lg_u32 s30, 7"); I(f"s_cbranch_scc1 L{name}_nz")
    I("s_lshl_b32 s42, s2, 7"); I(f"s_add_u32 s42, s42, {FLG}")
    I("s_cmp_ge_u32 s2, 64"); I(f"s_cselect_b32 s43, {FL2 - FLG - 64*128}, 0"); I("s_add_u32 s42, s42, s43")
    I("s_cmp_ge_u32 s2, 72"); I(f"s_cselect_b32 s43, {AFL - FL2 - 8*128}, 0"); I("s_add_u32 s42, s42, s43")
    I(f"v_mov_b32 v{T0+4}, 0"); I(f"v_lshlrev_b32 v{T0+5}, 2, v{lane}")
    I("s_mov_b32 exec_hi, 0")
    A.raw(f"    buffer_store_dword v{T0+4}, v{T0+5}, s[16:19], s42 offen")
    I("s_mov_b64 exec, -1")
    A.label(f"L{name}_nz")
    I("s_lshl_b32 s40, s32, 7"); I("s_lshl_b32 s42, s30, 3"); I("s_add_u32 s40, s40, s42"); I("s_mul_i32 s40, s40, 1152")
    I(f"s_add_u32 s43, s40, {64*1152}")
    I(f"s_mul_i32 s44, s30, {4*3456}")
    I("s_lshl_b32 s45, s30, 10")
    def dma_part(c, p):
        sb = (c % NSLOT) * SLOT
        if p == 0:
            I(f"s_add_u32 m0, s45, {sb}")
            I(f"buffer_load_dwordx4 v{vXD}, s[8:11], s40 offen {NT1} lds", tag=("C", c))
        elif p == 1:
            I(f"s_add_u32 m0, s45, {sb + WOFF}")
            I(f"buffer_load_dwordx4 v{vWD}, s[12:15], s44 offen {NT1} lds", tag=("C", c))
            I(f"s_add_u32 s44, s44, {32*3456}")
        elif p == 2:
            I(f"s_add_u32 m0, s45, {sb + 8192}")
            I(f"buffer_load_dwordx4 v{vXD}, s[8:11], s43 offen {NT1} lds", tag=("C", c))
            I("s_add_u32 s40, s40, 128"); I("s_add_u32 s43, s43, 128")
        else:
            I(f"s_add_u32 m0, s45, {sb + WOFF + 8192}")
            I(f"buffer_load_dwordx4 v{vWD}, s[12:15], s44 offen {NT1} lds", tag=("C", c))
            I(f"s_add_u32 s44, s44, {32*3456}")
    def dma_chunk(c):
        for p in range(4): dma_part(c, p)
    dma_chunk(0)
    s_, hf, f, t = T0, T0+1, T0+2, T0+3
    I(f"v_and_b32 v{s_}, 31, v{lane}"); I(f"v_lshrrev_b32 v{hf}, 5, v{lane}"); I(f"v_bfe_u32 v{f}, v{lane}, 1, 3")
    I("s_lshl_b32 s42, s41, 5"); I(f"v_add_u32 v{s_}, s42, v{s_}"); I(f"v_lshlrev_b32 v{s_}, 7, v{s_}")
    for m in range(4):
        I(f"v_add_u32 v{t}, {2*m}, v{hf}"); I(f"v_xor_b32 v{t}, v{t}, v{f}"); I(f"v_lshl_add_u32 v{vX[m]}, v{t}, 4, v{s_}")
    i_, w0, w1, t, base = T0+4, T0+5, T0+6, T0+7, T0+9
    I(f"v_bfe_u32 v{i_}, v{lane}, 4, 1"); I(f"v_and_b32 v{t}, 3, v{lane}"); I(f"v_lshl_add_u32 v{i_}, v{i_}, 2, v{t}")
    I("s_and_b32 s46, s33, 1")
    I("s_cmp_eq_u32 s39, 0")
    I(f"s_cbranch_scc0 L{name}_u1")
    I("s_xor_b32 s37, s46, 1")
    I(f"v_add_u32 v{w0}, s37, v{i_}"); I(f"v_add_u32 v{w1}, s46, v{i_}"); I(f"v_add_u32 v{w1}, 10, v{w1}")
    I(f"s_branch L{name}_uj")
    A.label(f"L{name}_u1")
    I(f"v_add_u32 v{w0}, 19, v{i_}")
    I(f"v_cmp_eq_u32 vcc, 0, v{i_}"); I(f"v_mov_b32 v{t}, 18"); I(f"v_cndmask_b32 v{w0}, v{w0}, v{t}, vcc")
    I(f"v_add_u32 v{w0}, s46, v{w0}")
    I(f"v_add_u32 v{w1}, 27, v{i_}")
    I(f"v_add_u32 v{w1}, s46, v{w1}")
    I("s_xor_b32 s37, s46, 1"); I("s_add_u32 s37, s37, 8")
    I(f"v_cmp_gt_u32 vcc, 2, v{i_}"); I(f"v_mov_b32 v{t}, s37"); I(f"v_cndmask_b32 v{w1}, v{t}, v{w1}, vcc")
    A.label(f"L{name}_uj")
    A.flush_hazards()
    I(f"v_lshrrev_b32 v{base}, 5, v{lane}"); I(f"v_lshlrev_b32 v{base}, 11, v{base}")
    I(f"v_bfe_u32 v{t}, v{lane}, 2, 2"); I(f"v_lshl_add_u32 v{base}, v{t}, 6, v{base}")
    I(f"v_add_u32 v{base}, {WOFF}, v{base}")
    for k, w in enumerate((w0, w1)):
        I(f"v_lshrrev_b32 v{t}, 3, v{w}"); I(f"v_lshl_add_u32 v{vT[k]}, v{t}, 8, v{base}")
        I(f"v_and_b32 v{t}, 7, v{w}"); I(f"v_lshl_add_u32 v{vT[k]}, v{t}, 3, v{vT[k]}")
    vX2 = [T0+10+m for m in range(4)]; vT2 = [T0+14, T0+15]
    vX3 = [T0+26+m for m in range(4)]; vT3 = [T0+30, T0+31]
    for m in range(4): I(f"v_add_u32 v{vX2[m]}, 65536, v{vX[m]}")
    for k in range(2): I(f"v_add_u32 v{vT2[k]}, 65536, v{vT[k]}")
    for m in range(4): I(f"v_add_u32 v{vX3[m]}, 131072, v{vX[m]}")
    for k in range(2): I(f"v_add_u32 v{vT3[k]}, 131072, v{vT[k]}")
    for k in range(32): I(f"v_mov_b32 v{AC+k}, 0")
    for k in range(6): I(f"v_mov_b32 v{SA+k}, 0")
    I("s_mov_b32 s47, 0x3f803f80")
    dma_chunk(1)
    A.wait_vm(("C", 0))
    I("s_barrier")
    stamp(1)
    I("s_lshr_b32 s46, s2, 3"); I("s_lshl_b32 s46, s46, 3"); I("s_add_u32 s46, s46, s30")
    I(f"v_lshlrev_b32 v{T0+20}, 7, v{lane}")
    I("s_lshr_b32 s48, s31, 1"); I(f"s_mul_i32 s48, s48, {512*1152}"); I("s_mul_i32 s49, s46, 2304"); I("s_add_u32 s48, s48, s49")
    I("s_mul_i32 s49, s46, 34")
    I(f"v_add_u32 v{T0+21}, s49, v{lane}")
    I("s_mov_b32 s49, 0xCCCD")
    I(f"v_mul_lo_u32 v{T0+22}, v{T0+21}, s49"); I(f"v_lshrrev_b32 v{T0+22}, 18, v{T0+22}")
    I(f"v_mul_u32_u24 v{T0+23}, 5, v{T0+22}"); I(f"v_sub_u32 v{T0+21}, v{T0+21}, v{T0+23}")
    I(f"v_mul_u32_u24 v{T0+22}, 1152, v{T0+22}"); I(f"v_lshl_add_u32 v{T0+21}, v{T0+21}, 7, v{T0+22}")
    I("s_and_b32 s49, s31, 1"); I("s_lshl_b32 s49, s49, 9")
    I("s_mov_b32 exec_hi, 0"); I("s_mov_b32 exec_lo, 0x3ffff")
    if 'nopf0' not in EXP: I(f"buffer_load_dword v180, v{T0+20}, s[8:11], s48 offen {NT0}", tag="PF0")
    I("s_mov_b32 exec_hi, 3"); I("s_mov_b32 exec_lo, -1")
    if 'nopf0' not in EXP: I(f"buffer_load_dword v181, v{T0+21}, s[12:15], s49 offen {NT0}", tag="PF0")
    I("s_mov_b64 exec, -1")
    if os.environ.get("K1TLB", "0") != "0":
        G = int(os.environ.get("K1TLB"))
        I("s_cmp_ge_u32 s46, 13"); I(f"s_cbranch_scc1 L{name}_notlb")
        I(f"v_lshlrev_b32 v{T0+23}, {G}, v{lane}")
        I(f"s_lshl_b32 s49, s46, {G+6}")
        A.raw(f"    buffer_load_dword v183, v{T0+23}, s[16:19], s49 offen")
        A.label(f"L{name}_notlb")
    I("s_getpc_b64 s[94:95]")
    A.label(f"L{name}_pc")
    A.raw(f"    s_sub_u32 s94, s94, (L{name}_pc - {name})")
    I("s_subb_u32 s95, s95, 0")
    I("s_lshl_b32 s49, s46, 10")
    I(f"v_add_u32 v{T0+22}, s49, v{T0+20}")
    A.raw(f"    v_cmp_gt_u32 vcc, (Lcode_end - {name}), v{T0+22}")
    I("s_nop 1")
    I("s_and_b32 exec_lo, vcc_lo, 0xff"); I("s_mov_b32 exec_hi, 0")
    I(f"s_cbranch_execz L{name}_nocp")
    A.raw(f"    global_load_dword v182, v{T0+22}, s[94:95]")
    A.label(f"L{name}_nocp")
    I("s_mov_b64 exec, -1")
    I("s_cmp_eq_u32 s39, 0")
    I(f"s_cbranch_scc0 L{name}_cg1")
    saved = (list(A.vmq), A.vmdone, list(A.lgq), A.lgdone)
    lab = [0]
    for cg in range(2):
        if cg == 1:
            A.label(f"L{name}_cg1")
            A.vmq, A.vmdone, A.lgq, A.lgdone = list(saved[0]), saved[1], list(saved[2]), saved[3]
            A.hist = []
        def rd(tt, part):
            c = tt >> 2; tl = tt & 3; sl = c % NSLOT
            off = (sl & 1) * SLOT
            xa = (vX, vX2, vX3)[sl >> 1][tl]; ta = (vT, vT2, vT3)[sl >> 1]
            xb = XB + 4 * (tt % 4)
            if part == 0: I(f"ds_read_b128 v[{xb}:{xb+3}], v{xa} offset:{off}", tag=("F", tt, 0))
            k = part
            b = WB + 8 * (tt % 4) + 4 * k
            for x in range(2):
                I(f"ds_read_b64_tr_b16 v[{b+2*x}:{b+2*x+1}], v{ta[k]} offset:{off + tl*4096 + x*1024}", tag=("F", tt, k))
        PDK = 3
        pend = []
        for tt in range(PDK): rd(tt, 0); rd(tt, 1)
        for tt in range(36):
            c = tt >> 2; tl = tt & 3
            xb = XB + 4 * (tt % 4)
            xf = f"v[{xb}:{xb+3}]"
            dots = []
            if (tl >> 1) == cg and 'nodot' not in EXP:
                for d in range(4):
                    dots.append(f"v_dot2c_f32_bf16 v{SA + (d & 1)}, s47, v{xb+d}")
                    dots.append(f"v_dot2c_f32_bf16 v{SA + 2 + (d & 1)}, v{xb+d}, v{xb+d}")
            for k in range(2):
                A.wait_lg(("F", tt, k))
                b = WB + 8 * (tt % 4) + 4 * k
                ac = f"v[{AC+16*k}:{AC+16*k+15}]"; wf = f"v[{b}:{b+3}]"
                if cg == 0 and k == 0: I(f"v_mfma_f32_32x32x16_bf16 {ac}, {wf}, {xf}, {ac}")
                else: I(f"v_mfma_f32_32x32x16_bf16 {ac}, {xf}, {wf}, {ac}")
                for o in dots[4*k:4*k+4]: I(o)
                if k == 0:
                    pass
                if k == 1:
                    lab[0] += 1
                    I(f"s_cmp_lg_u32 s41, {tl if 'nodot' not in EXP else 9}")
                    I(f"s_cbranch_scc1 L{name}_ncs{lab[0]}")
                    for k2 in range(2):
                        b2 = WB + 8 * (tt % 4) + 4 * k2
                        for d in range(4): I(f"v_dot2c_f32_bf16 v{SA+4+k2}, s47, v{b2+d}")
                    A.label(f"L{name}_ncs{lab[0]}")
                if tt + PDK < 36: rd(tt + PDK, k)
                if pend and (k == 0 or len(pend) > 4 or c < 2): dma_part(*pend.pop(0))
            if tl == 0 and c < 8:
                assert A.vmq.count(("C", c + 1)) == 4
                A.wait_vm(("C", c + 1))
                I("s_barrier")
                pend += [(cc, p) for cc in {0: [2, 3], 1: [4, 5]}.get(c, [c + 4] if c + 4 < 9 else []) for p in range(4)]
                if c == PFA:
                    I("s_lshr_b32 s46, s2, 3"); I("s_lshl_b32 s46, s46, 3"); I("s_add_u32 s46, s46, s30")
                    I(f"v_lshlrev_b32 v{T0+20}, 7, v{lane}")
                    I("s_mov_b32 s27, 0x20000"); I("s_mov_b32 exec_hi, 0")
                    I("s_mov_b32 exec_lo, 0x1fffff")
                    I("s_mul_i32 s48, s46, 2688")
                    I("s_mov_b32 s24, s84"); I("s_mov_b32 s25, s85"); I("s_mov_b32 s26, 0x%x" % (D*D*2))
                    I(f"buffer_load_dword v179, v{T0+20}, s[24:27], s48 offen {NT2}", tag="PF")
                    I("s_mov_b64 exec, -1")
                    I("s_lshl_b32 s46, s2, 3"); I("s_add_u32 s46, s46, s30")
                if c == PFB:
                    I("s_lshr_b32 s46, s2, 3"); I("s_lshl_b32 s46, s46, 3"); I("s_add_u32 s46, s46, s30"); I("s_mul_i32 s46, s46, 21")
                    I(f"v_add_u32 v{T0+20}, s46, v{lane}")
                    I("s_mov_b32 s48, 0xE38F")
                    I(f"v_mul_lo_u32 v{T0+21}, v{T0+20}, s48"); I(f"v_lshrrev_b32 v{T0+21}, 19, v{T0+21}")
                    I(f"v_mul_u32_u24 v{T0+22}, 9, v{T0+21}"); I(f"v_sub_u32 v{T0+20}, v{T0+20}, v{T0+22}")
                    I(f"v_mul_u32_u24 v{T0+21}, 9216, v{T0+21}"); I(f"v_lshl_add_u32 v{T0+20}, v{T0+20}, 7, v{T0+21}")
                    I("s_mul_i32 s48, s31, 1152")
                    I("s_mov_b32 s26, 0x%x" % (D*F*2))
                    I("s_mov_b32 exec_hi, 0"); I("s_mov_b32 exec_lo, 0x1fffff")
                    for k, sp_ in enumerate((88, 90)):
                        I(f"s_mov_b32 s24, s{sp_}"); I(f"s_mov_b32 s25, s{sp_+1}")
                        I(f"buffer_load_dword v{176+k}, v{T0+20}, s[24:27], s48 offen {NT2}", tag="PF")
                    I("s_mov_b64 exec, -1")
        stamp(2)
        I("s_nop 4")
        I(f"v_add_f32 v{SA}, v{SA}, v{SA+1}"); I(f"v_add_f32 v{SA+1}, v{SA+2}, v{SA+3}")
        s_, hf = T0, T0+1
        I(f"v_and_b32 v{s_}, 31, v{lane}"); I(f"v_lshrrev_b32 v{hf}, 5, v{lane}")
        I("s_lshl_b32 s42, s41, 9")
        I(f"v_lshl_add_u32 v{T0+2}, v{s_}, 4, s42")
        I(f"v_lshl_add_u32 v{T0+3}, v{hf}, 3, v{T0+2}")
        I(f"v_add_u32 v{T0+3}, {STP + cg*2048}, v{T0+3}")
        I(f"ds_write_b64 v{T0+3}, v[{SA}:{SA+1}]")
        I("s_lshl_b32 s42, s41, 8")
        I(f"v_lshl_add_u32 v{T0+4}, v{lane}, 2, s42"); I(f"v_add_u32 v{T0+4}, {CSP + cg*2048}, v{T0+4}")
        I(f"ds_write_b32 v{T0+4}, v{SA+4}"); I(f"ds_write_b32 v{T0+4}, v{SA+5} offset:1024")
        I("s_waitcnt lgkmcnt(0)")
        I("s_barrier")
        I(f"v_add_u32 v{T0+2}, {STP}, v{T0+2}")
        I(f"ds_read_b128 v[32:35], v{T0+2}"); I(f"ds_read_b128 v[36:39], v{T0+2} offset:2048")
        I(f"v_lshlrev_b32 v{T0+4}, 2, v{s_}"); I(f"v_add_u32 v{T0+4}, {CSP + cg*2048}, v{T0+4}")
        for k in range(2):
            for j in range(8): I(f"ds_read_b32 v{40+8*k+j}, v{T0+4} offset:{1024*k + 128*j}")
        I("s_waitcnt lgkmcnt(0)")
        I("v_add_f32 v32, v32, v34"); I("v_add_f32 v33, v33, v35"); I("v_add_f32 v36, v36, v38"); I("v_add_f32 v37, v37, v39")
        I("v_add_f32 v32, v32, v36"); I("v_add_f32 v33, v33, v37")
        I("s_mov_b32 s49, 0x3AE38E39")
        I("v_mul_f32 v32, s49, v32"); I("v_mul_f32 v33, s49, v33")
        I("v_fma_f32 v33, -v32, v32, v33"); I("v_max_f32 v33, 0, v33"); I("v_add_f32 v33, 0x3727c5ac, v33")
        I("v_rsq_f32 v34, v33"); I("v_mul_f32 v35, v32, v34"); I("v_sub_f32 v35, 0, v35")
        for k in range(2):
            for st in (4, 2, 1):
                for j in range(st): I(f"v_add_f32 v{40+8*k+j}, v{40+8*k+j}, v{40+8*k+j+st}")
        I("s_lshl_b32 s42, s30, 8"); I(f"s_add_u32 s42, s42, {FIN}")
        I(f"v_lshl_add_u32 v{T0+2}, v{s_}, 3, s42")
        I(f"ds_write_b64 v{T0+2}, v[34:35]")
        if cg == 0:
            I("s_lshl_b32 s43, s30, 7"); I(f"s_add_u32 s43, s43, {CSF}")
            I(f"v_lshl_add_u32 v{T0+3}, v{s_}, 2, s43")
            I(f"ds_write_b32 v{T0+3}, v40")
        I("s_waitcnt lgkmcnt(0)")
        I(f"v_lshl_add_u32 v{T0+2}, v{hf}, 5, s42")
        RS = 112
        for a in range(4):
            I(f"ds_read_b128 v[{RS+8*a}:{RS+8*a+3}], v{T0+2} offset:{64*a}")
            I(f"ds_read_b128 v[{RS+8*a+4}:{RS+8*a+7}], v{T0+2} offset:{64*a+16}")
        if cg == 0:
            I(f"v_lshl_add_u32 v{T0+3}, v{hf}, 4, s43")
            for a in range(4): I(f"ds_read_b128 v[{144+4*a}:{147+4*a}], v{T0+3} offset:{32*a}")
        I("s_waitcnt lgkmcnt(0)")
        def scale_T(ac, cs):
            for r in range(16): I(f"v_mul_f32 v{56+r}, v{RS+2*r+1}, v{cs}")
            for r in range(16): I(f"v_fma_f32 v{ac+r}, v{ac+r}, v{RS+2*r}, v{56+r}")
        if cg == 0:
            scale_T(AC + 16, 48)
        else:
            scale_T(AC, 40); scale_T(AC + 16, 48)
        I("s_mov_b32 s48, 0x3fb8aa3b")
        tmp = list(range(56, 72))
        I("s_lshl_b32 s50, s32, 2"); I("s_add_u32 s50, s50, s41"); I("s_lshl_b32 s50, s50, 2"); I("s_lshr_b32 s51, s33, 2"); I("s_add_u32 s50, s50, s51")
        I("s_mul_i32 s50, s50, 9216"); I(f"s_add_u32 s50, s50, {PQF}")
        I("s_and_b32 s51, s38, 3")
        I("s_lshl_b32 s52, s41, 11")
        I(f"v_add_u32 v{T0}, s52, v{vL16}")
        def pack_to_lds(ac, tile):
            for r in range(8): I(f"v_cvt_pk_bf16_f32 v{72+r}, v{ac+2*r}, v{ac+2*r+1}")
            I(f"ds_write_b128 v{T0}, v[72:75] offset:{tile*8192}")
            I(f"ds_write_b128 v{T0}, v[76:79] offset:{tile*8192+1024}")
        if cg == 0:
            q = AC; t1 = AC + 16
            phi2(I, list(range(t1, t1 + 16)), tmp, "s48")
            pack_to_lds(t1, 0)
            I("s_waitcnt lgkmcnt(0)")
            I("s_barrier")
            stamp(3)
            for r in range(16): I(f"v_mul_f32 v{56+r}, v35, v{144+r}")
            for r in range(16): I(f"v_fma_f32 v{AC+r}, v{AC+r}, v34, v{56+r}")
            phi2(I, list(range(q, q + 16)), tmp, "s48")
            for r in range(8): I(f"v_cvt_pk_bf16_f32 v{72+r}, v{q+2*r}, v{q+2*r+1}")
            I("s_lshl_b32 s53, s51, 11"); I("s_add_u32 s53, s53, s50")
            I(f"buffer_store_dwordx4 v[72:75], v{vL16}, s[16:19], s53 offen")
            I(f"buffer_store_dwordx4 v[76:79], v{vL16}, s[16:19], s53 offen offset:1024")
        else:
            t2 = AC; t3 = AC + 16
            I("s_mov_b32 exec_lo, 0xf"); I("s_mov_b32 exec_hi, 0xf")
            phi2(I, list(range(t2, t2 + 16)), tmp, "s48")
            I("s_mov_b32 exec_lo, 0xf00"); I("s_mov_b32 exec_hi, 0xf00")
            phi2(I, list(range(t3, t3 + 16)), tmp, "s48")
            I("s_mov_b32 exec_lo, 0x1000"); I("s_mov_b32 exec_hi, 0x1000")
            for r in range(16): I(f"v_mov_b32 v{t3+r}, 1.0")
            I("s_mov_b64 exec, -1")
            pack_to_lds(t2, 1)
            pack_to_lds(t3, 2)
            I("s_waitcnt lgkmcnt(0)")
            I("s_barrier")
            stamp(3)
            ad = T0 + 3
            I(f"v_and_b32 v{ad}, 31, v{lane}")
            I(f"v_subrev_u32 v{ad}, 8, v{ad}"); I(f"v_lshlrev_b32 v{ad}, 1, v{ad}")
            I(f"v_lshrrev_b32 v{T0+4}, 5, v{lane}"); I(f"v_lshl_add_u32 v{ad}, v{T0+4}, 6, v{ad}")
            I("s_lshr_b32 s53, s51, 1"); I("s_lshl_b32 s53, s53, 9"); I("s_and_b32 s54, s51, 1"); I("s_lshl_b32 s54, s54, 3")
            I("s_add_u32 s53, s53, s54"); I("s_add_u32 s53, s53, s50"); I("s_add_u32 s53, s53, 8192")
            I("s_mov_b32 exec_lo, 0xf00"); I("s_mov_b32 exec_hi, 0xf00")
            for r in range(16):
                off = (8 * (r >> 2) + (r & 3)) * 16
                if r & 1: I(f"buffer_store_short_d16_hi v{72 + (r >> 1)}, v{ad}, s[16:19], s53 offen offset:{off}")
                else: I(f"buffer_store_short v{72 + (r >> 1)}, v{ad}, s[16:19], s53 offen offset:{off}")
            I("s_mov_b64 exec, -1")
        if cg == 0: I(f"s_branch L{name}_nokv")
    KA = 112
    I("s_lshr_b32 s52, s41, 1"); I("s_and_b32 s53, s41, 1")
    I("s_lshl_b32 s54, s52, 13"); I(f"v_add_u32 v{T0}, s54, v{vL16}")
    I("s_add_u32 s54, s53, 1"); I("s_lshl_b32 s54, s54, 13"); I(f"v_add_u32 v{T0+1}, s54, v{vL16}")
    for k in range(8):
        I(f"ds_read_b128 v[{KA+8*k}:{KA+8*k+3}], v{T0} offset:{1024*k}", tag=("KA", k))
        I(f"ds_read_b128 v[{KA+8*k+4}:{KA+8*k+7}], v{T0+1} offset:{1024*k}", tag=("KA", k))
    n_, hf, vc, o0, o1, t, big, om = 32, 33, 34, 35, 36, 37, 38, 39
    I(f"v_and_b32 v{n_}, 31, v{lane}"); I(f"v_lshrrev_b32 v{hf}, 5, v{lane}")
    I(f"v_mov_b32 v{big}, 0x40000000")
    I("s_cmp_eq_u32 s53, 0"); I("s_cselect_b32 s54, -4, 28")
    I(f"v_add_u32 v{vc}, s54, v{n_}")
    I(f"v_lshlrev_b32 v{o0}, 2, v{vc}")
    I(f"v_cmp_gt_u32 vcc, 18, v{vc}"); I(f"v_cndmask_b32 v{o0}, v{big}, v{o0}, vcc")
    I(f"v_subrev_u32 v{t}, 18, v{vc}"); I(f"v_lshlrev_b32 v{o1}, 2, v{t}")
    I(f"v_cmp_gt_u32 vcc, 18, v{t}"); I(f"v_cndmask_b32 v{o1}, v{big}, v{o1}, vcc")
    I(f"v_cmp_eq_u32 vcc, 40, v{vc}"); I(f"v_mov_b32 v{t}, 72")
    I(f"v_cndmask_b32 v{o0}, v{o0}, v{t}, vcc"); I(f"v_cndmask_b32 v{o1}, v{o1}, v{t}, vcc")
    I(f"v_mul_u32_u24 v{t}, 320, v{hf}")
    I(f"v_add_u32 v{o0}, v{o0}, v{t}"); I(f"v_add_u32 v{o1}, v{o1}, v{t}")
    I(f"v_cmp_eq_u32 vcc, 0, v{hf}"); I(f"v_cndmask_b32 v{om}, v{o1}, v{o0}, vcc")
    I("s_lshl_b32 s55, s33, 4"); I("s_add_u32 s55, s55, s32"); I("s_mul_i32 s55, s55, 2880"); I(f"s_add_u32 s55, s55, {KVP}")
    for k in range(8):
        A.wait_lg(("KA", k))
        c = "0" if k == 0 else f"v[{AC}:{AC+15}]"
        I(f"v_mfma_f32_32x32x16_bf16 v[{AC}:{AC+15}], v[{KA+8*k}:{KA+8*k+3}], v[{KA+8*k+4}:{KA+8*k+7}], {c}")
    I("s_cmp_eq_u32 s52, 0")
    I(f"s_cbranch_scc0 L{name}_kvT2")
    for r in range(16):
        a = r >> 2; b = r & 3
        ad = o0 if a < 2 else (o1 if (a == 3 or b >= 2) else om)
        I(f"buffer_store_dword v{AC+r}, v{ad}, s[16:19], s55 offen offset:{(8*a+b)*80}")
    I(f"s_branch L{name}_nokv")
    A.label(f"L{name}_kvT2")
    A.flush_hazards()
    I("s_mov_b32 exec_hi, 0")
    for r in range(4):
        I(f"buffer_store_dword v{AC+r}, v{o1}, s[16:19], s55 offen offset:{(32+r)*80}")
    I("s_mov_b64 exec, -1")
    A.label(f"L{name}_nokv")
    A.label(f"L{name}_fin")
    if prof:
        I("s_waitcnt vmcnt(0)")
        I(f"s_memtime s[76:77]"); I(f"s_memrealtime s[78:79]"); I("s_waitcnt lgkmcnt(0)")
        I("s_lshl_b32 s80, s2, 3"); I("s_add_u32 s80, s80, s30"); I("s_lshl_b32 s80, s80, 7"); I(f"s_add_u32 s80, s80, {PROF}")
        for k in range(20): I(f"v_mov_b32 v{k}, s{60+k}")
        I("v_mov_b32 v20, 0")
        for k in range(5): I(f"buffer_store_dwordx4 v[{4*k}:{4*k+3}], v20, s[16:19], s80 offen offset:{16*k}")
    A.label(f"L{name}_end")
    I("s_endpgm")
    launch = f"; @launch kernel={name} grid=(256,1,1) block=(512,1,1) lds={LDS_BYTES}"
    return launch, A.text(), kernel_desc(name, 184)
```

```python
from asmlib import *
from layout import *
import os

def gen_k2b(name="k2_kernel", prof=False):
    A = Asm(); I = A.i
    PROF = (200 + 1) * MB
    LDS_BYTES = 147456
    PQ = 0
    KZ = 36
    DD = 100
    OF = 132
    AC = 168
    WB = 36
    vM = [[216, 217, 218], [219, 220, 221]]
    vLf = [222, 223, 224]
    vL16 = 225; lane = 226
    XR = 228
    T0 = 234
    A.raw(kernel_header(name))
    def stamp(i):
        if prof:
            I(f"s_memtime s[{60+4*i}:{61+4*i}]"); I(f"s_memrealtime s[{62+4*i}:{63+4*i}]"); I("s_waitcnt lgkmcnt(0)")
    I("s_cmp_ge_u32 s2, 256")
    I(f"s_cbranch_scc1 L{name}_end")
    stamp(0)
    I("s_load_dwordx2 s[4:5], s[0:1], 0")
    I("s_load_dwordx2 s[6:7], s[0:1], 16")
    I("s_load_dwordx4 s[24:27], s[0:1], 32")
    I("s_load_dwordx2 s[22:23], s[0:1], 72")
    I("s_load_dwordx2 s[28:29], s[0:1], 48")
    I(f"v_lshrrev_b32 v{T0}, 6, v0")
    I(f"v_readfirstlane_b32 s30, v{T0}")
    I(f"v_and_b32 v{lane}, 63, v0")
    I(f"v_lshlrev_b32 v{vL16}, 4, v{lane}")
    I("s_waitcnt lgkmcnt(0)")
    I("s_mov_b32 s16, s22"); I("s_mov_b32 s17, s23"); I(f"s_mov_b32 s18, {WS_BYTES}"); I("s_mov_b32 s19, 0x20000")
    I("s_cmp_lt_u32 s2, 64")
    I(f"s_cbranch_scc1 L{name}_cs")
    I("s_sub_u32 s3, s2, 64")
    I("s_mov_b32 s8, s4"); I("s_mov_b32 s9, s5"); I(f"s_mov_b32 s10, {S*D*2}"); I("s_mov_b32 s11, 0x20000")
    I("s_mov_b32 s12, s6"); I("s_mov_b32 s13, s7"); I(f"s_mov_b32 s14, {D*D*2}"); I("s_mov_b32 s15, 0x20000")
    I("s_and_b32 s31, s3, 7"); I("s_lshr_b32 s34, s3, 3")
    I("s_lshr_b32 s32, s31, 1"); I("s_lshl_b32 s32, s32, 3"); I("s_and_b32 s36, s34, 7"); I("s_add_u32 s32, s32, s36")
    I("s_and_b32 s33, s31, 1"); I("s_mul_i32 s33, s33, 3"); I("s_lshr_b32 s36, s34, 3"); I("s_add_u32 s33, s33, s36")
    I("s_and_b32 s41, s30, 1")
    I("s_lshr_b32 s39, s30, 1")
    I("s_lshl_b32 s35, s32, 1"); I("s_add_u32 s35, s35, s41")
    I("s_lshl_b32 s40, s35, 2"); I("s_add_u32 s40, s40, s39"); I("s_mul_i32 s40, s40, 9216"); I(f"s_add_u32 s40, s40, {PQF}")
    for k in range(9):
        if k in (4, 8): I("s_add_u32 s40, s40, 4096")
        I(f"buffer_load_dwordx4 v[{PQ+4*k}:{PQ+4*k+3}], v{vL16}, s[16:19], s40 offen offset:{1024*(k % 4)}", tag=("PQ", k))
    r_, p_, t = T0, T0+1, T0+2
    vW = T0 + 3
    I(f"v_lshrrev_b32 v{r_}, 4, v{lane}")
    I(f"v_bfe_u32 v{p_}, v{lane}, 2, 2")
    I(f"v_xor_b32 v{p_}, v{p_}, v{r_}")
    I(f"v_and_b32 v{t}, 3, v{lane}")
    I(f"v_lshl_add_u32 v{p_}, v{p_}, 2, v{t}")
    I(f"v_mul_u32_u24 v{r_}, 1152, v{r_}")
    I(f"v_lshl_add_u32 v{vW}, v{p_}, 4, v{r_}")
    I("s_mul_i32 s42, s33, 192"); I("s_and_b32 s43, s42, 0xffffff80"); I("s_sub_u32 s42, s42, s43")
    I(f"s_mul_i32 s44, s30, {4*1152}"); I("s_add_u32 s44, s44, s43")
    I("s_lshl_b32 s45, s30, 10")
    for x in range(18):
        I(f"s_add_u32 m0, s45, {8192*x}")
        I(f"buffer_load_dwordx4 v{vW}, s[12:15], s44 offen lds", tag="W")
        I(f"s_add_u32 s44, s44, {32*1152}")
    I(f"v_and_b32 v{T0}, 31, v{lane}"); I(f"v_mul_u32_u24 v{T0}, 1152, v{T0}")
    I(f"v_lshrrev_b32 v{T0+1}, 5, v{lane}"); I(f"v_lshl_add_u32 v{T0}, v{T0+1}, 3, v{T0}")
    I(f"s_mul_i32 s46, s35, {32*1152}"); I("s_mul_i32 s47, s33, 192"); I("s_add_u32 s46, s46, s47"); I("s_mul_i32 s47, s39, 48"); I("s_add_u32 s46, s46, s47")
    for k in range(3):
        I(f"buffer_load_dwordx2 v[{XR+2*k}:{XR+2*k+1}], v{T0}, s[8:11], s46 offen offset:{16*k}", tag="XR")
    hf, grp, r_, c4, base, t = T0, T0+1, T0+2, T0+4, T0+5, T0+6
    I(f"v_lshrrev_b32 v{hf}, 5, v{lane}"); I(f"v_bfe_u32 v{grp}, v{lane}, 4, 1"); I(f"v_bfe_u32 v{r_}, v{lane}, 2, 2"); I(f"v_and_b32 v{c4}, 3, v{lane}")
    I(f"v_lshlrev_b32 v{base}, 5, v{grp}"); I(f"v_lshl_add_u32 v{base}, v{c4}, 3, v{base}")
    I(f"s_mul_i32 s46, s39, {144*256}"); I(f"v_add_u32 v{base}, s46, v{base}")
    I("s_lshr_b32 s42, s42, 6")
    for par in range(2):
        for c in range(3):
            I(f"v_add_u32 v{t}, {2*par}, v{r_}"); I(f"v_and_b32 v{t}, 3, v{t}")
            I(f"s_add_u32 s47, s42, {c}")
            I(f"v_xor_b32 v{t}, s47, v{t}")
            I(f"v_lshl_add_u32 v{vM[par][c]}, v{t}, 6, v{base}")
            I(f"v_lshl_add_u32 v{t}, v{hf}, 3, v{r_}")
            I(f"v_lshl_add_u32 v{vM[par][c]}, v{t}, 8, v{vM[par][c]}")
    for c in range(3):
        I(f"v_lshl_add_u32 v{t}, v{r_}, 1, v{hf}"); I(f"v_and_b32 v{t}, 3, v{t}")
        I(f"s_add_u32 s47, s42, {c}")
        I(f"v_xor_b32 v{t}, s47, v{t}")
        I(f"v_lshl_add_u32 v{vLf[c]}, v{t}, 6, v{base}")
        I(f"v_mul_u32_u24 v{t}, 18, v{r_}"); I(f"v_add3_u32 v{t}, v{t}, v{hf}, 16")
        I(f"v_lshl_add_u32 v{vLf[c]}, v{t}, 8, v{vLf[c]}")
    for k in range(48): I(f"v_mov_b32 v{AC+k}, 0")
    stamp(4)
    I("s_cmp_lg_u32 s30, 0")
    I(f"s_cbranch_scc1 L{name}_nopoll")
    I("s_and_b32 s46, s2, 7"); I("s_lshl_b32 s46, s46, 7"); I(f"s_add_u32 s46, s46, {FL2}")
    I(f"v_lshlrev_b32 v{T0}, 2, v{lane}")
    I("s_mov_b64 exec, 0xffff")
    A.label(f"L{name}_poll")
    A.raw(f"    buffer_load_dword v{T0+1}, v{T0}, s[16:19], s46 offen sc1")
    A.raw("    s_waitcnt vmcnt(0)")
    I(f"v_cmp_ne_u32 vcc, 1, v{T0+1}")
    I("s_nop 4")
    I(f"s_cbranch_vccz L{name}_polld")
    I("s_sleep 2")
    I(f"s_branch L{name}_poll")
    A.label(f"L{name}_polld")
    I("s_mov_b64 exec, -1")
    A.label(f"L{name}_nopoll")
    I("s_barrier")
    stamp(5)
    I("s_lshl_b32 s40, s39, 14"); I(f"s_add_u32 s40, s40, {KVZ}")
    for k in range(16):
        if k and k % 4 == 0: I("s_add_u32 s40, s40, 4096")
        I(f"buffer_load_dwordx4 v[{KZ+4*k}:{KZ+4*k+3}], v{vL16}, s[16:19], s40 offen offset:{1024*(k % 4)} sc1", tag=("KZ", k))
    stamp(1)
    LO = T0 + 8
    for hd in range(8):
        p = hd >> 1; hh = hd & 1
        d = DD + 16 * (hd & 1)
        b0 = 2 * p + hh; b1 = (2 * p + 1) if hh == 0 else 8
        A.wait_vm(("KZ", 2 * hd + 1))
        I(f"v_mfma_f32_32x32x16_bf16 v[{d}:{d+15}], v[{KZ+8*hd}:{KZ+8*hd+3}], v[{PQ+4*b0}:{PQ+4*b0+3}], 0")
        I(f"v_mfma_f32_32x32x16_bf16 v[{d}:{d+15}], v[{KZ+8*hd+4}:{KZ+8*hd+7}], v[{PQ+4*b1}:{PQ+4*b1+3}], v[{d}:{d+15}]")
        if hd >= 1:
            dp = DD + 16 * ((hd - 1) & 1); hp = hd - 1
            I(f"v_add_f32 v{dp+9}, 0x358637bd, v{dp+9}")
            I(f"v_rcp_f32 v{dp+9}, v{dp+9}")
            for r in range(8): I(f"v_mul_f32 v{dp+r}, v{dp+r}, v{dp+9}")
            I(f"v_mul_f32 v{LO+hp}, v{dp+8}, v{dp+9}")
            for r in range(4): I(f"v_cvt_pk_bf16_f32 v{OF+4*hp+r}, v{dp+2*r}, v{dp+2*r+1}")
    dp = DD + 16; hp = 7
    I(f"v_add_f32 v{dp+9}, 0x358637bd, v{dp+9}")
    I(f"v_rcp_f32 v{dp+9}, v{dp+9}")
    for r in range(8): I(f"v_mul_f32 v{dp+r}, v{dp+r}, v{dp+9}")
    I(f"v_mul_f32 v{LO+hp}, v{dp+8}, v{dp+9}")
    for r in range(4): I(f"v_cvt_pk_bf16_f32 v{OF+4*hp+r}, v{dp+2*r}, v{dp+2*r+1}")
    for r in range(4): I(f"v_cvt_pk_bf16_f32 v{OF+32+r}, v{LO+2*r}, v{LO+2*r+1}")
    A.wait_vm("W")
    I("s_barrier")
    stamp(2)
    NB = 8; PD = 5
    def rd(fi):
        ks = fi // 3; c = fi % 3
        b = WB + 4 * (fi % NB)
        for x in range(2):
            if ks < 8: I(f"ds_read_b64_tr_b16 v[{b+2*x}:{b+2*x+1}], v{vM[ks & 1][c]} offset:{ks*18*256 + x*1024}", tag=("F", fi))
            else: I(f"ds_read_b64_tr_b16 v[{b+2*x}:{b+2*x+1}], v{vLf[c]} offset:{x*72*256}", tag=("F", fi))
    for fi in range(PD): rd(fi)
    for fi in range(27):
        ks = fi // 3; c = fi % 3
        b = WB + 4 * (fi % NB)
        A.wait_lg(("F", fi))
        I(f"v_mfma_f32_32x32x16_bf16 v[{AC+16*c}:{AC+16*c+15}], v[{b}:{b+3}], v[{OF+4*ks}:{OF+4*ks+3}], v[{AC+16*c}:{AC+16*c+15}]")
        if fi + PD < 27: rd(fi + PD)
    stamp(6)
    I("s_barrier")
    I("s_lshl_b32 s46, s41, 2"); I("s_add_u32 s46, s46, s39"); I("s_mul_i32 s46, s46, 12288")
    I(f"v_add_u32 v{T0}, s46, v{vL16}")
    for a in range(12): I(f"ds_write_b128 v{T0}, v[{AC+4*a}:{AC+4*a+3}] offset:{1024*a}")
    I("s_waitcnt lgkmcnt(0)")
    I("s_barrier")
    I("s_mul_i32 s46, s41, 49152"); I("s_mul_i32 s47, s39, 3072"); I("s_add_u32 s46, s46, s47")
    I(f"v_add_u32 v{T0}, s46, v{vL16}")
    for g in range(4):
        for k in range(3):
            I(f"ds_read_b128 v[{48*0 + 12*g + 4*k}:{12*g + 4*k + 3}], v{T0} offset:{12288*g + 1024*k}", tag=("R", g))
    I("s_waitcnt lgkmcnt(0)")
    for g in range(1, 4):
        for r in range(12): I(f"v_add_f32 v{r}, v{r}, v{12*g+r}")
    stamp(7)
    A.wait_vm("XR")
    for k in range(3):
        for dw in range(2):
            xr = XR + 2 * k + dw
            I(f"v_lshlrev_b32 v{T0+1}, 16, v{xr}"); I(f"v_and_b32 v{T0+2}, 0xffff0000, v{xr}")
            I(f"v_add_f32 v{4*k+2*dw}, v{4*k+2*dw}, v{T0+1}"); I(f"v_add_f32 v{4*k+2*dw+1}, v{4*k+2*dw+1}, v{T0+2}")
            I(f"v_cvt_pk_bf16_f32 v{16+2*k+dw}, v{4*k+2*dw}, v{4*k+2*dw+1}")
    I(f"v_mov_b32 v24, 0"); I(f"v_mov_b32 v25, 0"); I("s_mov_b32 s47, 0x3f803f80")
    for k in range(6):
        I(f"v_dot2_f32_bf16 v24, v{16+k}, s47, v24"); I(f"v_dot2_f32_bf16 v25, v{16+k}, v{16+k}, v25")
    I("s_nop 4")
    s4, l16 = T0 + 1, T0 + 2
    I(f"v_bfe_u32 v{s4}, v{lane}, 4, 1")
    I(f"v_lshrrev_b32 v{l16}, 5, v{lane}"); I(f"v_and_b32 v{T0+3}, 15, v{lane}"); I(f"v_lshl_add_u32 v{l16}, v{l16}, 4, v{T0+3}")
    I(f"v_mul_u32_u24 v{T0+3}, 18432, v{s4}")
    I(f"v_lshl_add_u32 v{T0+4}, v{l16}, 4, v{T0+3}")
    I(f"v_lshl_add_u32 v{T0+5}, v{l16}, 3, v{T0+3}")
    I(f"s_mul_i32 s48, s35, {2*18432}")
    for k in range(3):
        I(f"s_mul_i32 s49, s39, 3"); I(f"s_add_u32 s49, s49, {k}")
        I("s_lshr_b32 s50, s49, 1"); I("s_mul_i32 s51, s33, 6"); I("s_add_u32 s50, s50, s51")
        I("s_and_b32 s49, s49, 1")
        I("s_lshr_b32 s51, s50, 1"); I("s_lshl_b32 s51, s51, 10"); I("s_lshl_b32 s52, s49, 9"); I("s_add_u32 s51, s51, s52")
        I("s_and_b32 s52, s50, 1"); I("s_lshl_b32 s52, s52, 3"); I("s_add_u32 s51, s51, s52"); I("s_add_u32 s51, s51, s48"); I(f"s_add_u32 s51, s51, {HF}")
        I(f"buffer_store_dwordx2 v[{16+2*k}:{17+2*k}], v{T0+4}, s[16:19], s51 offen")
        I("s_lshl_b32 s51, s50, 9"); I("s_lshl_b32 s52, s49, 8"); I("s_add_u32 s51, s51, s52"); I("s_add_u32 s51, s51, s48"); I(f"s_add_u32 s51, s51, {H4}")
        I(f"buffer_store_dwordx2 v[{16+2*k}:{17+2*k}], v{T0+5}, s[16:19], s51 offen")
    I("s_barrier")
    I("s_lshl_b32 s46, s41, 2"); I("s_add_u32 s46, s46, s39"); I("s_lshl_b32 s46, s46, 9"); I("s_add_u32 s46, s46, 0x18000")
    I(f"v_lshl_add_u32 v{T0}, v{lane}, 3, s46")
    I(f"ds_write_b64 v{T0}, v[24:25]")
    I("s_waitcnt lgkmcnt(0)")
    I("s_barrier")
    I("s_cmp_lg_u32 s39, 0")
    I(f"s_cbranch_scc1 L{name}_fin")
    I(f"v_and_b32 v{T0+1}, 31, v{lane}")
    I("s_lshl_b32 s46, s41, 11"); I("s_add_u32 s46, s46, 0x18000")
    I(f"v_lshl_add_u32 v{T0}, v{T0+1}, 3, s46")
    for k in range(8): I(f"ds_read_b64 v[{2*k}:{2*k+1}], v{T0} offset:{256*k}")
    I("s_waitcnt lgkmcnt(0)")
    for k in range(1, 8):
        I(f"v_add_f32 v0, v0, v{2*k}"); I(f"v_add_f32 v1, v1, v{2*k+1}")
    I(f"v_lshrrev_b32 v{T0+2}, 4, v{T0+1}"); I(f"v_mul_u32_u24 v{T0+2}, 768, v{T0+2}")
    I(f"v_and_b32 v{T0+1}, 15, v{T0+1}"); I(f"v_lshl_add_u32 v{T0+1}, v{T0+1}, 3, v{T0+2}")
    I(f"s_mul_i32 s46, s35, {2*768}"); I("s_lshl_b32 s47, s33, 7"); I("s_add_u32 s46, s46, s47"); I(f"s_add_u32 s46, s46, {ST}")
    I("s_mov_b32 exec_hi, 0")
    I(f"buffer_store_dwordx2 v[0:1], v{T0+1}, s[16:19], s46 offen")
    I("s_mov_b64 exec, -1")
    I(f"s_branch L{name}_fin")
    A.label(f"L{name}_cs")
    A.hist = []
    I("s_cmp_ge_u32 s2, 16")
    I(f"s_cbranch_scc1 L{name}_cs2")
    I("s_mov_b32 s33, s2")
    I("s_lshl_b32 s50, s30, 10")
    I(f"v_add_u32 v{T0}, s50, v{vL16}")
    I(f"s_mul_i32 s55, s33, {16*2880}"); I(f"s_add_u32 s55, s55, {KVP}")
    I(f"v_mov_b32 v{T0+1}, 0x40000000")
    I(f"v_cmp_gt_u32 vcc, 2880, v{T0}")
    I(f"v_cndmask_b32 v{T0+2}, v{T0+1}, v{T0}, vcc")
    I("s_cmp_ge_u32 s30, 3")
    I(f"s_cbranch_scc1 L{name}_nored")
    for k in range(16):
        I(f"buffer_load_dwordx4 v[{4*k}:{4*k+3}], v{T0+2}, s[16:19], s55 offen", tag=("P", k))
        I("s_add_u32 s55, s55, 2880")
    A.label(f"L{name}_nored")
    I("s_lshr_b32 s52, s30, 1"); I("s_and_b32 s53, s30, 1"); I("s_add_u32 s54, s52, s53")
    m_, hf, r_, sl, t, u_, zc = 64, 65, 66, 67, 68, 69, 70
    I(f"v_and_b32 v{m_}, 31, v{lane}"); I(f"v_lshrrev_b32 v{hf}, 5, v{lane}")
    I(f"v_lshrrev_b32 v{r_}, 3, v{m_}"); I(f"v_and_b32 v{t}, 3, v{m_}"); I(f"v_lshl_add_u32 v{r_}, v{r_}, 2, v{t}")
    I(f"v_bfe_u32 v{t}, v{m_}, 2, 1")
    I(f"v_lshl_add_u32 v{sl}, v{t}, 3, v{r_}")
    I(f"v_add_u32 v{u_}, 16, v{t}")
    I(f"v_cmp_eq_u32 vcc, 8, v{r_}"); I(f"v_cndmask_b32 v{sl}, v{sl}, v{u_}, vcc")
    I(f"v_mov_b32 v{u_}, 18")
    I(f"v_cmp_eq_u32 vcc, 9, v{r_}"); I(f"v_cndmask_b32 v{sl}, v{sl}, v{u_}, vcc")
    I(f"v_cmp_gt_u32 s[56:57], 10, v{r_}")
    I(f"v_mov_b32 v{zc}, 2880")
    I("s_mul_i32 s58, s52, 18")
    I("s_and_b32 s51, s33, 3")
    for j in range(8):
        col, ad = 72 + 2*j, 73 + 2*j
        I("s_lshl_b32 s59, s54, 4"); I(f"s_add_u32 s59, s59, {8*(j >> 2) + (j & 3)}")
        I(f"v_lshl_add_u32 v{col}, v{hf}, 2, s59")
        I(f"v_lshl_add_u32 v{t}, v{hf}, 1, {j >> 2}")
        I(f"v_cmp_eq_u32 vcc, s51, v{t}")
        I(f"v_mov_b32 v{u_}, {32 + (j & 3)}"); I(f"v_mov_b32 v{t}, 100")
        I(f"v_cndmask_b32 v{u_}, v{t}, v{u_}, vcc")
        I("s_cmp_eq_u32 s54, 2"); I("s_cselect_b64 vcc, -1, 0")
        I(f"v_cndmask_b32 v{col}, v{col}, v{u_}, vcc")
        I(f"v_mul_u32_u24 v{ad}, 20, v{col}"); I(f"v_add_lshl_u32 v{ad}, v{ad}, v{sl}, 2")
        I(f"v_subrev_u32 v{t}, s58, v{col}")
        I(f"v_cmp_gt_u32 vcc, 18, v{t}")
        I("s_and_b64 vcc, vcc, s[56:57]")
        I(f"v_cndmask_b32 v{ad}, v{zc}, v{ad}, vcc")
    I("s_cmp_ge_u32 s30, 3")
    I(f"s_cbranch_scc1 L{name}_nored2")
    for k in range(1, 16):
        A.wait_vm(("P", k))
        for r in range(4): I(f"v_add_f32 v{r}, v{r}, v{4*k+r}")
    I(f"ds_write_b128 v{T0}, v[0:3] offset:{0x9000}")
    A.label(f"L{name}_nored2")
    I("s_waitcnt lgkmcnt(0)")
    I("s_barrier")
    I("s_cmp_ge_u32 s30, 4")
    I(f"s_cbranch_scc1 L{name}_nob")
    for j in range(8): I(f"ds_read_b32 v{j}, v{73+2*j} offset:{0x9000}")
    I("s_waitcnt lgkmcnt(0)")
    for r in range(4): I(f"v_cvt_pk_bf16_f32 v{8+r}, v{2*r}, v{2*r+1}")
    I("s_lshl_b32 s59, s33, 2"); I("s_add_u32 s59, s59, s30"); I("s_lshl_b32 s59, s59, 10"); I(f"s_add_u32 s59, s59, {KVZ}")
    I(f"buffer_store_dwordx4 v[8:11], v{vL16}, s[16:19], s59 offen sc1")
    I("s_waitcnt vmcnt(0)")
    A.label(f"L{name}_nob")
    I("s_barrier")
    I("s_cmp_lg_u32 s30, 0")
    I(f"s_cbranch_scc1 L{name}_cs2")
    I(f"v_lshlrev_b32 v{T0}, 7, v{lane}"); I(f"v_mov_b32 v{T0+1}, 1")
    I("s_lshl_b32 s59, s33, 2"); I(f"s_add_u32 s59, s59, {FL2}")
    I("s_mov_b64 exec, 0xff")
    I(f"buffer_store_dword v{T0+1}, v{T0}, s[16:19], s59 offen sc1")
    I("s_mov_b64 exec, -1")
    A.label(f"L{name}_cs2")
    A.hist = []
    I("s_and_b32 s32, s2, 7"); I("s_lshl_b32 s32, s32, 2"); I("s_lshr_b32 s34, s2, 4"); I("s_add_u32 s32, s32, s34")
    I("s_bfe_u32 s34, s2, 0x10003"); I("s_lshl_b32 s34, s34, 5"); I("s_add_u32 s32, s32, s34")
    I("s_cmp_ge_u32 s32, 32")
    I("s_cselect_b32 s8, s26, s24"); I("s_cselect_b32 s9, s27, s25")
    I(f"s_mov_b32 s10, {D*F*2}"); I("s_mov_b32 s11, 0x20000")
    I("s_and_b32 s34, s32, 31")
    I(f"v_mul_u32_u24 v{T0}, 57, v{lane}"); I(f"v_lshrrev_b32 v{T0}, 10, v{T0}")
    I(f"v_mul_u32_u24 v{T0+1}, 18, v{T0}"); I(f"v_sub_u32 v{T0+1}, v{lane}, v{T0+1}")
    I(f"v_mul_u32_u24 v{T0+2}, 9216, v{T0}"); I(f"v_lshl_add_u32 v{T0+2}, v{T0+1}, 4, v{T0+2}")
    I(f"v_mov_b32 v{T0+3}, 0x40000000")
    I(f"v_cmp_gt_u32 vcc, 54, v{lane}")
    I(f"v_cndmask_b32 v{T0+2}, v{T0+3}, v{T0+2}, vcc")
    I(f"s_mul_i32 s40, s30, {3*9216}"); I("s_mul_i32 s41, s34, 288"); I("s_add_u32 s40, s40, s41")
    for it in range(24):
        I(f"buffer_load_dwordx4 v[{4*it}:{4*it+3}], v{T0+2}, s[8:11], s40 offen", tag=("C", it))
        I(f"s_add_u32 s40, s40, {24*9216}")
    if os.environ.get("K2PF", "0") == "1":
        I("s_lshl_b32 s46, s2, 3"); I("s_add_u32 s46, s46, s30"); I(f"s_mul_i32 s48, s46, {81*128}")
        I(f"v_lshlrev_b32 v{T0+4}, 7, v{lane}")
        I("s_mov_b32 s12, s28"); I("s_mov_b32 s13, s29"); I("s_mov_b32 s14, 0x%x" % (D*F*2)); I("s_mov_b32 s15, 0x20000")
        I(f"buffer_load_dword v120, v{T0+4}, s[12:15], s48 offen", tag="PF")
        I("s_add_u32 s48, s48, 8192")
        I("s_mov_b32 exec_hi, 0"); I("s_mov_b32 exec_lo, 0x1ffff")
        I(f"buffer_load_dword v121, v{T0+4}, s[12:15], s48 offen", tag="PF")
        I("s_mov_b64 exec, -1")
    for k in range(8): I(f"v_mov_b32 v{100+k}, 0")
    for it in range(24):
        A.wait_vm(("C", it))
        for dw in range(4):
            a, b = 110 + 2 * (dw & 1), 111 + 2 * (dw & 1)
            I(f"v_lshlrev_b32 v{a}, 16, v{4*it+dw}"); I(f"v_and_b32 v{b}, 0xffff0000, v{4*it+dw}")
            I(f"v_add_f32 v{100+2*dw}, v{100+2*dw}, v{a}"); I(f"v_add_f32 v{101+2*dw}, v{101+2*dw}, v{b}")
    I("s_mul_i32 s40, s30, 2304")
    I(f"v_mul_u32_u24 v{T0}, 576, v{T0}"); I(f"v_lshl_add_u32 v{T0}, v{T0+1}, 5, v{T0}"); I(f"v_add_u32 v{T0}, s40, v{T0}")
    I(f"ds_write_b128 v{T0}, v[100:103]"); I(f"ds_write_b128 v{T0}, v[104:107] offset:16")
    I("s_waitcnt lgkmcnt(0)")
    I("s_barrier")
    I("s_cmp_ge_u32 s30, 3")
    I(f"s_cbranch_scc1 L{name}_fin")
    I("s_lshl_b32 s40, s30, 8")
    I(f"v_lshl_add_u32 v{T0}, v{lane}, 2, s40")
    n = 0
    for w in range(8):
        for r3 in range(3):
            I(f"ds_read_b32 v{n}, v{T0} offset:{(w*4 + r3)*576}"); n += 1
    I("s_waitcnt lgkmcnt(0)")
    for k in range(1, 24): I(f"v_add_f32 v0, v0, v{k}")
    I(f"v_mov_b32 v{T0+3}, 0x40000000")
    I(f"v_cmp_gt_u32 vcc, 576, v{T0}")
    I(f"v_cndmask_b32 v{T0}, v{T0+3}, v{T0}, vcc")
    I("s_mul_i32 s40, s32, 576"); I(f"s_add_u32 s40, s40, {CS}")
    I(f"buffer_store_dword v0, v{T0}, s[16:19], s40 offen")
    A.label(f"L{name}_fin")
    if prof:
        I("s_waitcnt vmcnt(0)")
        stamp(3)
        I("s_add_u32 s96, s2, 192"); I("s_and_b32 s96, s96, 255"); I("s_lshl_b32 s96, s96, 3"); I("s_add_u32 s96, s96, s30"); I("s_lshl_b32 s96, s96, 7"); I(f"s_add_u32 s96, s96, {PROF}")
        for k in range(32): I(f"v_mov_b32 v{k}, s{60+k}")
        I("v_mov_b32 v32, 0")
        for k in range(8): I(f"buffer_store_dwordx4 v[{4*k}:{4*k+3}], v32, s[16:19], s96 offen offset:{16*k}")
    A.label(f"L{name}_end")
    I("s_endpgm")
    launch = f"; @launch kernel={name} grid=(256,1,1) block=(512,1,1) lds={LDS_BYTES}"
    return launch, A.text(), kernel_desc(name, 252)
```

```python
from asmlib import *
from layout import *

import os
STF = os.environ.get("K3STF", "sc1")
STF8 = ""
def gen_k3f(name="k3_kernel", prof=False, exp=""):
    A = Asm(); I = A.i
    PROF = (200 + 2) * MB
    SLOT = 24576; UOFF = 12288; NSLOT = 6
    LCS = SLOT * NSLOT
    LDS_BYTES = LCS + 1152
    PD = 3; NB = 4
    HB = 160
    WB = 208
    CSR = 224
    vA = [[232, 233, 234, 235], [236, 237, 238, 239]]
    vD = [240, 241, 242]
    vL16 = 243
    vR = 244
    T0 = 252
    A.raw(kernel_header(name))
    def stamp(i):
        if prof:
            I(f"s_memtime s[{60+4*i}:{61+4*i}]"); I(f"s_memrealtime s[{62+4*i}:{63+4*i}]"); I("s_waitcnt lgkmcnt(0)")
    I("s_cmp_ge_u32 s2, 256")
    I(f"s_cbranch_scc1 L{name}_end")
    stamp(0)
    I("s_load_dwordx4 s[4:7], s[0:1], 32")
    I("s_load_dwordx2 s[24:25], s[0:1], 72")
    I("s_load_dwordx2 s[92:93], s[0:1], 48")
    lane = 100
    I(f"v_lshrrev_b32 v{101}, 6, v0")
    I(f"v_readfirstlane_b32 s30, v{101}")
    I(f"v_and_b32 v{lane}, 63, v0")
    I("s_and_b32 s31, s2, 7"); I("s_lshr_b32 s32, s2, 3"); I("s_and_b32 s33, s32, 7"); I("s_lshr_b32 s32, s32, 3")
    I("s_lshl_b32 s34, s31, 2"); I("s_add_u32 s34, s34, s32")
    I("s_and_b32 s41, s30, 3")
    I("s_lshl_b32 s35, s33, 4"); I("s_lshl_b32 s36, s41, 2"); I("s_add_u32 s35, s35, s36")
    I(f"v_lshlrev_b32 v{vL16}, 4, v{lane}")
    I("s_mov_b32 s36, 0xAAAB")
    for x in range(3):
        q, rw, p, t = 102, 103, 104, 105
        I(f"v_add_u32 v{q}, {64*x}, v{lane}")
        I(f"v_mul_lo_u32 v{rw}, v{q}, s36")
        I(f"v_lshrrev_b32 v{rw}, 20, v{rw}")
        I(f"v_mul_u32_u24 v{t}, 24, v{rw}")
        I(f"v_sub_u32 v{p}, v{q}, v{t}")
        I(f"v_and_b32 v{t}, 6, v{rw}")
        I(f"v_xor_b32 v{p}, v{p}, v{t}")
        I(f"v_mul_u32_u24 v{t}, 9216, v{rw}")
        I(f"v_lshl_add_u32 v{vD[x]}, v{p}, 4, v{t}")
    rowv, f, c4, t = 102, 103, 104, 105
    I(f"v_lshrrev_b32 v{rowv}, 2, v{lane}")
    I(f"v_bfe_u32 v{f}, v{lane}, 3, 2")
    I(f"v_and_b32 v{c4}, 3, v{lane}")
    I(f"v_mul_u32_u24 v{rowv}, 384, v{rowv}")
    I(f"v_lshl_add_u32 v{rowv}, v{c4}, 3, v{rowv}")
    I("s_and_b32 s37, s34, 3")
    for m in range(4):
        I(f"s_add_u32 s38, s37, {m}")
        I(f"v_xor_b32 v{t}, s38, v{f}")
        I(f"v_lshl_add_u32 v{vA[0][m]}, v{t}, 5, v{rowv}")
    I("s_waitcnt lgkmcnt(0)")
    I("s_cmp_lt_u32 s30, 4")
    I("s_cselect_b32 s8, s4, s6"); I("s_cselect_b32 s9, s5, s7")
    I(f"s_mov_b32 s10, {D*F*2}"); I("s_mov_b32 s11, 0x20000")
    I("s_mov_b32 s16, s24"); I("s_mov_b32 s17, s25"); I(f"s_mov_b32 s18, {WS_BYTES}"); I("s_mov_b32 s19, 0x20000")
    I("s_mul_i32 s40, s34, 288"); I("s_and_b32 s40, s40, 0xffffff80")
    I(f"s_mul_i32 s42, s41, {8*9216}"); I("s_add_u32 s40, s40, s42")
    I("s_mul_i32 s43, s41, 3072")
    I("s_cmp_lt_u32 s30, 4"); I(f"s_cselect_b32 s44, 0, {UOFF}"); I("s_add_u32 s43, s43, s44")
    def dma_piece(u, x):
        if 'nodma' in exp and u >= 2:
            A.vmq.append(("W", u)); A.vmdone = len(A.vmq) if A.vmdone >= len(A.vmq) - 1 else A.vmdone; return
        I(f"s_add_u32 m0, s43, {1024*x + (u % NSLOT)*SLOT}")
        I(f"buffer_load_dwordx4 v{vD[x]}, s[8:11], s40 offen lds", tag=("W", u))
        if x == 2:
            I(f"s_add_u32 s40, s40, {32*9216}")
    def hload(t, i):
        if 'nohl' in exp and t >= 3:
            A.vmq.append(("H", t, i)); return
        b = HB + 16 * (t % 3) + 4 * i
        I(f"buffer_load_dwordx4 v[{b}:{b+3}], v{vL16}, s[16:19], s{52+i} offen", tag=("H", t, i))
        I(f"s_add_u32 s{52+i}, s{52+i}, 1024")
    for i in range(4):
        I(f"s_add_u32 s{52+i}, s35, {i}")
        I(f"s_mul_i32 s{52+i}, s{52+i}, {18*1024}")
        I(f"s_add_u32 s{52+i}, s{52+i}, {HF}")
    def dma_unit(u):
        for x in range(3): dma_piece(u, x)
    def hloads(t):
        for i in range(4): hload(t, i)
    dma_unit(0); hloads(0)
    I("s_cmp_lg_u32 s41, 0")
    I(f"s_cbranch_scc1 L{name}_nocs")
    I("s_mul_i32 s47, s34, 576")
    I("s_lshr_b32 s46, s30, 2")
    I(f"s_mul_i32 s48, s46, {4608*4}")
    I("s_add_u32 s47, s47, s48")
    I(f"s_add_u32 s47, s47, {CS}")
    I("s_mul_i32 s46, s46, 576")
    I(f"s_add_u32 m0, s46, {LCS}")
    I("s_mov_b32 exec_hi, 0xf")
    A.raw(f"    buffer_load_dwordx4 v{vL16}, s[16:19], s47 offen lds")
    I("s_mov_b64 exec, -1")
    A.label(f"L{name}_nocs")
    A.wait_vm(("W", 0))
    I("s_barrier")
    I("s_cmp_ge_u32 s30, 4")
    I(f"s_cbranch_scc1 L{name}_half1")
    saved = (list(A.vmq), A.vmdone, list(A.lgq), A.lgdone)
    G0 = 15
    for ch in range(2):
        if ch == 1:
            A.label(f"L{name}_half1")
            A.vmq, A.vmdone, A.lgq, A.lgdone = list(saved[0]), saved[1], list(saved[2]), saved[3]
            A.hist = []
        TL = [0, 1, 2, 3, 8] if ch == 0 else [4, 5, 6, 7]
        nc = len(TL); NF = 2 * nc
        vK = [vD[0], vD[1], vD[2], T0 + 3]
        def accb(i, c, mat): return (i * NF + TL.index(c) * 2 + mat) * 4
        def acc(i, c, mat):
            k = accb(i, c, mat); return f"v[{k}:{k+3}]"
        seq = [(tt, TL[fr // 2], fr & 1) for tt in range(G0) for fr in range(NF)]
        seq += [(tt, c, mat) for c in TL for tt in range(G0, 18) for mat in range(2)]
        def rd(fi):
            if fi >= len(seq): return
            tt, c, mat = seq[fi]
            b = WB + 4 * (fi % NB)
            if tt < G0: va = vA[tt & 1][c & 3]; so = 0
            elif tt < 17: va = vA[G0 & 1][c & 3]; so = (tt - G0) * SLOT
            else: va = vA[1 - (G0 & 1)][c & 3]; so = 0
            for x in range(2):
                I(f"ds_read_b64_tr_b16 v[{b+2*x}:{b+2*x+1}], v{va} offset:{so + 128*(c >> 2) + x*6144 + mat*UOFF}", tag=("F", fi))
        def stats_load(h_):
            I(f"v_lshrrev_b32 v{T0+1}, 1, v{vL16}")
            I(f"s_mul_i32 s47, s35, 768"); I(f"s_add_u32 s47, s47, {ST}")
            for k in range(8): I(f"v_mov_b32 v{CSR+k}, 0")
            for i in range(2):
                I(f"buffer_load_dwordx2 v[{CSR+4*i}:{CSR+4*i+1}], v{T0+1}, s[16:19], s47 offen offset:{768*(2*h_+i)}", tag=("ST", h_))
            I("s_mov_b32 exec_hi, 0")
            for i in range(2):
                I(f"buffer_load_dwordx2 v[{CSR+4*i+2}:{CSR+4*i+3}], v{T0+1}, s[16:19], s47 offen offset:{768*(2*h_+i)+512}", tag=("ST", h_))
            I("s_mov_b64 exec, -1")
        def stats_math(h_):
            A.wait_vm(("ST", h_))
            I(f"s_mov_b32 s49, 0x3AE38E39")
            q = CSR
            for i in range(2):
                I(f"v_add_f32 v{q+4*i}, v{q+4*i}, v{q+4*i+2}"); I(f"v_add_f32 v{q+4*i+1}, v{q+4*i+1}, v{q+4*i+3}")
            for op in ("v_permlane16_swap_b32", "v_permlane32_swap_b32"):
                for i in range(2):
                    I(f"v_mov_b32 v{q+4*i+2}, v{q+4*i}"); I(f"v_mov_b32 v{q+4*i+3}, v{q+4*i+1}")
                for i in range(2):
                    I(f"{op} v{q+4*i}, v{q+4*i+2}"); I(f"{op} v{q+4*i+1}, v{q+4*i+3}")
                I("s_nop 1")
                for i in range(2):
                    I(f"v_add_f32 v{q+4*i}, v{q+4*i}, v{q+4*i+2}"); I(f"v_add_f32 v{q+4*i+1}, v{q+4*i+1}, v{q+4*i+3}")
            for i in range(2):
                m_, e_ = q + 4 * i, q + 4 * i + 1; r = vR + 2 * (2 * h_ + i); k2 = vK[2 * h_ + i]
                I(f"v_mul_f32 v{m_}, s49, v{m_}"); I(f"v_mul_f32 v{e_}, s49, v{e_}")
                I(f"v_fma_f32 v{e_}, -v{m_}, v{m_}, v{e_}")
                I(f"v_max_f32 v{e_}, 0, v{e_}")
                I(f"v_add_f32 v{k2}, 0x3727c5ac, v{e_}")
                I(f"v_rsq_f32 v{r+1}, v{k2}")
                I(f"v_sub_f32 v{r}, 0, v{m_}")
                I(f"v_mul_f32 v{r+1}, 0xbfb8aa3b, v{r+1}")
        for fi in range(PD): rd(fi)
        stamp(1)
        mid = NF // 2 - 1
        nextW = 1; nextH = 1
        fi = 0
        for tt in range(G0):
            wl = []
            while nextW <= min(17, tt + 4) and len(wl) < (2 if tt < 4 else 1): wl.append(nextW); nextW += 1
            hl = []
            while nextH <= min(17, tt + 2) and len(hl) < (2 if tt < 1 else 1): hl.append(nextH); nextH += 1
            wp = [("W", u, x) for u in wl for x in range(3)]
            hp = [("H", t_, i_) for t_ in hl for i_ in range(4)]
            ops = []
            if tt == 0: ops = wp[:3] + hp[:4] + wp[3:] + hp[4:]
            else:
                while wp or hp:
                    if hp: ops.append(hp.pop(0))
                    if wp: ops.append(wp.pop(0))
            nm = 4 * NF
            slots = {}
            for k, o in enumerate(ops):
                p = int((k + (0.25 if ch == 0 else 0.75)) * (nm - 4) / len(ops)) if tt > 0 else 2 * k
                slots.setdefault(p, []).append(o)
            for fr in range(NF):
                c = TL[fr // 2]; mat = fr & 1
                b = WB + 4 * (fi % NB)
                A.wait_lg(("F", fi))
                for i in range(4):
                    hb = HB + 16 * (tt % 3) + 4 * i
                    if fr == 0: A.wait_vm(("H", tt, i))
                    cc = "0" if tt == 0 else acc(i, c, mat)
                    I(f"v_mfma_f32_16x16x32_bf16 {acc(i,c,mat)}, v[{b}:{b+3}], v[{hb}:{hb+3}], {cc}")
                    if i == 0: rd(fi + PD)
                    for o in slots.get(4 * fr + i, []):
                        if o[0] == "W": dma_piece(o[1], o[2])
                        else: hload(o[1], o[2])
                if fr == mid:
                    assert A.vmq.count(("W", tt + 1 if tt < G0 - 1 else 17)) == 3
                    A.wait_vm(("W", tt + 1 if tt < G0 - 1 else 17))
                    I("s_barrier")
                    dl = SLOT if (tt % NSLOT) < NSLOT - 1 else -(NSLOT - 1) * SLOT
                    for m in range(4): I(f"v_add_u32 v{vA[(tt+1) & 1][m]}, {dl}, v{vA[tt & 1][m]}")
                if fr == 1 and tt == 12: stats_load(0)
                if fr == 0 and tt == 14: stats_math(0); stats_load(1)
                fi += 1
        hloads(17)
        stats_math(1)
        for m in range(4): I(f"v_add_u32 v{vA[1 - (G0 & 1)][m]}, {2*SLOT}, v{vA[G0 & 1][m]}")
        I("s_mov_b32 s49, 0xbfb8aa3b")
        I("s_lshr_b32 s56, s34, 1"); I("s_mul_i32 s56, s56, 9"); I("s_and_b32 s58, s34, 1")
        I("s_lshl_b32 s59, s58, 2"); I("s_add_u32 s59, s59, s56"); I("s_lshl_b32 s59, s59, 10")
        I("s_add_u32 s56, s56, 8"); I("s_lshl_b32 s56, s56, 10"); I("s_lshl_b32 s58, s58, 3"); I("s_add_u32 s56, s56, s58")
        vcs = T0
        I(f"v_lshrrev_b32 v{vcs}, 8, v{vL16}"); I(f"v_lshlrev_b32 v{vcs}, 4, v{vcs}"); I(f"v_add_u32 v{vcs}, {LCS}, v{vcs}")
        for i in range(4):
            I(f"s_add_u32 s{84+i}, s35, {i}"); I(f"s_mul_i32 s{84+i}, s{84+i}, 147456"); I(f"s_add_u32 s{84+i}, s{84+i}, {ACT}")
        def epi_ops(c):
            L = []
            L.append(lambda: (I(f"ds_read_b128 v[{CSR}:{CSR+3}], v{vcs} offset:{64*c}", tag=("CS", c)),
                              I(f"ds_read_b128 v[{CSR+4}:{CSR+7}], v{vcs} offset:{576 + 64*c}", tag=("CS", c))))
            for i in range(4):
                k = accb(i, c, 0); g = k; u = k + 4
                nm, c1, k2 = vR + 2 * i, vR + 2 * i + 1, vK[i]
                if i == 0: L.append(lambda: A.wait_lg(("CS", c)))
                for r in range(8): L.append(f"v_fmac_f32 v{k+r}, v{nm}, v{CSR+r}")
                for r in range(4): L.append(f"v_mul_f32 v{u+r}, v{g+r}, v{u+r}")
                for r in range(4): L.append(f"v_mul_f32 v{g+r}, v{c1}, v{g+r}")
                for r in range(4): L.append(f"v_exp_f32 v{g+r}, v{g+r}")
                for r in range(4): L.append(f"v_fma_f32 v{g+r}, v{g+r}, v{k2}, v{k2}")
                for r in range(4): L.append(f"v_rcp_f32 v{g+r}, v{g+r}")
                for r in range(4): L.append(f"v_mul_f32 v{u+r}, v{u+r}, v{g+r}")
                if c == 8:
                    for r in range(2): L.append(f"v_cvt_pk_bf16_f32 v{k+r}, v{u+2*r}, v{u+2*r+1}")
                    L.append(f"s_add_u32 s57, s56, s{84+i}")
                    L.append(f"buffer_store_dwordx2 v[{k}:{k+1}], v{vL16}, s[16:19], s57 offen {STF8}")
                else:
                    kp = k if (c & 1) == 0 else k - 8
                    for r in range(2): L.append(f"v_cvt_pk_bf16_f32 v{kp + 2*(c & 1) + r}, v{u+2*r}, v{u+2*r+1}")
                    if c & 1:
                        L.append(f"s_add_u32 s57, s59, s{84+i}")
                        L.append(f"buffer_store_dwordx4 v[{kp}:{kp+3}], v{vL16}, s[16:19], s57 offen offset:{1024*(c >> 1)} {STF}")
            return L
        def emit(o):
            if callable(o): o()
            else: I(o)
        pend = []
        for ci, c in enumerate(TL):
            nmf = 24; done = 0; tot = len(pend)
            for tt in range(G0, 18):
                for mat in range(2):
                    b = WB + 4 * (fi % NB)
                    A.wait_lg(("F", fi))
                    for i in range(4):
                        hb = HB + 16 * (tt % 3) + 4 * i
                        if ci == 0 and mat == 0: A.wait_vm(("H", tt, i))
                        I(f"v_mfma_f32_16x16x32_bf16 {acc(i,c,mat)}, v[{b}:{b+3}], v[{hb}:{hb+3}], {acc(i,c,mat)}")
                        if i == 0: rd(fi + PD)
                        done += 1
                        while pend and (tot - len(pend)) < tot * done // nmf: emit(pend.pop(0))
                    fi += 1
            while pend: emit(pend.pop(0))
            pend = epi_ops(c)
            if ci == int(os.environ.get('K3PFCI', '0')):
                I("s_lshr_b32 s46, s2, 3"); I("s_lshl_b32 s46, s46, 3"); I("s_add_u32 s46, s46, s30"); I("s_mul_i32 s46, s46, 23")
                I(f"v_lshrrev_b32 v{T0+2}, 4, v{vL16}"); I(f"v_add_u32 v{T0+2}, s46, v{T0+2}")
                I(f"v_min_u32 v{T0+2}, 5759, v{T0+2}")
                I("s_mov_b32 s48, 0xCCCD")
                I(f"v_mul_lo_u32 v{T0+1}, v{T0+2}, s48"); I(f"v_lshrrev_b32 v{T0+1}, 18, v{T0+1}")
                I(f"v_lshlrev_b32 v{T0+2}, 7, v{T0+2}")
                I(f"v_mul_u32_u24 v{T0+1}, 512, v{T0+1}"); I(f"v_add_u32 v{T0+2}, v{T0+2}, v{T0+1}")
                I("s_lshr_b32 s48, s31, 1"); I(f"s_mul_i32 s48, s48, {1152*1152}"); I("s_and_b32 s46, s31, 1"); I("s_lshl_b32 s46, s46, 9"); I("s_add_u32 s48, s48, s46")
                I("s_mov_b32 s24, s92"); I("s_mov_b32 s25, s93"); I("s_mov_b32 s26, 0x%x" % (D*F*2)); I("s_mov_b32 s27, 0x20000")
                I("s_mov_b32 exec_hi, 0"); I("s_mov_b32 exec_lo, 0x7fffff")
                I(f"buffer_load_dword v{T0+1}, v{T0+2}, s[24:27], s48 offen", tag="PF")
                if os.environ.get("K3SLAB", "0") == "1":
                    I("s_mov_b64 exec, -1")
                    I("s_lshl_b32 s46, s2, 3"); I("s_add_u32 s46, s46, s30"); I("s_mul_i32 s46, s46, 4608"); I(f"s_add_u32 s46, s46, {SLAB}")
                    I(f"v_lshlrev_b32 v{T0+2}, 3, v{vL16}")
                    I("s_mov_b32 exec_hi, 0xf")
                    I(f"buffer_load_dword v{T0+1}, v{T0+2}, s[16:19], s46 offen", tag="PF")
                I("s_mov_b64 exec, -1")
        stamp(2)
        while pend: emit(pend.pop(0))
        if prof:
            I("s_waitcnt vmcnt(0)")
            stamp(3)
            I("s_lshl_b32 s96, s2, 3"); I("s_add_u32 s96, s96, s30"); I("s_lshl_b32 s96, s96, 7"); I(f"s_add_u32 s96, s96, {PROF}")
            for k in range(16): I(f"v_mov_b32 v{k}, s{60+k}")
            I("v_mov_b32 v32, 0")
            for k in range(4): I(f"buffer_store_dwordx4 v[{4*k}:{4*k+3}], v32, s[16:19], s96 offen offset:{16*k}")
        if ch == 0: I("s_endpgm")
    A.label(f"L{name}_end")
    I("s_endpgm")
    launch = f"; @launch kernel={name} grid=(256,1,1) block=(512,1,1) lds={LDS_BYTES}"
    return launch, A.text(), kernel_desc(name, 256)
```

```python
from asmlib import *
from layout import *
import os
BAR2 = int(os.environ.get('K4BAR2', '0'))

def gen_k4c(name="k4_kernel", prof=False, exp=""):
    A = Asm(); I = A.i
    PROF = 203 * MB
    SLOT = 24576; UOFF = 12288; NSLOT = 6
    LDS_BYTES = SLOT * NSLOT
    PD = 4; NB = 6
    HD = 6
    AB = 72; WB = 120
    vA = [[144, 145, 146, 147], [148, 149, 150, 151]]
    vD = [152, 153, 154]
    vL16 = 207
    T0 = 208
    A.raw(kernel_header(name))
    def stamp(i):
        if prof:
            I(f"s_memtime s[{60+4*i}:{61+4*i}]"); I(f"s_memrealtime s[{62+4*i}:{63+4*i}]"); I("s_waitcnt lgkmcnt(0)")
    I("s_cmp_ge_u32 s2, 256")
    I(f"s_cbranch_scc1 L{name}_end")
    stamp(0)
    I("s_load_dwordx2 s[4:5], s[0:1], 48")
    I("s_load_dwordx4 s[20:23], s[0:1], 56")
    I("s_load_dwordx2 s[24:25], s[0:1], 72")
    lane = T0
    I(f"v_lshrrev_b32 v{T0+1}, 6, v0")
    I(f"v_readfirstlane_b32 s30, v{T0+1}")
    I(f"v_and_b32 v{lane}, 63, v0")
    I("s_and_b32 s31, s2, 7"); I("s_lshr_b32 s32, s2, 3")
    I("s_lshr_b32 s33, s31, 1")
    I("s_and_b32 s34, s31, 1"); I("s_lshl_b32 s34, s34, 1"); I("s_and_b32 s36, s32, 1"); I("s_add_u32 s34, s34, s36")
    I("s_lshr_b32 s32, s32, 1")
    I("s_and_b32 s41, s30, 3"); I("s_lshr_b32 s39, s30, 2")
    I("s_lshl_b32 s35, s32, 3"); I("s_lshl_b32 s36, s41, 1"); I("s_add_u32 s35, s35, s36")
    I(f"v_lshlrev_b32 v{vL16}, 4, v{lane}")
    I("s_mov_b32 s36, 0xAAAB")
    for x in range(3):
        q, rw, p, t = T0+2, T0+3, T0+4, T0+5
        I(f"v_add_u32 v{q}, {64*x}, v{lane}")
        I(f"v_mul_lo_u32 v{rw}, v{q}, s36")
        I(f"v_lshrrev_b32 v{rw}, 20, v{rw}")
        I(f"v_mul_u32_u24 v{t}, 24, v{rw}")
        I(f"v_sub_u32 v{p}, v{q}, v{t}")
        I(f"v_and_b32 v{t}, 6, v{rw}")
        I(f"v_xor_b32 v{p}, v{p}, v{t}")
        I(f"v_mul_u32_u24 v{t}, 1152, v{rw}")
        I(f"v_lshl_add_u32 v{vD[x]}, v{p}, 4, v{t}")
    I("s_mul_i32 s40, s33, 1152"); I("s_mul_i32 s42, s39, 576"); I("s_add_u32 s40, s40, s42")
    I("s_lshl_b32 s42, s41, 3"); I("s_add_u32 s40, s40, s42")
    I("s_mul_i32 s40, s40, 1152")
    I("s_lshr_b32 s45, s41, 1"); I(f"s_mul_i32 s45, s45, {128*1152}")
    I("s_lshl_b32 s42, s34, 8"); I("s_add_u32 s40, s40, s42")
    I("s_mul_i32 s43, s41, 3072")
    I(f"s_mul_i32 s44, s39, {UOFF}"); I("s_add_u32 s43, s43, s44")
    I("s_mul_i32 s46, s33, 36"); I("s_mul_i32 s47, s39, 18"); I("s_add_u32 s46, s46, s47")
    for i in range(2):
        I(f"s_add_u32 s{52+i}, s35, {i}")
        I(f"s_mul_i32 s{52+i}, s{52+i}, 144")
        I(f"s_add_u32 s{52+i}, s{52+i}, s46")
        I(f"s_lshl_b32 s{52+i}, s{52+i}, 10")
        I(f"s_add_u32 s{52+i}, s{52+i}, {ACT}")
    I("s_waitcnt lgkmcnt(0)")
    I("s_mov_b32 s8, s4"); I("s_mov_b32 s9, s5"); I(f"s_mov_b32 s10, {D*F*2}"); I("s_mov_b32 s11, 0x20000")
    I("s_mov_b32 s16, s24"); I("s_mov_b32 s17, s25"); I(f"s_mov_b32 s18, {WS_BYTES}"); I("s_mov_b32 s19, 0x20000")
    def dma_piece(u, x):
        I(f"s_add_u32 m0, s43, {1024*x + (u % NSLOT)*SLOT}")
        sp = u // 9; v = u % 9
        row = 288 * sp + (32 * v if v < 4 else (144 + 32 * (v - 4) if v < 8 else 128))
        if x == 0:
            I(f"s_add_u32 s37, s40, {row*1152}")
            if v == 8: I("s_add_u32 s37, s37, s45")
        I(f"buffer_load_dwordx4 v{vD[x]}, s[8:11], s37 offen lds", tag=("W", u))
    def dma_unit(u):
        for x in range(3): dma_piece(u, x)
    def aload(t):
        for i in range(2):
            b = AB + 8 * (t % HD) + 4 * i
            I(f"buffer_load_dwordx4 v[{b}:{b+3}], v{vL16}, s[16:19], s{52+i} offen", tag=("H", t, i))
            I(f"s_add_u32 s{52+i}, s{52+i}, 1024")
    dma_unit(0); aload(0); dma_unit(1); aload(1)
    if BAR2: dma_unit(2)
    I("s_mov_b32 s12, s20"); I("s_mov_b32 s13, s21"); I(f"s_mov_b32 s14, {S*D*2}"); I("s_mov_b32 s15, 0x20000")
    rowv, f, c4, t = T0+2, T0+3, T0+4, T0+5
    I(f"v_lshrrev_b32 v{rowv}, 2, v{lane}")
    I(f"v_bfe_u32 v{f}, v{lane}, 3, 2")
    I(f"v_and_b32 v{c4}, 3, v{lane}")
    I(f"v_mul_u32_u24 v{rowv}, 384, v{rowv}")
    I(f"v_lshl_add_u32 v{rowv}, v{c4}, 3, v{rowv}")
    I(f"s_mul_i32 s38, s39, {UOFF}")
    I(f"v_add_u32 v{rowv}, s38, v{rowv}")
    for m in range(4):
        I(f"s_add_u32 s38, s34, {m}")
        I(f"v_xor_b32 v{t}, s38, v{f}")
        I(f"v_lshl_add_u32 v{vA[0][m]}, v{t}, 5, v{rowv}")
    A.wait_vm(("W", 0))
    I("s_barrier")
    def acc(i, c):
        k = (i * 9 + c) * 4
        return f"v[{k}:{k+3}]"
    def rd(fi):
        tt = fi // 9; c = fi % 9
        if tt >= 18: return
        b = WB + 4 * (fi % NB)
        for x in range(2):
            I(f"ds_read_b64_tr_b16 v[{b+2*x}:{b+2*x+1}], v{vA[tt & 1][c & 3]} offset:{128*(c >> 2) + x*6144}", tag=("F", fi))
    for fi in range(PD): rd(fi)
    stamp(1)
    def aload1(t, i):
        b = AB + 8 * (t % HD) + 4 * i
        I(f"buffer_load_dwordx4 v[{b}:{b+3}], v{vL16}, s[16:19], s{52+i} offen", tag=("H", t, i))
        I(f"s_add_u32 s{52+i}, s{52+i}, 1024")
    nextW = 3 if BAR2 else 2; nextA = 2
    for tt in range(18):
        wl = []
        lim = tt + 4 if not BAR2 else max(5, ((tt - 1) // 2) * 2 + 5)
        while nextW <= min(17, lim) and len(wl) < (2 if (tt < 3 or BAR2) else 1): wl.append(nextW); nextW += 1
        al = []
        while nextA <= min(17, tt + 5) and len(al) < (2 if tt < 4 else 1): al.append(nextA); nextA += 1
        wp = [("W", u, x) for u in wl for x in range(3)]
        hp = [("H", t_, i_) for t_ in al for i_ in range(2)]
        ops = []
        while wp or hp:
            if wp: ops.append(wp.pop(0))
            if hp: ops.append(hp.pop(0))
        slots = {}
        for k, o in enumerate(ops):
            slots.setdefault(int((k + 0.5) * 18 / len(ops)), []).append(o)
        for c in range(9):
            fi = tt * 9 + c
            b = WB + 4 * (fi % NB)
            A.wait_lg(("F", fi))
            for i in range(2):
                hb = AB + 8 * (tt % HD) + 4 * i
                if c == 0: A.wait_vm(("H", tt, i))
                cc = "0" if tt == 0 else acc(i, c)
                I(f"v_mfma_f32_16x16x32_bf16 {acc(i,c)}, v[{b}:{b+3}], v[{hb}:{hb+3}], {cc}")
                if i == 0: rd(fi + PD)
                for o in slots.get(2 * c + i, []):
                    if o[0] == "W": dma_piece(o[1], o[2])
                    else: aload1(o[1], o[2])
            if c == 3 and tt < 17:
                if not BAR2:
                    assert A.vmq.count(("W", tt + 1)) == 3
                    A.wait_vm(("W", tt + 1))
                    I("s_barrier")
                elif tt % 2 == 0:
                    assert A.vmq.count(("W", min(17, tt + 2))) == 3
                    A.wait_vm(("W", min(17, tt + 2)))
                    I("s_barrier")
                dl = SLOT if (tt % NSLOT) < NSLOT - 1 else -(NSLOT - 1) * SLOT
                for m in range(4): I(f"v_add_u32 v{vA[(tt+1) & 1][m]}, {dl}, v{vA[tt & 1][m]}")
    stamp(2)
    I("s_barrier")
    I(f"s_mul_i32 s46, s30, 9216")
    I(f"v_add_u32 v{T0+1}, s46, v{vL16}")
    I("s_xor_b32 s47, s30, 4"); I(f"s_mul_i32 s47, s47, 9216")
    I(f"v_add_u32 v{T0+2}, s47, v{vL16}")
    I("s_cmp_eq_u32 s39, 0")
    I(f"s_cbranch_scc1 L{name}_kh0")
    for c in range(9): I(f"ds_write_b128 v{T0+1}, v[{4*c}:{4*c+3}] offset:{1024*c}")
    A.flush_hazards()
    for k in range(36): I(f"v_mov_b32 v{k}, v{36+k}")
    I(f"s_branch L{name}_khj")
    A.label(f"L{name}_kh0")
    for c in range(9): I(f"ds_write_b128 v{T0+1}, v[{36+4*c}:{36+4*c+3}] offset:{1024*c}")
    A.label(f"L{name}_khj")
    I("s_waitcnt lgkmcnt(0)")
    I("s_barrier")
    for c in range(9): I(f"ds_read_b128 v[{36+4*c}:{36+4*c+3}], v{T0+2} offset:{1024*c}", tag=("X", c))
    I("s_lshl_b32 s46, s32, 2"); I("s_add_u32 s46, s46, s34")
    I("s_lshl_b32 s47, s46, 3"); I("s_add_u32 s47, s47, s30"); I("s_mul_i32 s47, s47, 4608"); I(f"s_add_u32 s47, s47, {SLAB}")
    I(f"s_mul_i32 s48, s33, {64*8*4608}"); I("s_add_u32 s48, s48, s47")
    I("s_sub_u32 s54, s33, s30"); I("s_and_b32 s54, s54, 3")
    I("s_add_u32 s49, s35, s39"); I("s_mul_i32 s49, s49, 36"); I("s_mul_i32 s50, s34, 9"); I("s_add_u32 s49, s49, s50")
    I("s_lshl_b32 s49, s49, 9"); I(f"s_add_u32 s49, s49, {H4}")
    I(f"v_lshrrev_b32 v{T0+3}, 1, v{vL16}")
    HR = 72; PK = 92
    n = [0]
    order = [0, 4, 1, 5, 2, 6, 3, 7, 8]
    for c in order:
        A.wait_lg(("X", c))
        for r in range(4): I(f"v_add_f32 v{4*c+r}, v{4*c+r}, v{36+4*c+r}")
        if c < 4: continue
        q = c & 3
        n[0] += 1
        I(f"s_cmp_eq_u32 s54, {q}")
        I(f"s_cbranch_scc1 L{name}_own{n[0]}")
        if c < 8:
            p = PK + 4 * q
            for h_, cc in enumerate((q, q + 4)):
                I(f"v_cvt_pk_bf16_f32 v{p+2*h_}, v{4*cc}, v{4*cc+1}"); I(f"v_cvt_pk_bf16_f32 v{p+2*h_+1}, v{4*cc+2}, v{4*cc+3}")
            I(f"buffer_store_dwordx4 v[{p}:{p+3}], v{vL16}, s[16:19], s48 offen offset:{1024*q} sc1")
        else:
            p = PK + 16
            I(f"v_cvt_pk_bf16_f32 v{p}, v32, v33"); I(f"v_cvt_pk_bf16_f32 v{p+1}, v34, v35")
            I(f"s_add_u32 s50, s48, 4096")
            I(f"buffer_store_dwordx2 v[{p}:{p+1}], v{T0+3}, s[16:19], s50 offen sc1")
        I(f"s_branch L{name}_ownj{n[0]}")
        A.label(f"L{name}_own{n[0]}")
        for cc in ((q, q + 4) if c < 8 else (8,)):
            I(f"s_add_u32 s50, s49, {512*cc}")
            I(f"buffer_load_dwordx2 v[{HR+2*cc}:{HR+2*cc+1}], v{T0+3}, s[16:19], s50 offen")
        A.label(f"L{name}_ownj{n[0]}")
    I(f"v_lshrrev_b32 v200, 4, v{vL16}")
    I(f"v_and_b32 v201, 15, v200"); I(f"v_lshrrev_b32 v200, 4, v200")
    I(f"v_mul_u32_u24 v201, 1152, v201"); I(f"v_lshl_add_u32 v201, v200, 3, v201")
    I("s_add_u32 s49, s35, s39"); I(f"s_mul_i32 s49, s49, {16*1152}"); I("s_mul_i32 s50, s34, 288"); I("s_add_u32 s49, s49, s50")
    stamp(3)
    I("s_waitcnt vmcnt(0)")
    stamp(4)
    I("s_barrier")
    I("s_cmp_lg_u32 s30, 0")
    I(f"s_cbranch_scc1 L{name}_noat")
    I("s_lshl_b32 s50, s46, 7"); I(f"s_add_u32 s50, s50, {FLG}")
    I("s_lshl_b32 s51, s33, 2")
    I(f"v_mov_b32 v{T0+4}, s51"); I(f"v_mov_b32 v{T0+5}, 1"); I(f"v_mov_b32 v{T0+6}, 0")
    I("s_mov_b64 exec, 1")
    I(f"buffer_store_dword v{T0+5}, v{T0+4}, s[16:19], s50 offen sc1")
    A.label(f"L{name}_poll")
    I(f"buffer_load_dwordx4 v[196:199], v{T0+6}, s[16:19], s50 offen sc1")
    I("s_waitcnt vmcnt(0)")
    I("v_and_b32 v196, v196, v197"); I("v_and_b32 v198, v198, v199"); I("v_and_b32 v196, v196, v198")
    I(f"v_readfirstlane_b32 s51, v196")
    I("s_cmp_lg_u32 s51, 1")
    I(f"s_cbranch_scc1 L{name}_poll")
    I("s_mov_b64 exec, -1")
    A.label(f"L{name}_noat")
    I("s_barrier")
    stamp(5)
    LB = 112
    I("s_lshl_b32 s55, s54, 10")
    for d in range(1, 4):
        I(f"s_add_u32 s50, s33, {d}"); I("s_and_b32 s50, s50, 3"); I(f"s_mul_i32 s50, s50, {64*8*4608}"); I("s_add_u32 s50, s50, s47")
        I(f"s_add_u32 s{55+d}, s50, 4096")
        I("s_add_u32 s50, s50, s55")
        I(f"buffer_load_dwordx4 v[{LB+4*(d-1)}:{LB+4*(d-1)+3}], v{vL16}, s[16:19], s50 offen sc1")
    I("s_cmp_lg_u32 s54, 0")
    I(f"s_cbranch_scc1 L{name}_no8")
    for d in range(1, 4):
        I(f"buffer_load_dwordx2 v[{LB+12+2*(d-1)}:{LB+13+2*(d-1)}], v{T0+3}, s[16:19], s{55+d} offen sc1")
    A.label(f"L{name}_no8")
    I("s_waitcnt vmcnt(0)")
    stamp(6)
    def addbf(c, src):
        I(f"v_lshlrev_b32 v202, 16, v{src}"); I(f"v_and_b32 v203, 0xffff0000, v{src}")
        I(f"v_lshlrev_b32 v204, 16, v{src+1}"); I(f"v_and_b32 v205, 0xffff0000, v{src+1}")
        for r in range(4): I(f"v_add_f32 v{4*c+r}, v{4*c+r}, v{202+r}")
    def fin(c):
        addbf(c, HR + 2 * c)
        I(f"v_cvt_pk_bf16_f32 v{4*c}, v{4*c}, v{4*c+1}"); I(f"v_cvt_pk_bf16_f32 v{4*c+1}, v{4*c+2}, v{4*c+3}")
        I(f"buffer_store_dwordx2 v[{4*c}:{4*c+1}], v201, s[12:15], s49 offen offset:{32*c}")
    for q in range(4):
        n[0] += 1
        I(f"s_cmp_lg_u32 s54, {q}")
        I(f"s_cbranch_scc1 L{name}_sk{n[0]}")
        for h_, cc in enumerate((q, q + 4)):
            for d in range(3): addbf(cc, LB + 4 * d + 2 * h_)
            fin(cc)
        if q == 0:
            for d in range(3): addbf(8, LB + 12 + 2 * d)
            fin(8)
        A.label(f"L{name}_sk{n[0]}")
    if prof:
        I("s_waitcnt vmcnt(0)")
        stamp(7)
        I("s_lshl_b32 s96, s2, 3"); I("s_add_u32 s96, s96, s30"); I("s_lshl_b32 s96, s96, 7"); I(f"s_add_u32 s96, s96, {PROF}")
        for k in range(32): I(f"v_mov_b32 v{k}, s{60+k}")
        I("v_mov_b32 v32, 0")
        for k in range(8): I(f"buffer_store_dwordx4 v[{4*k}:{4*k+3}], v32, s[16:19], s96 offen offset:{16*k}")
    A.label(f"L{name}_end")
    I("s_endpgm")
    launch = f"; @launch kernel={name} grid=(256,1,1) block=(512,1,1) lds={LDS_BYTES}"
    return launch, A.text(), kernel_desc(name, 216)
```

```python
import os
S, D, H, DH, F = 2048, 576, 32, 18, 4608
MB = 1 << 20
PQF  = 0
HF   = 2359296
KVP  = 2 * 2359296
KVZ  = KVP + 737280
SLAB = 0 if os.environ.get("SLABHOT", "0") == "1" else 40 * MB
H4   = 10 * MB
ST   = 13 * MB
CS   = 13 * MB + 512 * 1024
FLG  = 13 * MB + 768 * 1024
FL2  = 13 * MB + 832 * 1024
ACT  = 14 * MB
WS_BYTES = 268435456
AFL  = 13 * MB + 896 * 1024
```

```python
from asmlib import *
from layout import *

import os
STF = os.environ.get("K3STF", "sc1")
STF8 = ""
def gen_k3f(name="k3_kernel", prof=False, exp=""):
    A = Asm(); I = A.i
    PROF = (200 + 2) * MB
    SLOT = 24576; UOFF = 12288; NSLOT = 6
    LCS = SLOT * NSLOT
    LDS_BYTES = LCS + 1152
    PD = 3; NB = 4
    HB = 160
    WB = 208
    CSR = 224
    vA = [[232, 233, 234, 235], [236, 237, 238, 239]]
    vD = [240, 241, 242]
    vL16 = 243
    vR = 244
    T0 = 252
    A.raw(kernel_header(name))
    def stamp(i):
        if prof:
            I(f"s_memtime s[{60+4*i}:{61+4*i}]"); I(f"s_memrealtime s[{62+4*i}:{63+4*i}]"); I("s_waitcnt lgkmcnt(0)")
    I("s_cmp_ge_u32 s2, 256")
    I(f"s_cbranch_scc1 L{name}_end")
    stamp(0)
    I("s_load_dwordx4 s[4:7], s[0:1], 32")
    I("s_load_dwordx2 s[24:25], s[0:1], 72")
    I("s_load_dwordx2 s[92:93], s[0:1], 48")
    lane = 100
    I(f"v_lshrrev_b32 v{101}, 6, v0")
    I(f"v_readfirstlane_b32 s30, v{101}")
    I(f"v_and_b32 v{lane}, 63, v0")
    I("s_and_b32 s31, s2, 7"); I("s_lshr_b32 s32, s2, 3"); I("s_and_b32 s33, s32, 7"); I("s_lshr_b32 s32, s32, 3")
    I("s_lshl_b32 s34, s31, 2"); I("s_add_u32 s34, s34, s32")
    I("s_and_b32 s41, s30, 3")
    I("s_lshl_b32 s35, s33, 4"); I("s_lshl_b32 s36, s41, 2"); I("s_add_u32 s35, s35, s36")
    I(f"v_lshlrev_b32 v{vL16}, 4, v{lane}")
    I("s_mov_b32 s36, 0xAAAB")
    for x in range(3):
        q, rw, p, t = 102, 103, 104, 105
        I(f"v_add_u32 v{q}, {64*x}, v{lane}")
        I(f"v_mul_lo_u32 v{rw}, v{q}, s36")
        I(f"v_lshrrev_b32 v{rw}, 20, v{rw}")
        I(f"v_mul_u32_u24 v{t}, 24, v{rw}")
        I(f"v_sub_u32 v{p}, v{q}, v{t}")
        I(f"v_and_b32 v{t}, 6, v{rw}")
        I(f"v_xor_b32 v{p}, v{p}, v{t}")
        I(f"v_mul_u32_u24 v{t}, 9216, v{rw}")
        I(f"v_lshl_add_u32 v{vD[x]}, v{p}, 4, v{t}")
    rowv, f, c4, t = 102, 103, 104, 105
    I(f"v_lshrrev_b32 v{rowv}, 2, v{lane}")
    I(f"v_bfe_u32 v{f}, v{lane}, 3, 2")
    I(f"v_and_b32 v{c4}, 3, v{lane}")
    I(f"v_mul_u32_u24 v{rowv}, 384, v{rowv}")
    I(f"v_lshl_add_u32 v{rowv}, v{c4}, 3, v{rowv}")
    I("s_and_b32 s37, s34, 3")
    for m in range(4):
        I(f"s_add_u32 s38, s37, {m}")
        I(f"v_xor_b32 v{t}, s38, v{f}")
        I(f"v_lshl_add_u32 v{vA[0][m]}, v{t}, 5, v{rowv}")
    I("s_waitcnt lgkmcnt(0)")
    I("s_cmp_lt_u32 s30, 4")
    I("s_cselect_b32 s8, s4, s6"); I("s_cselect_b32 s9, s5, s7")
    I(f"s_mov_b32 s10, {D*F*2}"); I("s_mov_b32 s11, 0x20000")
    I("s_mov_b32 s16, s24"); I("s_mov_b32 s17, s25"); I(f"s_mov_b32 s18, {WS_BYTES}"); I("s_mov_b32 s19, 0x20000")
    I("s_mul_i32 s40, s34, 288"); I("s_and_b32 s40, s40, 0xffffff80")
    I(f"s_mul_i32 s42, s41, {8*9216}"); I("s_add_u32 s40, s40, s42")
    I("s_mul_i32 s43, s41, 3072")
    I("s_cmp_lt_u32 s30, 4"); I(f"s_cselect_b32 s44, 0, {UOFF}"); I("s_add_u32 s43, s43, s44")
    def dma_piece(u, x):
        if 'nodma' in exp and u >= 2:
            A.vmq.append(("W", u)); A.vmdone = len(A.vmq) if A.vmdone >= len(A.vmq) - 1 else A.vmdone; return
        I(f"s_add_u32 m0, s43, {1024*x + (u % NSLOT)*SLOT}")
        I(f"buffer_load_dwordx4 v{vD[x]}, s[8:11], s40 offen lds", tag=("W", u))
        if x == 2:
            I(f"s_add_u32 s40, s40, {32*9216}")
    def hload(t, i):
        if 'nohl' in exp and t >= 3:
            A.vmq.append(("H", t, i)); return
        b = HB + 16 * (t % 3) + 4 * i
        I(f"buffer_load_dwordx4 v[{b}:{b+3}], v{vL16}, s[16:19], s{52+i} offen", tag=("H", t, i))
        I(f"s_add_u32 s{52+i}, s{52+i}, 1024")
    for i in range(4):
        I(f"s_add_u32 s{52+i}, s35, {i}")
        I(f"s_mul_i32 s{52+i}, s{52+i}, {18*1024}")
        I(f"s_add_u32 s{52+i}, s{52+i}, {HF}")
    def dma_unit(u):
        for x in range(3): dma_piece(u, x)
    def hloads(t):
        for i in range(4): hload(t, i)
    dma_unit(0); hloads(0)
    I("s_cmp_lg_u32 s41, 0")
    I(f"s_cbranch_scc1 L{name}_nocs")
    I("s_mul_i32 s47, s34, 576")
    I("s_lshr_b32 s46, s30, 2")
    I(f"s_mul_i32 s48, s46, {4608*4}")
    I("s_add_u32 s47, s47, s48")
    I(f"s_add_u32 s47, s47, {CS}")
    I("s_mul_i32 s46, s46, 576")
    I(f"s_add_u32 m0, s46, {LCS}")
    I("s_mov_b32 exec_hi, 0xf")
    A.raw(f"    buffer_load_dwordx4 v{vL16}, s[16:19], s47 offen lds")
    I("s_mov_b64 exec, -1")
    A.label(f"L{name}_nocs")
    A.wait_vm(("W", 0))
    I("s_barrier")
    I("s_cmp_ge_u32 s30, 4")
    I(f"s_cbranch_scc1 L{name}_half1")
    saved = (list(A.vmq), A.vmdone, list(A.lgq), A.lgdone)
    G0 = 15
    for ch in range(2):
        if ch == 1:
            A.label(f"L{name}_half1")
            A.vmq, A.vmdone, A.lgq, A.lgdone = list(saved[0]), saved[1], list(saved[2]), saved[3]
            A.hist = []
        TL = [0, 1, 2, 3, 8] if ch == 0 else [4, 5, 6, 7]
        nc = len(TL); NF = 2 * nc
        vK = [vD[0], vD[1], vD[2], T0 + 3]
        def accb(i, c, mat): return (i * NF + TL.index(c) * 2 + mat) * 4
        def acc(i, c, mat):
            k = accb(i, c, mat); return f"v[{k}:{k+3}]"
        seq = [(tt, TL[fr // 2], fr & 1) for tt in range(G0) for fr in range(NF)]
        seq += [(tt, c, mat) for c in TL for tt in range(G0, 18) for mat in range(2)]
        def rd(fi):
            if fi >= len(seq): return
            tt, c, mat = seq[fi]
            b = WB + 4 * (fi % NB)
            if tt < G0: va = vA[tt & 1][c & 3]; so = 0
            elif tt < 17: va = vA[G0 & 1][c & 3]; so = (tt - G0) * SLOT
            else: va = vA[1 - (G0 & 1)][c & 3]; so = 0
            for x in range(2):
                I(f"ds_read_b64_tr_b16 v[{b+2*x}:{b+2*x+1}], v{va} offset:{so + 128*(c >> 2) + x*6144 + mat*UOFF}", tag=("F", fi))
        def stats_load(h_):
            I(f"v_lshrrev_b32 v{T0+1}, 1, v{vL16}")
            I(f"s_mul_i32 s47, s35, 768"); I(f"s_add_u32 s47, s47, {ST}")
            for k in range(8): I(f"v_mov_b32 v{CSR+k}, 0")
            for i in range(2):
                I(f"buffer_load_dwordx2 v[{CSR+4*i}:{CSR+4*i+1}], v{T0+1}, s[16:19], s47 offen offset:{768*(2*h_+i)}", tag=("ST", h_))
            I("s_mov_b32 exec_hi, 0")
            for i in range(2):
                I(f"buffer_load_dwordx2 v[{CSR+4*i+2}:{CSR+4*i+3}], v{T0+1}, s[16:19], s47 offen offset:{768*(2*h_+i)+512}", tag=("ST", h_))
            I("s_mov_b64 exec, -1")
        def stats_math(h_):
            A.wait_vm(("ST", h_))
            I(f"s_mov_b32 s49, 0x3AE38E39")
            q = CSR
            for i in range(2):
                I(f"v_add_f32 v{q+4*i}, v{q+4*i}, v{q+4*i+2}"); I(f"v_add_f32 v{q+4*i+1}, v{q+4*i+1}, v{q+4*i+3}")
            for op in ("v_permlane16_swap_b32", "v_permlane32_swap_b32"):
                for i in range(2):
                    I(f"v_mov_b32 v{q+4*i+2}, v{q+4*i}"); I(f"v_mov_b32 v{q+4*i+3}, v{q+4*i+1}")
                for i in range(2):
                    I(f"{op} v{q+4*i}, v{q+4*i+2}"); I(f"{op} v{q+4*i+1}, v{q+4*i+3}")
                I("s_nop 1")
                for i in range(2):
                    I(f"v_add_f32 v{q+4*i}, v{q+4*i}, v{q+4*i+2}"); I(f"v_add_f32 v{q+4*i+1}, v{q+4*i+1}, v{q+4*i+3}")
            for i in range(2):
                m_, e_ = q + 4 * i, q + 4 * i + 1; r = vR + 2 * (2 * h_ + i); k2 = vK[2 * h_ + i]
                I(f"v_mul_f32 v{m_}, s49, v{m_}"); I(f"v_mul_f32 v{e_}, s49, v{e_}")
                I(f"v_fma_f32 v{e_}, -v{m_}, v{m_}, v{e_}")
                I(f"v_max_f32 v{e_}, 0, v{e_}")
                I(f"v_add_f32 v{k2}, 0x3727c5ac, v{e_}")
                I(f"v_rsq_f32 v{r+1}, v{k2}")
                I(f"v_sub_f32 v{r}, 0, v{m_}")
                I(f"v_mul_f32 v{r+1}, 0xbfb8aa3b, v{r+1}")
        for fi in range(PD): rd(fi)
        stamp(1)
        mid = NF // 2 - 1 + int(os.environ.get('K3MID', '0'))
        nextW = 1; nextH = 1
        fi = 0
        for tt in range(G0):
            wl = []
            while nextW <= min(17, tt + 4) and len(wl) < (2 if tt < 4 else 1): wl.append(nextW); nextW += 1
            hl = []
            while nextH <= min(17, tt + 2) and len(hl) < (2 if tt < 1 else 1): hl.append(nextH); nextH += 1
            wp = [("W", u, x) for u in wl for x in range(3)]
            hp = [("H", t_, i_) for t_ in hl for i_ in range(4)]
            ops = []
            if tt == 0: ops = wp[:3] + hp[:4] + wp[3:] + hp[4:]
            else:
                if os.environ.get('K3ORD', '') == 'hfirst': ops = hp + wp; hp = []; wp = []
                while wp or hp:
                    if hp: ops.append(hp.pop(0))
                    if wp: ops.append(wp.pop(0))
            nm = 4 * NF
            slots = {}
            for k, o in enumerate(ops):
                o0, o1 = [float(x) for x in os.environ.get('K3OFF', '0.25,0.75').split(',')]
                span = float(os.environ.get('K3SPAN', '1.0'))
                p = int((k + (o0 if ch == 0 else o1)) * (nm - 4) * span / len(ops)) if tt > 0 else 2 * k
                slots.setdefault(p, []).append(o)
            for fr in range(NF):
                c = TL[fr // 2]; mat = fr & 1
                b = WB + 4 * (fi % NB)
                A.wait_lg(("F", fi))
                for i in range(4):
                    hb = HB + 16 * (tt % 3) + 4 * i
                    if fr == 0: A.wait_vm(("H", tt, i))
                    cc = "0" if tt == 0 else acc(i, c, mat)
                    I(f"v_mfma_f32_16x16x32_bf16 {acc(i,c,mat)}, v[{b}:{b+3}], v[{hb}:{hb+3}], {cc}")
                    if i == 0: rd(fi + PD)
                    for o in slots.get(4 * fr + i, []):
                        if o[0] == "W": dma_piece(o[1], o[2])
                        else: hload(o[1], o[2])
                if fr == mid:
                    assert A.vmq.count(("W", tt + 1 if tt < G0 - 1 else 17)) == 3
                    A.wait_vm(("W", tt + 1 if tt < G0 - 1 else 17))
                    I("s_barrier")
                    dl = SLOT if (tt % NSLOT) < NSLOT - 1 else -(NSLOT - 1) * SLOT
                    for m in range(4): I(f"v_add_u32 v{vA[(tt+1) & 1][m]}, {dl}, v{vA[tt & 1][m]}")
                if fr == 1 and tt == 12: stats_load(0)
                if fr == 0 and tt == 14: stats_math(0); stats_load(1)
                fi += 1
        hloads(17)
        stats_math(1)
        for m in range(4): I(f"v_add_u32 v{vA[1 - (G0 & 1)][m]}, {2*SLOT}, v{vA[G0 & 1][m]}")
        I("s_mov_b32 s49, 0xbfb8aa3b")
        I("s_lshr_b32 s56, s34, 1"); I("s_mul_i32 s56, s56, 9"); I("s_and_b32 s58, s34, 1")
        I("s_lshl_b32 s59, s58, 2"); I("s_add_u32 s59, s59, s56"); I("s_lshl_b32 s59, s59, 10")
        I("s_add_u32 s56, s56, 8"); I("s_lshl_b32 s56, s56, 10"); I("s_lshl_b32 s58, s58, 3"); I("s_add_u32 s56, s56, s58")
        vcs = T0
        I(f"v_lshrrev_b32 v{vcs}, 8, v{vL16}"); I(f"v_lshlrev_b32 v{vcs}, 4, v{vcs}"); I(f"v_add_u32 v{vcs}, {LCS}, v{vcs}")
        for i in range(4):
            I(f"s_add_u32 s{84+i}, s35, {i}"); I(f"s_mul_i32 s{84+i}, s{84+i}, 147456"); I(f"s_add_u32 s{84+i}, s{84+i}, {ACT}")
        def epi_ops(c):
            L = []
            L.append(lambda: (I(f"ds_read_b128 v[{CSR}:{CSR+3}], v{vcs} offset:{64*c}", tag=("CS", c)),
                              I(f"ds_read_b128 v[{CSR+4}:{CSR+7}], v{vcs} offset:{576 + 64*c}", tag=("CS", c))))
            for i in range(4):
                k = accb(i, c, 0); g = k; u = k + 4
                nm, c1, k2 = vR + 2 * i, vR + 2 * i + 1, vK[i]
                if i == 0: L.append(lambda: A.wait_lg(("CS", c)))
                for r in range(8): L.append(f"v_fmac_f32 v{k+r}, v{nm}, v{CSR+r}")
                for r in range(4): L.append(f"v_mul_f32 v{u+r}, v{g+r}, v{u+r}")
                for r in range(4): L.append(f"v_mul_f32 v{g+r}, v{c1}, v{g+r}")
                for r in range(4): L.append(f"v_exp_f32 v{g+r}, v{g+r}")
                for r in range(4): L.append(f"v_fma_f32 v{g+r}, v{g+r}, v{k2}, v{k2}")
                for r in range(4): L.append(f"v_rcp_f32 v{g+r}, v{g+r}")
                for r in range(4): L.append(f"v_mul_f32 v{u+r}, v{u+r}, v{g+r}")
                if c == 8:
                    for r in range(2): L.append(f"v_cvt_pk_bf16_f32 v{k+r}, v{u+2*r}, v{u+2*r+1}")
                    L.append(f"s_add_u32 s57, s56, s{84+i}")
                    L.append(f"buffer_store_dwordx2 v[{k}:{k+1}], v{vL16}, s[16:19], s57 offen {STF8}")
                else:
                    kp = k if (c & 1) == 0 else k - 8
                    for r in range(2): L.append(f"v_cvt_pk_bf16_f32 v{kp + 2*(c & 1) + r}, v{u+2*r}, v{u+2*r+1}")
                    if c & 1:
                        L.append(f"s_add_u32 s57, s59, s{84+i}")
                        L.append(f"buffer_store_dwordx4 v[{kp}:{kp+3}], v{vL16}, s[16:19], s57 offen offset:{1024*(c >> 1)} {STF}")
            return L
        def emit(o):
            if callable(o): o()
            else: I(o)
        pend = []
        for ci, c in enumerate(TL):
            nmf = 24; done = 0; tot = len(pend)
            for tt in range(G0, 18):
                for mat in range(2):
                    b = WB + 4 * (fi % NB)
                    A.wait_lg(("F", fi))
                    for i in range(4):
                        hb = HB + 16 * (tt % 3) + 4 * i
                        if ci == 0 and mat == 0: A.wait_vm(("H", tt, i))
                        I(f"v_mfma_f32_16x16x32_bf16 {acc(i,c,mat)}, v[{b}:{b+3}], v[{hb}:{hb+3}], {acc(i,c,mat)}")
                        if i == 0: rd(fi + PD)
                        done += 1
                        while pend and (tot - len(pend)) < tot * done // nmf: emit(pend.pop(0))
                    fi += 1
            while pend: emit(pend.pop(0))
            pend = epi_ops(c)
            if ci == int(os.environ.get('K3PFCI', '0')):
                I("s_lshr_b32 s46, s2, 3"); I("s_lshl_b32 s46, s46, 3"); I("s_add_u32 s46, s46, s30"); I("s_mul_i32 s46, s46, 23")
                I(f"v_lshrrev_b32 v{T0+2}, 4, v{vL16}"); I(f"v_add_u32 v{T0+2}, s46, v{T0+2}")
                I(f"v_min_u32 v{T0+2}, 5759, v{T0+2}")
                I("s_mov_b32 s48, 0xCCCD")
                I(f"v_mul_lo_u32 v{T0+1}, v{T0+2}, s48"); I(f"v_lshrrev_b32 v{T0+1}, 18, v{T0+1}")
                I(f"v_lshlrev_b32 v{T0+2}, 7, v{T0+2}")
                I(f"v_mul_u32_u24 v{T0+1}, 512, v{T0+1}"); I(f"v_add_u32 v{T0+2}, v{T0+2}, v{T0+1}")
                I("s_lshr_b32 s48, s31, 1"); I(f"s_mul_i32 s48, s48, {1152*1152}"); I("s_and_b32 s46, s31, 1"); I("s_lshl_b32 s46, s46, 9"); I("s_add_u32 s48, s48, s46")
                I("s_mov_b32 s24, s92"); I("s_mov_b32 s25, s93"); I("s_mov_b32 s26, 0x%x" % (D*F*2)); I("s_mov_b32 s27, 0x20000")
                I("s_mov_b32 exec_hi, 0"); I("s_mov_b32 exec_lo, 0x7fffff")
                I(f"buffer_load_dword v{T0+1}, v{T0+2}, s[24:27], s48 offen", tag="PF")
                if os.environ.get("K3SLAB", "0") == "1":
                    I("s_mov_b64 exec, -1")
                    I("s_lshl_b32 s46, s2, 3"); I("s_add_u32 s46, s46, s30"); I("s_mul_i32 s46, s46, 4608"); I(f"s_add_u32 s46, s46, {SLAB}")
                    I(f"v_lshlrev_b32 v{T0+2}, 3, v{vL16}")
                    I("s_mov_b32 exec_hi, 0xf")
                    I(f"buffer_load_dword v{T0+1}, v{T0+2}, s[16:19], s46 offen", tag="PF")
                I("s_mov_b64 exec, -1")
        stamp(2)
        while pend: emit(pend.pop(0))
        if prof:
            I("s_waitcnt vmcnt(0)")
            stamp(3)
            I("s_lshl_b32 s96, s2, 3"); I("s_add_u32 s96, s96, s30"); I("s_lshl_b32 s96, s96, 7"); I(f"s_add_u32 s96, s96, {PROF}")
            for k in range(16): I(f"v_mov_b32 v{k}, s{60+k}")
            I("v_mov_b32 v32, 0")
            for k in range(4): I(f"buffer_store_dwordx4 v[{4*k}:{4*k+3}], v32, s[16:19], s96 offen offset:{16*k}")
        if ch == 0: I("s_endpgm")
    A.label(f"L{name}_end")
    I("s_endpgm")
    launch = f"; @launch kernel={name} grid=(256,1,1) block=(512,1,1) lds={LDS_BYTES}"
    return launch, A.text(), kernel_desc(name, 256)
```

```python
from asmlib import *
from layout import *
import os
BAR2 = int(os.environ.get('K4BAR2', '0'))

def gen_k4d(name="k4_kernel", prof=False, exp=""):
    A = Asm(); I = A.i
    PROF = 203 * MB
    SLOT = 24576; UOFF = 12288; NSLOT = 6
    XB = 0
    LDS_BYTES = SLOT * NSLOT
    G0 = int(os.environ.get('K4G0', '15'))
    XS = [((G0 - 2) % 6) * SLOT, ((G0 - 1) % 6) * SLOT]
    PD = 4; NB = 6
    HD = 6
    AB = 72; WB = 120
    vA = [[144, 145, 146, 147], [148, 149, 150, 151]]
    vD = [152, 153, 154]
    vL16 = 207
    T0 = 208
    A.raw(kernel_header(name))
    def stamp(i):
        if prof:
            I(f"s_memtime s[{60+4*i}:{61+4*i}]"); I(f"s_memrealtime s[{62+4*i}:{63+4*i}]"); I("s_waitcnt lgkmcnt(0)")
    I("s_cmp_ge_u32 s2, 256")
    I(f"s_cbranch_scc1 L{name}_end")
    stamp(0)
    I("s_load_dwordx2 s[4:5], s[0:1], 48")
    I("s_load_dwordx4 s[20:23], s[0:1], 56")
    I("s_load_dwordx2 s[24:25], s[0:1], 72")
    lane = T0
    I(f"v_lshrrev_b32 v{T0+1}, 6, v0")
    I(f"v_readfirstlane_b32 s30, v{T0+1}")
    I(f"v_and_b32 v{lane}, 63, v0")
    I("s_and_b32 s31, s2, 7"); I("s_lshr_b32 s32, s2, 3")
    I("s_lshr_b32 s33, s31, 1")
    I("s_and_b32 s34, s31, 1"); I("s_lshl_b32 s34, s34, 1"); I("s_and_b32 s36, s32, 1"); I("s_add_u32 s34, s34, s36")
    I("s_lshr_b32 s32, s32, 1")
    I("s_and_b32 s41, s30, 3"); I("s_lshr_b32 s39, s30, 2")
    I("s_lshl_b32 s35, s32, 3"); I("s_lshl_b32 s36, s41, 1"); I("s_add_u32 s35, s35, s36")
    I(f"v_lshlrev_b32 v{vL16}, 4, v{lane}")
    I("s_mov_b32 s36, 0xAAAB")
    for x in range(3):
        q, rw, p, t = T0+2, T0+3, T0+4, T0+5
        I(f"v_add_u32 v{q}, {64*x}, v{lane}")
        I(f"v_mul_lo_u32 v{rw}, v{q}, s36")
        I(f"v_lshrrev_b32 v{rw}, 20, v{rw}")
        I(f"v_mul_u32_u24 v{t}, 24, v{rw}")
        I(f"v_sub_u32 v{p}, v{q}, v{t}")
        I(f"v_and_b32 v{t}, 6, v{rw}")
        I(f"v_xor_b32 v{p}, v{p}, v{t}")
        I(f"v_mul_u32_u24 v{t}, 1152, v{rw}")
        I(f"v_lshl_add_u32 v{vD[x]}, v{p}, 4, v{t}")
    I("s_mul_i32 s40, s33, 1152"); I("s_mul_i32 s42, s39, 576"); I("s_add_u32 s40, s40, s42")
    I("s_lshl_b32 s42, s41, 3"); I("s_add_u32 s40, s40, s42")
    I("s_mul_i32 s40, s40, 1152")
    I("s_lshr_b32 s45, s41, 1"); I(f"s_mul_i32 s45, s45, {128*1152}")
    I("s_lshl_b32 s42, s34, 8"); I("s_add_u32 s40, s40, s42")
    I("s_mul_i32 s43, s41, 3072")
    I(f"s_mul_i32 s44, s39, {UOFF}"); I("s_add_u32 s43, s43, s44")
    I("s_mul_i32 s46, s33, 36"); I("s_mul_i32 s47, s39, 18"); I("s_add_u32 s46, s46, s47")
    for i in range(2):
        I(f"s_xor_b32 s{52+i}, s39, {i}"); I(f"s_add_u32 s{52+i}, s{52+i}, s35")
        I(f"s_mul_i32 s{52+i}, s{52+i}, 144")
        I(f"s_add_u32 s{52+i}, s{52+i}, s46")
        I(f"s_lshl_b32 s{52+i}, s{52+i}, 10")
        I(f"s_add_u32 s{52+i}, s{52+i}, {ACT}")
    I("s_waitcnt lgkmcnt(0)")
    I("s_mov_b32 s8, s4"); I("s_mov_b32 s9, s5"); I(f"s_mov_b32 s10, {D*F*2}"); I("s_mov_b32 s11, 0x20000")
    I("s_mov_b32 s16, s24"); I("s_mov_b32 s17, s25"); I(f"s_mov_b32 s18, {WS_BYTES}"); I("s_mov_b32 s19, 0x20000")
    def dma_piece(u, x):
        I(f"s_add_u32 m0, s43, {1024*x + (u % NSLOT)*SLOT}")
        sp = u // 9; v = u % 9
        row = 288 * sp + (32 * v if v < 4 else (144 + 32 * (v - 4) if v < 8 else 128))
        I(f"s_add_u32 s37, s40, {row*1152}")
        if v == 8: I("s_add_u32 s37, s37, s45")
        I(f"buffer_load_dwordx4 v{vD[x]}, s[8:11], s37 offen lds", tag=("W", u))
    def dma_unit(u):
        for x in range(3): dma_piece(u, x)
    def aload(t):
        for i in range(2):
            b = AB + 8 * (t % HD) + 4 * i
            I(f"buffer_load_dwordx4 v[{b}:{b+3}], v{vL16}, s[16:19], s{52+i} offen", tag=("H", t, i))
            I(f"s_add_u32 s{52+i}, s{52+i}, 1024")
    dma_unit(0); aload(0); dma_unit(1); aload(1)
    if BAR2: dma_unit(2)
    I("s_mov_b32 s12, s20"); I("s_mov_b32 s13, s21"); I(f"s_mov_b32 s14, {S*D*2}"); I("s_mov_b32 s15, 0x20000")
    rowv, f, c4, t = T0+2, T0+3, T0+4, T0+5
    I(f"v_lshrrev_b32 v{rowv}, 2, v{lane}")
    I(f"v_bfe_u32 v{f}, v{lane}, 3, 2")
    I(f"v_and_b32 v{c4}, 3, v{lane}")
    I(f"v_mul_u32_u24 v{rowv}, 384, v{rowv}")
    I(f"v_lshl_add_u32 v{rowv}, v{c4}, 3, v{rowv}")
    I(f"s_mul_i32 s38, s39, {UOFF}")
    I(f"v_add_u32 v{rowv}, s38, v{rowv}")
    for m in range(4):
        I(f"s_add_u32 s38, s34, {m}")
        I(f"v_xor_b32 v{t}, s38, v{f}")
        I(f"v_lshl_add_u32 v{vA[0][m]}, v{t}, 5, v{rowv}")
    A.wait_vm(("W", 0))
    I("s_barrier")
    def acc(i, c):
        k = (i * 9 + c) * 4
        return f"v[{k}:{k+3}]"
    order = [0, 4, 1, 5, 2, 6, 3, 7, 8]
    seq = [(tt, c) for tt in range(G0) for c in range(9)] + [(tt, c) for c in order for tt in range(G0, 18)]
    def rd(fi):
        if fi >= len(seq): return
        tt, c = seq[fi]
        b = WB + 4 * (fi % NB)
        if tt < G0: va = vA[tt & 1][c & 3]; so = 0
        elif tt < 17: va = vA[G0 & 1][c & 3]; so = (tt - G0) * SLOT
        else: va = vA[1 - (G0 & 1)][c & 3]; so = 0
        for x in range(2):
            I(f"ds_read_b64_tr_b16 v[{b+2*x}:{b+2*x+1}], v{va} offset:{so + 128*(c >> 2) + x*6144}", tag=("F", fi))
    for fi in range(PD): rd(fi)
    stamp(1)
    def aload1(t, i):
        b = AB + 8 * (t % HD) + 4 * i
        I(f"buffer_load_dwordx4 v[{b}:{b+3}], v{vL16}, s[16:19], s{52+i} offen", tag=("H", t, i))
        I(f"s_add_u32 s{52+i}, s{52+i}, 1024")
    nextW = 2; nextA = 2
    fi = 0
    for tt in range(G0):
        wl = []
        while nextW <= min(17, tt + 4) and len(wl) < (2 if tt < 3 else 1): wl.append(nextW); nextW += 1
        al = []
        while nextA <= min(17, tt + 5) and len(al) < (2 if tt < 4 else 1): al.append(nextA); nextA += 1
        wp = [("W", u, x) for u in wl for x in range(3)]
        hp = [("H", t_, i_) for t_ in al for i_ in range(2)]
        ops = []
        while wp or hp:
            if wp: ops.append(wp.pop(0))
            if hp: ops.append(hp.pop(0))
        slots = {}
        for k, o in enumerate(ops):
            slots.setdefault(int((k + 0.5) * 18 / len(ops)), []).append(o)
        if tt == G0 - 2 and nextW == 17:
            for x in range(3): slots.setdefault(8 + 2 * x, []).append(("W", 17, x))
            nextW = 18
        for c in range(9):
            b = WB + 4 * (fi % NB)
            A.wait_lg(("F", fi))
            for i in range(2):
                hb = AB + 8 * (tt % HD) + 4 * i
                if c == 0: A.wait_vm(("H", tt, i))
                cc = "0" if tt == 0 else acc(i, c)
                I(f"v_mfma_f32_16x16x32_bf16 {acc(i,c)}, v[{b}:{b+3}], v[{hb}:{hb+3}], {cc}")
                if i == 0: rd(fi + PD)
                for o in slots.get(2 * c + i, []):
                    if o[0] == "W": dma_piece(o[1], o[2])
                    else: aload1(o[1], o[2])
            if c == 3:
                wt = tt + 1 if tt < G0 - 1 else 17
                for u_ in range(tt + 1, wt + 1): assert A.vmq.count(("W", u_)) == 3, (tt, u_)
                last = max(range(tt + 1, wt + 1), key=lambda u_: max(k for k, t_ in enumerate(A.vmq) if t_ == ("W", u_)))
                A.wait_vm(("W", last))
                I("s_barrier")
                dl = SLOT if (tt % NSLOT) < NSLOT - 1 else -(NSLOT - 1) * SLOT
                for m in range(4): I(f"v_add_u32 v{vA[(tt+1) & 1][m]}, {dl}, v{vA[tt & 1][m]}")
            if tt == G0 - 1 and c == 4:
                for m in range(4): I(f"v_add_u32 v{vA[1 - (G0 & 1)][m]}, {(17 - G0)*SLOT}, v{vA[G0 & 1][m]}")
                I("s_lshl_b32 s46, s32, 2"); I("s_add_u32 s46, s46, s34")
                I("s_lshl_b32 s47, s46, 3"); I("s_add_u32 s47, s47, s30"); I("s_mul_i32 s47, s47, 4608"); I(f"s_add_u32 s47, s47, {SLAB}")
                I(f"s_mul_i32 s48, s33, {64*8*4608}"); I("s_add_u32 s48, s48, s47")
                I("s_sub_u32 s54, s33, s30"); I("s_and_b32 s54, s54, 3")
                I("s_add_u32 s49, s35, s39"); I("s_mul_i32 s49, s49, 36"); I("s_mul_i32 s50, s34, 9"); I("s_add_u32 s49, s49, s50")
                I("s_lshl_b32 s49, s49, 9"); I(f"s_add_u32 s49, s49, {H4}")
                I(f"v_lshrrev_b32 v{T0+3}, 1, v{vL16}")
                I("s_lshl_b32 s50, s30, 11"); I(f"s_add_u32 s50, s50, {XS[0]}"); I(f"v_add_u32 v{T0+1}, s50, v{vL16}")
                I("s_xor_b32 s50, s30, 4"); I("s_lshl_b32 s50, s50, 11"); I(f"s_add_u32 s50, s50, {XS[0]}"); I(f"v_add_u32 v{T0+2}, s50, v{vL16}")
            fi += 1
        if tt == G0 - 1:
            pass
    HR = 156; PK = 176; RX = 196 - 8
    n = [0]
    def finish(c, idx):
        rx = RX + 4 * (idx & 1)
        A.wait_lg(("X", c))
        for r in range(4): I(f"v_add_f32 v{4*c+r}, v{4*c+r}, v{rx+r}")
        if c < 4: return
        q = c & 3
        n[0] += 1
        I(f"s_cmp_eq_u32 s54, {q}")
        I(f"s_cbranch_scc1 L{name}_own{n[0]}")
        p = PK + 4 * (n[0] & 1)
        if c < 8:
            for h_, cc in enumerate((q, q + 4)):
                I(f"v_cvt_pk_bf16_f32 v{p+2*h_}, v{4*cc}, v{4*cc+1}"); I(f"v_cvt_pk_bf16_f32 v{p+2*h_+1}, v{4*cc+2}, v{4*cc+3}")
            A.raw(f"    buffer_store_dwordx4 v[{p}:{p+3}], v{vL16}, s[16:19], s48 offen offset:{1024*q} sc1")
        else:
            I(f"v_cvt_pk_bf16_f32 v{p}, v32, v33"); I(f"v_cvt_pk_bf16_f32 v{p+1}, v34, v35")
            I(f"s_add_u32 s50, s48, 4096")
            A.raw(f"    buffer_store_dwordx2 v[{p}:{p+1}], v{T0+3}, s[16:19], s50 offen sc1")
        I(f"s_branch L{name}_ownj{n[0]}")
        A.label(f"L{name}_own{n[0]}")
        for cc in ((q, q + 4) if c < 8 else (8,)):
            I(f"s_add_u32 s50, s49, {512*cc}")
            A.raw(f"    buffer_load_dwordx2 v[{HR+2*cc}:{HR+2*cc+1}], v{T0+3}, s[16:19], s50 offen")
        A.label(f"L{name}_ownj{n[0]}")
    groups = [[0, 4], [1, 5], [2, 6], [3, 7], [8]]
    def mf(c, first):
        nonlocal_fi = None
        for tt in range(G0, 18):
            fi_ = FI[0]
            b = WB + 4 * (fi_ % NB)
            A.wait_lg(("F", fi_))
            for i in range(2):
                hb = AB + 8 * (tt % HD) + 4 * i
                if first: A.wait_vm(("H", tt, i))
                I(f"v_mfma_f32_16x16x32_bf16 {acc(i,c)}, v[{b}:{b+3}], v[{hb}:{hb+3}], {acc(i,c)}")
                if i == 0: rd(fi_ + PD)
            FI[0] += 1
    FI = [fi]
    def xwrite(g):
        for k, c in enumerate(groups[g]):
            I(f"ds_write_b128 v{T0+1}, v[{36+4*c}:{36+4*c+3}] offset:{SLOT*(g & 1) + 1024*k}", tag=("XW", g))
        A.wait_lg(("XW", g))
        I("s_barrier")
        for k, c in enumerate(groups[g]):
            I(f"ds_read_b128 v[{RX+4*k}:{RX+4*k+3}], v{T0+2} offset:{SLOT*(g & 1) + 1024*k}", tag=("X", c))
    def xfin(g):
        for k, c in enumerate(groups[g]): finish(c, k)
    for g, grp in enumerate(groups):
        mf(grp[0], g == 0)
        if g > 0: xwrite(g - 1)
        if len(grp) > 1: mf(grp[1], False)
        if g > 0: xfin(g - 1)
    stamp(2)
    xwrite(4); xfin(4)
    I(f"v_lshrrev_b32 v200, 4, v{vL16}")
    I(f"v_and_b32 v201, 15, v200"); I(f"v_lshrrev_b32 v200, 4, v200")
    I(f"v_mul_u32_u24 v201, 1152, v201"); I(f"v_lshl_add_u32 v201, v200, 3, v201")
    I("s_add_u32 s49, s35, s39"); I(f"s_mul_i32 s49, s49, {16*1152}"); I("s_mul_i32 s50, s34, 288"); I("s_add_u32 s49, s49, s50")
    stamp(3)
    I("s_waitcnt vmcnt(0)")
    stamp(4)
    I("s_barrier")
    I("s_cmp_lg_u32 s30, 0")
    I(f"s_cbranch_scc1 L{name}_noat")
    I("s_lshl_b32 s50, s46, 7"); I(f"s_add_u32 s50, s50, {FLG}")
    I("s_lshl_b32 s51, s33, 2")
    I(f"v_mov_b32 v{T0+4}, s51"); I(f"v_mov_b32 v{T0+5}, 1"); I(f"v_mov_b32 v{T0+6}, 0")
    I("s_mov_b64 exec, 1")
    I(f"buffer_store_dword v{T0+5}, v{T0+4}, s[16:19], s50 offen sc1")
    A.label(f"L{name}_poll")
    I(f"buffer_load_dwordx4 v[196:199], v{T0+6}, s[16:19], s50 offen sc1")
    I("s_waitcnt vmcnt(0)")
    I("v_and_b32 v196, v196, v197"); I("v_and_b32 v198, v198, v199"); I("v_and_b32 v196, v196, v198")
    I(f"v_readfirstlane_b32 s51, v196")
    I("s_cmp_lg_u32 s51, 1")
    I(f"s_cbranch_scc1 L{name}_poll")
    I("s_mov_b64 exec, -1")
    A.label(f"L{name}_noat")
    I("s_barrier")
    stamp(5)
    LB = 112
    I("s_lshl_b32 s55, s54, 10")
    for d in range(1, 4):
        I(f"s_add_u32 s50, s33, {d}"); I("s_and_b32 s50, s50, 3"); I(f"s_mul_i32 s50, s50, {64*8*4608}"); I("s_add_u32 s50, s50, s47")
        I(f"s_add_u32 s{55+d}, s50, 4096")
        I("s_add_u32 s50, s50, s55")
        I(f"buffer_load_dwordx4 v[{LB+4*(d-1)}:{LB+4*(d-1)+3}], v{vL16}, s[16:19], s50 offen sc1")
    I("s_cmp_lg_u32 s54, 0")
    I(f"s_cbranch_scc1 L{name}_no8")
    for d in range(1, 4):
        I(f"buffer_load_dwordx2 v[{LB+12+2*(d-1)}:{LB+13+2*(d-1)}], v{T0+3}, s[16:19], s{55+d} offen sc1")
    A.label(f"L{name}_no8")
    I("s_waitcnt vmcnt(0)")
    stamp(6)
    def addbf(c, src):
        I(f"v_lshlrev_b32 v202, 16, v{src}"); I(f"v_and_b32 v203, 0xffff0000, v{src}")
        I(f"v_lshlrev_b32 v204, 16, v{src+1}"); I(f"v_and_b32 v205, 0xffff0000, v{src+1}")
        for r in range(4): I(f"v_add_f32 v{4*c+r}, v{4*c+r}, v{202+r}")
    def fin(c):
        addbf(c, HR + 2 * c)
        I(f"v_cvt_pk_bf16_f32 v{4*c}, v{4*c}, v{4*c+1}"); I(f"v_cvt_pk_bf16_f32 v{4*c+1}, v{4*c+2}, v{4*c+3}")
        I(f"buffer_store_dwordx2 v[{4*c}:{4*c+1}], v201, s[12:15], s49 offen offset:{32*c}")
    for q in range(4):
        n[0] += 1
        I(f"s_cmp_lg_u32 s54, {q}")
        I(f"s_cbranch_scc1 L{name}_sk{n[0]}")
        for h_, cc in enumerate((q, q + 4)):
            for d in range(3): addbf(cc, LB + 4 * d + 2 * h_)
            fin(cc)
        if q == 0:
            for d in range(3): addbf(8, LB + 12 + 2 * d)
            fin(8)
        A.label(f"L{name}_sk{n[0]}")
    if prof:
        I("s_waitcnt vmcnt(0)")
        stamp(7)
        I("s_lshl_b32 s96, s2, 3"); I("s_add_u32 s96, s96, s30"); I("s_lshl_b32 s96, s96, 7"); I(f"s_add_u32 s96, s96, {PROF}")
        for k in range(32): I(f"v_mov_b32 v{k}, s{60+k}")
        I("v_mov_b32 v32, 0")
        for k in range(8): I(f"buffer_store_dwordx4 v[{4*k}:{4*k+3}], v32, s[16:19], s96 offen offset:{16*k}")
    A.label(f"L{name}_end")
    I("s_endpgm")
    launch = f"; @launch kernel={name} grid=(256,1,1) block=(512,1,1) lds={LDS_BYTES}"
    return launch, A.text(), kernel_desc(name, 216)
```
